```python
import torch

def _softmax(x, axis=-1):
    return torch.softmax(x, dim=axis)
def _gelu(x):
    return torch.nn.functional.gelu(x, approximate="tanh")
def _silu(x):
    return torch.nn.functional.silu(x)
def _sigmoid(x):
    return torch.sigmoid(x)
def _layernorm(x, axis=-1, eps=1e-5):
    m = x.mean(dim=axis, keepdim=True)
    v = x.var(dim=axis, keepdim=True, unbiased=False)
    return (x - m) / torch.sqrt(v + eps)
def _scatter_add(tgt, idx, src, axis=0):
    return tgt.clone().index_add_(axis, idx, src)
def _segment_sum(src, seg, n):
    out = torch.zeros((n,) + src.shape[1:], dtype=src.dtype)
    return out.index_add_(0, seg, src)
def _pad(x, pw):
    flat = tuple(v for pair in reversed(pw) for v in pair)
    return torch.nn.functional.pad(x, flat)

kernel_name = 'sequential_preLN__spectral_gfnet__mixer_channel_mlp__prompt'

def setup_inputs():

    _w = (lambda a: (lambda t: t.to(torch.bfloat16) if t.is_floating_point() else t)(torch.as_tensor(a)))
    def _A_setup():
        B, S, D = 1, 2048, 640
        Df = D // 2 + 1
        return {
            "x": _w((lambda *s: torch.randn(*s, dtype=torch.bfloat16) * 0.05)(B, S, D)),
            "w_r": _w((lambda *s: torch.randn(*s, dtype=torch.bfloat16) * 0.8)(S, Df) * 0.02),
            "w_i": _w((lambda *s: torch.randn(*s, dtype=torch.bfloat16) * 0.8)(S, Df) * 0.02),
        }
    _A_in = _A_setup()

    def _B_setup():
        B, S, D, F = 1, 2048, 640, 1536
        return {
            "x": _w((lambda *s: torch.randn(*s, dtype=torch.bfloat16) * 0.05)(B, S, D)),
            "w1": _w((lambda *s: torch.randn(*s, dtype=torch.bfloat16) * 0.8)(D, F) * (D ** -0.5)),
            "b1": _w((lambda *s: torch.randn(*s, dtype=torch.bfloat16) * 0.4)(F)),
            "w2": _w((lambda *s: torch.randn(*s, dtype=torch.bfloat16) * 0.05)(F, D) * (F ** -0.5)),
            "b2": _w((lambda *s: torch.randn(*s, dtype=torch.bfloat16) * 0.05)(D)),
        }
    _B_in = _B_setup()

    return {
        "A_x": _A_in["x"],
        "A_w_r": _A_in["w_r"],
        "A_w_i": _A_in["w_i"],
        "B_x": _B_in["x"],
        "B_w1": _B_in["w1"],
        "B_b1": _B_in["b1"],
        "B_w2": _B_in["w2"],
        "B_b2": _B_in["b2"],
    }

def reference(A_x, A_w_r, A_w_i, B_x, B_w1, B_b1, B_w2, B_b2):
    def _A_ref(x, w_r, w_i):
        B, S, D = x.shape
        X = (lambda x, axes=(-2,-1): torch.fft.rfft2(x.float(), dim=axes))(x, axes=(-2, -1))
        W = w_r + 1j * w_i
        X = X * W
        y = (lambda x, s, axes=(-2,-1): torch.fft.irfft2(x, s=s, dim=axes).to(torch.bfloat16))(X, (S, D), axes=(-2, -1))
        return y

    def _B_ref(x, w1, b1, w2, b2):
        y = _layernorm(x, axis=-1)
        h = _gelu(torch.einsum("bsd,df->bsf", y, w1) + b1)
        return torch.einsum("bsf,fd->bsd", h, w2) + b2

    x = A_x
    h = x + _A_ref(_layernorm(x, axis=-1), A_w_r, A_w_i)
    h2 = h + _B_ref(_layernorm(h, axis=-1), B_w1, B_b1, B_w2, B_b2)
    return h2
```

```python
import re, struct

def f2h(x):
    return "0x%08x" % struct.unpack("<I", struct.pack("<f", x))[0]

REG = re.compile(r"(?<![\w.])(-?\|?|abs\()?([vas])(?:(\d+)|\[(\d+):(\d+)\])")
TRANS = ("v_exp_f32", "v_log_f32", "v_rcp_f32", "v_rsq_f32", "v_sqrt_f32", "v_sin_f32", "v_cos_f32")

def regs_of(tok):
    tok = tok.strip()
    out = set()
    if tok.startswith("vcc"): return {("s", "vcc")}
    if tok.startswith("exec"): return {("s", "exec")}
    if tok == "m0": return {("s", "m0")}
    m = REG.search(tok)
    if not m: return out
    k = m.group(2)
    if m.group(3) is not None: out.add((k, int(m.group(3))))
    else:
        for i in range(int(m.group(4)), int(m.group(5)) + 1): out.add((k, i))
    return out

class Ins:
    __slots__ = ("text", "mn", "kind", "wr", "rd", "A", "B", "C", "passes", "states", "target", "stdata", "dpp", "addr_s")
    def __init__(self, text):
        self.text = text
        t = text.split(";")[0].strip()
        parts = t.split(None, 1)
        mn = parts[0]; self.mn = mn
        rest = parts[1] if len(parts) > 1 else ""
        ops = [o.strip() for o in re.split(r",(?![^\[]*\])", rest)] if rest else []
        opsr = []
        for o in ops:
            opsr.append(o.split()[0] if o and not o.startswith("abs(") else o)
        self.wr = set(); self.rd = set(); self.A = self.B = self.C = set(); self.passes = 0
        self.states = 1; self.target = None; self.stdata = set(); self.dpp = ("dpp" in mn) or ("row_" in t) or ("quad_perm" in t)
        self.addr_s = set()
        base = re.sub(r"_(e32|e64|dpp|sdwa)$", "", mn)
        R = [regs_of(o) for o in opsr]
        if mn == "s_nop":
            self.kind = "nop"; self.states = int(opsr[0], 0) + 1
        elif mn.startswith("v_mfma"):
            self.kind = "mfma"; self.wr = R[0]; self.A = R[1]; self.B = R[2]; self.C = R[3]
            self.rd = R[1] | R[2] | R[3]
            self.passes = 8 if "32x32" in mn else 4
        elif mn.startswith("v_"):
            self.kind = "valu"
            if base in TRANS: self.kind = "trans"
            if base.startswith("v_dot2"): self.kind = "dl"
            if base.startswith("v_permlane"):
                self.kind = "perm"; self.wr = R[0] | R[1]; self.rd = R[0] | R[1]
            else:
                self.wr = set(R[0]); srcs = R[1:]
                if base in ("v_add_co_u32", "v_sub_co_u32", "v_addc_co_u32", "v_subb_co_u32"):
                    self.wr |= R[1]; srcs = R[2:]
                for s in srcs: self.rd |= s
                if base in ("v_fmac_f32", "v_dot2c_f32_bf16", "v_pk_fmac_f16") or self.dpp: self.rd |= R[0]
                if base == "v_cndmask_b32" and len(R) == 3: self.rd.add(("s", "vcc"))
                if base.startswith("v_cmpx"): self.wr.add(("s", "exec"))
                if base in ("v_readfirstlane_b32", "v_readlane_b32"): self.kind = "rdlane"
        elif mn.startswith("buffer_") or mn.startswith("global_"):
            self.kind = "vmem"
            islds = t.endswith(" lds") or " lds " in t
            if mn.startswith("buffer_wbl2") or mn.startswith("buffer_inv"):
                pass
            elif "load" in mn:
                if islds:
                    for r in R: self.rd |= r
                    self.rd.add(("s", "m0")); self.kind = "dma"
                else:
                    self.wr = R[0]
                    for r in R[1:]: self.rd |= r
            else:
                for r in R: self.rd |= r
                d = R[0] if mn.startswith("buffer_") else R[1]
                if "x4" in mn or "x3" in mn: self.stdata = d
            self.addr_s = {r for r in self.rd if r[0] == "s"}
        elif mn.startswith("ds_"):
            self.kind = "ds"
            if "read" in mn or "permute" in mn or "swizzle" in mn:
                self.wr = R[0]
                for r in R[1:]: self.rd |= r
                if "d16" in mn: self.rd |= R[0]
            else:
                for r in R: self.rd |= r
        elif mn.startswith("s_cbranch") or mn == "s_branch":
            self.kind = "branch"; self.target = opsr[0]
        elif mn.startswith("s_"):
            self.kind = "salu"
            if mn.startswith("s_cmp") or mn.startswith("s_bitcmp") or mn in ("s_waitcnt", "s_barrier", "s_sleep", "s_endpgm", "s_setprio"):
                for r in R: self.rd |= r
            else:
                if R: self.wr = set(R[0])
                for r in R[1:]: self.rd |= r
                if "saveexec" in mn: self.wr.add(("s", "exec"))
        else:
            raise ValueError("unknown instruction " + text)

VALUISH = ("valu", "trans", "dl", "perm", "rdlane")

def need(p, c):
    n = 0
    pv = p.kind in VALUISH; cv = c.kind in VALUISH
    vec = lambda s: {r for r in s if r[0] != "s"}
    sca = lambda s: {r for r in s if r[0] == "s"}
    if p.kind == "mfma":
        big = 8 if p.passes == 4 else 12
        if c.kind == "mfma":
            if p.wr & (c.A | c.B): n = max(n, big)
            if p.wr & c.C:
                if not (p.wr == c.C and p.passes == c.passes): n = max(n, big - 2)
            if (p.wr & c.wr) and not (p.wr == c.C): n = max(n, big)
        else:
            if p.wr & (c.rd | c.wr): n = max(n, big)
            if cv and (p.C & c.wr): n = max(n, 3 if p.passes == 4 else 7)
            if c.kind in ("ds", "vmem") and ((p.A | p.B | p.C) & c.wr): n = max(n, 1)
    if pv:
        w = vec(p.wr); sw = sca(p.wr)
        if c.kind == "mfma" and (w & c.rd): n = max(n, 2)
        if c.kind == "mfma" and ("s", "exec") in sw: n = max(n, 4)
        if c.kind == "perm" and (w & c.rd): n = max(n, 2)
        if cv and c.dpp and (w & c.rd): n = max(n, 2)
        if cv and c.dpp and ("s", "exec") in sw: n = max(n, 5)
        if c.kind == "rdlane" and (w & c.rd): n = max(n, 1)
        if c.kind in ("rdlane", "perm") and ("s", "exec") in sw: n = max(n, 4)
        if p.kind == "trans" and cv and (w & c.rd): n = max(n, 1)
        if p.kind == "dl" and (w & (c.rd | c.wr)) and c.kind != "salu":
            if not (c.kind == "dl" and c.mn == p.mn and not (w & (c.rd - c.wr))): n = max(n, 3)
        if cv and (sw & c.rd): n = max(n, 2)
        if c.kind in ("vmem", "dma") and (sw & c.addr_s): n = max(n, 5)
        if c.kind in ("salu", "branch") and (sw & c.rd): n = max(n, 1)
    if p.kind == "salu" and ("s", "m0") in p.wr and c.kind == "dma": n = max(n, 1)
    if p.kind == "vmem" and p.stdata and (p.stdata & c.wr): n = max(n, 2)
    return n

class Asm:
    def __init__(self):
        self.items = []
    def __call__(self, text):
        for ln in text.split("\n"):
            s = ln.strip()
            if not s or s.startswith(";"): continue
            if s.endswith(":") and " " not in s: self.items.append(("l", s[:-1]))
            elif s.startswith("."): self.items.append(("r", s))
            else: self.items.append(("i", s))
    def label(self, l): self.items.append(("l", l))
    def raw(self, s): self.items.append(("r", s))
    def extend(self, other): self.items += other.items
    def finalize(self, W=16):
        out = []
        hists = [[]]
        pend = {}
        labelpos = {}
        nops = 0
        def trim(h):
            tot = 0; k = len(h)
            while k > 0 and tot < W:
                k -= 1; tot += h[k].states
            return h[k:]
        def req(h, c):
            d = 0; best = 0
            for p in reversed(h):
                best = max(best, need(p, c) - d)
                d += p.states
                if d >= W: break
            return best
        backs = []
        for kind, x in self.items:
            if kind == "r":
                out.append(x); continue
            if kind == "l":
                out.append(x + ":"); labelpos[x] = len(out)
                hists = hists + pend.pop(x, [])
                continue
            c = Ins(x)
            r = max([req(h, c) for h in hists] + [0])
            while r > 0:
                k = min(r, 16); np_ = Ins("s_nop %d" % (k - 1)); out.append(np_); nops += k
                hists = [h + [np_] for h in hists]; r -= k
            out.append(c)
            hists = [trim(h + [c]) for h in hists]
            uniq = []
            for h in hists:
                if not any(len(h) == len(u) and all(a is b for a, b in zip(h, u)) for u in uniq): uniq.append(h)
            hists = uniq
            if c.kind == "branch":
                if c.target in labelpos: backs.append((len(out) - 1, c.target, [list(h) for h in hists]))
                else: pend.setdefault(c.target, []).extend([list(h) for h in hists])
                if c.mn == "s_branch": hists = [[]]
            if c.mn == "s_endpgm": hists = [[]]
        assert not pend, "unresolved labels %s" % list(pend)
        ins_at = {}
        for pos, tgt, hs in backs:
            worst = 0
            for h in hs:
                d = 0; i = labelpos[tgt]
                while i < len(out) and d < W:
                    c = out[i]; i += 1
                    if not isinstance(c, Ins): continue
                    dd = d
                    for p in reversed(h):
                        worst = max(worst, need(p, c) - dd); dd += p.states
                    d += c.states
                    if c.mn == "s_branch": break
            if worst > 0: ins_at[pos] = worst
        lines = []
        for i, o in enumerate(out):
            if i in ins_at: lines.append("    s_nop %d" % (ins_at[i] - 1))
            lines.append("    " + o.text if isinstance(o, Ins) else o)
        self.nops = nops
        self.ninstr = sum(isinstance(o, Ins) for o in out)
        return "\n".join(lines) + "\n"

def weave(main, fill, start=0, every=1, per=1):
    out = []; fi = 0
    for i, m in enumerate(main):
        out.append(m)
        if i >= start and (i - start) % every == 0:
            for _ in range(per):
                if fi < len(fill): out.append(fill[fi]); fi += 1
    out += fill[fi:]
    return out


class Stamps:
    def __init__(self, on, base=64, dbg=0xE00000):
        self.on = on; self.base = base; self.dbg = dbg
    def start(self, a):
        if self.on:
            a(f"s_memrealtime s[{self.base}:{self.base+1}]\ns_memtime s[{self.base+2}:{self.base+3}]")
            for i in range(2, 14): a(f"s_mov_b32 s{self.base+2*i}, 0")
    def __call__(self, a, i):
        if self.on: a(f"s_memtime s[{self.base+2+2*i}:{self.base+3+2*i}]")
    def flush(self, a, ws, swave, vt=2, koff=0):
        if not self.on: return
        b = self.base
        a(f"s_waitcnt vmcnt(0)\ns_memtime s[{b+26}:{b+27}]\ns_memrealtime s[{b+28}:{b+29}]\ns_waitcnt lgkmcnt(0)\ns_mov_b64 exec, 1")
        a(f"s_lshl_b32 s{b+1}, s2, 8\ns_lshl_b32 s{b+3}, s{swave}, 6\ns_add_u32 s{b+1}, s{b+1}, s{b+3}\ns_add_u32 s{b+1}, s{b+1}, {self.dbg + koff}\nv_mov_b32 v{vt}, s{b+1}")
        a(f"v_mov_b32 v{vt+1}, s{b}\nglobal_store_dword v{vt}, v{vt+1}, s[{ws}:{ws+1}]")
        for i in range(1, 13):
            a(f"s_sub_u32 s{b+3}, s{b+2+2*i}, s{b+2}\ns_cmp_eq_u32 s{b+2+2*i}, 0\ns_cselect_b32 s{b+3}, 0, s{b+3}\nv_mov_b32 v{vt+1}, s{b+3}\nglobal_store_dword v{vt}, v{vt+1}, s[{ws}:{ws+1}] offset:{4*i}")
        a(f"v_mov_b32 v{vt+1}, s{b+28}\nglobal_store_dword v{vt}, v{vt+1}, s[{ws}:{ws+1}] offset:52")
```

```python
from asmlib import *
from layout import *

K1_LDS = 122880
SIDE = 81920

def srd(a, d, base, size):
    a(f"s_mov_b32 s{d}, s{base}\ns_and_b32 s{d+1}, s{base+1}, 0xffff\ns_mov_b32 s{d+2}, {size}\ns_mov_b32 s{d+3}, 0x20000")

vTID, vL = 0, 1
vT = 2
vADR = 10
PHI = 20
FR = 100
ACC = 148
P = lambda i: PHI + 8*i
Q = lambda i: PHI + 8*i + 4
rng = lambda b, n=4: f"v[{b}:{b+n-1}]"

def phi_gen():
    L = []
    L += ["s_lshl_b32 s31, s30, 6", "s_add_u32 s31, s31, s28", "s_add_u32 s31, s31, 1",
          f"v_and_b32 v2, 15, v{vL}", "v_lshl_add_u32 v2, v2, 2, s31", "v_cvt_f32_u32 v2, v2",
          f"v_mul_f32 v2, {f2h(1/640)}, v2",
          f"v_lshrrev_b32 v3, 4, v{vL}", "v_lshlrev_b32 v3, 3, v3", "v_cvt_f32_u32 v3, v3", "v_mul_f32 v3, v3, v2"]
    for i in range(5):
        for jp in range(4):
            j = 2*jp
            L += [f"v_fmamk_f32 v4, v2, {f2h(32*i+j)}, v3", f"v_fmamk_f32 v5, v2, {f2h(32*i+j+1)}, v3",
                  "v_cos_f32 v6, v4", "v_cos_f32 v7, v5", "v_sin_f32_e64 v8, -v4", "v_sin_f32_e64 v9, -v5",
                  f"v_cvt_pk_bf16_f32 v{P(i)+jp}, v6, v7", f"v_cvt_pk_bf16_f32 v{Q(i)+jp}, v8, v9"]
    return L

def phi_fix(a, tag):
    a(f"s_cmp_eq_u32 s31, 260\ns_cbranch_scc0 {tag}_nofix")
    a(f"v_and_b32 v2, 15, v{vL}\nv_cmp_eq_u32 vcc, 15, v2\nv_mov_b32 v3, 0xbf353f35\nv_mov_b32 v4, 0")
    for i in range(5):
        for jp in range(4):
            a(f"v_cndmask_b32 v{P(i)+jp}, v{P(i)+jp}, v3, vcc\nv_cndmask_b32 v{Q(i)+jp}, v{Q(i)+jp}, v4, vcc")
    a(f"{tag}_nofix:")
    a("""s_add_u32 s32, s28, 1
s_and_b32 s32, s32, 2
s_cmp_lg_u32 s32, 0
s_cselect_b32 s33, 0x80008000, 0
s_cmp_lt_u32 s28, 2
s_cselect_b32 s34, 0x80008000, 0
s_bitcmp1_b32 s28, 0
s_cselect_b32 s35, 1.0, -1.0""")
    a(f"s_cbranch_scc1 {tag}_keep")
    for i in range(5):
        for jp in range(4):
            a(f"v_xor_b32 v{P(5+i)+jp}, s33, v{Q(i)+jp}\nv_xor_b32 v{Q(5+i)+jp}, s34, v{P(i)+jp}")
    a(f"s_branch {tag}_shifted\n{tag}_keep:")
    for i in range(5):
        for jp in range(4):
            a(f"v_xor_b32 v{P(5+i)+jp}, s33, v{P(i)+jp}\nv_xor_b32 v{Q(5+i)+jp}, s34, v{Q(i)+jp}")
    a(f"{tag}_shifted:")

def div12(a, dst_row, dst_pc, e):
    a(f"""v_add_u32 v{dst_pc}, {64*e}, v{vL}
v_mul_u32_u24 v{dst_row}, 5462, v{dst_pc}
v_lshrrev_b32 v{dst_row}, 16, v{dst_row}
v_mul_u32_u24 v9, 12, v{dst_row}
v_sub_u32 v{dst_pc}, v{dst_pc}, v9""")

def w2f_setup(a):
    for e in range(3):
        div12(a, 2, 3, e)
        a(f"v_mul_u32_u24 v2, 1280, v2\nv_lshl_add_u32 v{10+e}, v3, 4, v2")

def w2f_dma(sU, ldsbase):
    L = [f"s_lshr_b32 s36, s{sU}, 3", f"s_and_b32 s37, s{sU}, 7",
         "s_mul_i32 s36, s36, 192", "s_mul_i32 s39, s28, 48", "s_add_u32 s36, s36, s39", "s_mul_i32 s36, s36, 1280",
         "s_mul_i32 s37, s37, 160", "s_and_b32 s38, s37, 63", "s_sub_u32 s37, s37, s38", "s_add_u32 s36, s36, s37",
         "s_mul_i32 s39, s28, 9216", f"s_add_u32 s39, s39, {ldsbase}"]
    for blk in range(3):
        for e in range(3):
            L += [f"s_add_u32 m0, s39, {(3*blk+e)*1024}", f"buffer_load_dwordx4 v{10+e}, s[24:27], s36 offen lds"]
        if blk < 2: L += [f"s_add_u32 s36, s36, {16*1280}"]
    return L

def w2f_proc(a, sU, ldsbase, R):
    a(f"""s_and_b32 s37, s{sU}, 7
s_mul_i32 s38, s37, 160
s_and_b32 s38, s38, 63
s_mul_i32 s39, s28, 9216
s_add_u32 s39, s39, {ldsbase}
s_add_u32 s39, s39, s38
v_lshrrev_b32 v2, 2, v{vL}
v_mul_u32_u24 v3, 192, v2
v_and_b32 v4, 3, v{vL}
v_add_u32 v3, s39, v3
v_lshl_add_u32 v13, v4, 4, v3
v_lshl_add_u32 v14, v4, 3, v3
v_and_b32 v2, 7, v2
v_mul_u32_u24 v3, 192, v2
v_add_u32 v3, s39, v3
v_lshrrev_b32 v5, 5, v{vL}
v_lshl_add_u32 v15, v4, 4, v3
v_lshl_add_u32 v15, v5, 3, v15
v_lshl_add_u32 v16, v4, 3, v3""")
    for dt in range(5):
        for h in range(2):
            if dt < 4: a(f"ds_read_b64_tr_b16 v[{R+4*dt+2*h}:{R+4*dt+2*h+1}], v13 offset:{h*16*192 + 64*(dt//2) + 8*(dt%2)}")
            else: a(f"ds_read_b64_tr_b16 v[{R+4*dt+2*h}:{R+4*dt+2*h+1}], v14 offset:{h*16*192 + 128}")
    a("s_waitcnt lgkmcnt(8)")
    for pi in range(3):
        for h in range(2):
            r = R + 20 + 4*pi + 2*h
            if pi < 2: a(f"ds_read_b64_tr_b16 v[{r}:{r+1}], v15 offset:{32*192 + h*8*192 + 64*pi}")
            else: a(f"ds_read_b64_tr_b16 v[{r}:{r+1}], v16 offset:{32*192 + h*8*192 + 128}")
    a(f"""s_lshr_b32 s36, s{sU}, 3
s_mul_i32 s36, s36, 6
s_mul_i32 s37, s37, 48
s_add_u32 s36, s36, s37
s_add_u32 s37, s36, s28
s_mul_i32 s37, s37, 5120
s_add_u32 s37, s37, {W2F}
s_lshr_b32 s38, s28, 1
s_add_u32 s36, s36, s38
s_add_u32 s36, s36, 4
s_mul_i32 s36, s36, 5120
s_add_u32 s36, s36, {W2F}
s_and_b32 s38, s28, 1
s_lshl_b32 s38, s38, 9
s_add_u32 s36, s36, s38
v_lshlrev_b32 v2, 4, v{vL}
v_and_b32 v3, 31, v{vL}
v_lshlrev_b32 v3, 4, v3
v_lshl_add_u32 v4, v5, 10, v3
v_add_u32 v6, 4096, v2
v_add_u32 v7, 4096, v3""")
    for dt in range(5):
        a(f"s_waitcnt lgkmcnt({14-2*dt})")
        if dt < 4: a(f"buffer_store_dwordx4 {rng(R+4*dt)}, v2, s[20:23], s37 offen offset:{dt*1024}")
        else: a(f"buffer_store_dwordx4 {rng(R+4*dt)}, v6, s[20:23], s37 offen")
    for pi in range(3):
        a(f"s_waitcnt lgkmcnt({4-2*pi})")
        if pi < 2: a(f"buffer_store_dwordx4 {rng(R+20+4*pi)}, v4, s[20:23], s36 offen offset:{pi*2048}")
        else: a(f"buffer_store_dwordx4 {rng(R+20+4*pi)}, v7, s[20:23], s36 offen")

STEPS = [s for u in range(5) for s in (2*u, 2*u+10, 2*u+1, 2*u+11)]

def kloop(a, nfr, reads, mfmas, vm, stp):
    a(f"s_waitcnt vmcnt({vm(0)})\ns_barrier")
    stp(a, 5)
    for x in reads(STEPS[0], 0): a(x)
    seen = set()
    for n, st in enumerate(STEPS):
        first = (st // 10) not in seen; seen.add(st // 10)
        M = mfmas(st, n % 2, first)
        a("s_waitcnt lgkmcnt(0)")
        if n + 1 < 20:
            Rd = reads(STEPS[n+1], (n+1) % 2)
            if (n + 1) % 4 == 0:
                for x in M[:2]: a(x)
                a(f"s_waitcnt vmcnt({vm((n+1)//4)})\ns_barrier")
                stp(a, 5 + (n+1)//4)
                for x in weave(M[2:], Rd, 0, 1, 2 if len(Rd) > len(M)-2 else 1): a(x)
            else:
                for x in weave(M, Rd, 0, 1, 2 if len(Rd) > len(M) else 1): a(x)
        else:
            for x in M: a(x)

def build_k1(name, ldflag="", k2_code=None, diag=False, stflag=""):
    a = Asm()
    st = Stamps(diag)
    st.start(a)
    a(f"""s_cmp_ge_u32 s2, 256
s_cbranch_scc1 k1_exit
s_load_dwordx4 s[4:7], s[0:1], 0
s_load_dwordx2 s[8:9], s[0:1], 16
s_load_dwordx2 s[10:11], s[0:1], 32
s_load_dwordx2 s[12:13], s[0:1], 48
s_load_dwordx2 s[14:15], s[0:1], 80
v_lshrrev_b32 v2, 6, v0
v_and_b32 v{vL}, 63, v0
v_readfirstlane_b32 s28, v2
v_mov_b32 v4, 0
v_mov_b32 v5, 0
v_mov_b32 v6, 0
v_mov_b32 v7, 0
v_lshlrev_b32 v3, 4, v0
s_lshl_b32 s31, s2, 12
s_add_u32 s31, s31, {GTAIL}
s_waitcnt lgkmcnt(0)""")
    srd(a, 16, 4, 2621440); srd(a, 20, 14, WSEND)
    st(a, 1)
    a("""s_cmp_ge_u32 s2, 240
s_cbranch_scc1 k1_spare
s_cmp_ge_u32 s2, 160
s_cbranch_scc1 k1_w""")
    a("""s_and_b32 s29, s2, 7
s_lshl_b32 s29, s29, 2
s_bfe_u32 s32, s2, 0x20003
s_add_u32 s29, s29, s32
s_lshr_b32 s30, s2, 5
s_cmp_ge_u32 s2, 128
s_cbranch_scc1 k1_x_side2""")
    a("""s_bitcmp1_b32 s2, 0
s_cselect_b32 s24, s8, s6
s_cselect_b32 s25, s9, s7
s_and_b32 s25, s25, 0xffff
s_mov_b32 s26, 1314816
s_mov_b32 s27, 0x20000
s_bfe_u32 s36, s2, 0x30001
s_lshl_b32 s36, s36, 3
s_lshr_b32 s37, s2, 4
s_lshl_b32 s37, s37, 8
s_add_u32 s36, s36, s37
s_lshl_b32 s37, s28, 6
s_add_u32 s36, s36, s37
s_mul_i32 s36, s36, 642
s_mul_i32 s39, s28, 6144""")
    a(f"s_add_u32 s39, s39, {SIDE}\nv_lshlrev_b32 v10, 4, v{vL}")
    for e in range(6):
        a(f"s_add_u32 m0, s39, {e*1024}\ns_nop 0\nbuffer_load_dwordx4 v10, s[24:27], s36 offen {ldflag} lds\ns_add_u32 s36, s36, 1024")
    a("buffer_store_dwordx4 v[4:7], v3, s[20:23], s31 offen\ns_branch k1_x_main\nk1_x_side2:")
    srd(a, 24, 12, 1966080)
    a("buffer_store_dwordx4 v[4:7], v3, s[20:23], s31 offen\ns_sub_u32 s40, s2, 128")
    w2f_setup(a)
    for x in w2f_dma(40, SIDE): a(x.replace("offen lds", f"offen {ldflag} lds"))
    a("k1_x_main:")
    a(f"""s_lshr_b32 s32, s29, 2
s_lshl_b32 s32, s32, 8
s_and_b32 s33, s29, 3
s_lshl_b32 s33, s33, 3
s_add_u32 s32, s32, s33
s_lshl_b32 s33, s28, 5
s_add_u32 s32, s32, s33
v_lshrrev_b32 v2, 3, v{vL}
v_add_u32 v2, s32, v2
v_mul_u32_u24 v2, 1280, v2
v_bfe_u32 v3, v{vL}, 4, 1
s_lshl_b32 s33, s28, 1
v_or_b32 v3, s33, v3
v_and_b32 v4, 7, v{vL}
v_xor_b32 v3, v3, v4
v_lshl_add_u32 v17, v3, 4, v2
s_lshl_b32 s41, s28, 10""")
    D = []
    for c in range(5):
        for u in (c, c+5):
            for hi in range(2):
                D.append([f"s_add_u32 m0, s41, {(8*u+4*hi)*1024}", f"s_mov_b32 s42, {128*u + hi*163840}",
                          f"buffer_load_dwordx4 v17, s[16:19], s42 offen {ldflag} lds"])
    Gn = phi_gen()
    for d in D[:6]:
        for x in d: a(x)
    k = 6
    for i, x in enumerate(Gn):
        a(x)
        if i >= 11 and (i - 11) % 10 == 9 and k < 20:
            for y in D[k]: a(y)
            k += 1
    assert k == 20, k
    st(a, 2)
    phi_fix(a, "k1x")
    st(a, 3)
    a("s_cmp_ge_u32 s2, 128\ns_cbranch_scc1 k1_x_side2p")
    for i in range(40): a(f"v_mov_b32 v{ACC+i}, 0")
    a(f"""v_and_b32 v2, 7, v0
v_mul_u32_u24 v3, 642, v2
v_bfe_u32 v4, v0, 3, 2
v_bfe_u32 v5, v0, 5, 2
v_lshl_add_u32 v4, v4, 2, v5
v_lshrrev_b32 v5, 7, v0
v_lshl_add_u32 v6, v4, 2, v5
v_lshl_add_u32 v3, v6, 1, v3
v_add_u32 v10, {SIDE+2}, v3
v_lshl_add_u32 v4, v5, 4, v4
v_lshlrev_b32 v4, 14, v4
v_lshl_add_u32 v11, v2, 4, v4
s_bfe_u32 s36, s2, 0x30001
s_lshr_b32 s37, s36, 1
s_lshl_b32 s37, s37, 12
s_and_b32 s36, s36, 1
s_lshl_b32 s36, s36, 7
s_add_u32 s36, s36, s37
s_and_b32 s37, s2, 1
s_lshl_b32 s37, s37, 11
s_add_u32 s36, s36, s37
s_bfe_u32 s37, s2, 0x10004
s_lshl_b32 s37, s37, 10
s_add_u32 s36, s36, s37
s_lshr_b32 s37, s2, 5
s_lshl_b32 s37, s37, 8
s_add_u32 s36, s36, s37
s_add_u32 s36, s36, {WT}
s_waitcnt vmcnt(20)
s_barrier""")
    for v in range(10):
        for r in range(4):
            a(f"ds_read_u16_d16_hi v{ACC+4*v+r}, v10 offset:{r*6144 + 128*(v//2) + 4*(v%2)}")
        if v >= 2:
            a(f"s_waitcnt lgkmcnt(8)\nbuffer_store_dwordx4 {rng(ACC+4*(v-2))}, v11, s[20:23], s36 offen\ns_add_u32 s36, s36, {32*16384}")
    for v in (8, 9):
        a(f"s_waitcnt lgkmcnt({4*(9-v)})\nbuffer_store_dwordx4 {rng(ACC+4*v)}, v11, s[20:23], s36 offen\ns_add_u32 s36, s36, {32*16384}")
    a("s_branch k1_x_loop\nk1_x_side2p:\ns_waitcnt vmcnt(20)")
    w2f_proc(a, 40, SIDE, ACC)
    a("k1_x_loop:")
    st(a, 4)
    a(f"""v_and_b32 v2, 15, v{vL}
v_lshrrev_b32 v3, 2, v2
v_and_b32 v4, 3, v2
v_lshlrev_b32 v5, 10, v3
v_lshl_add_u32 v5, v4, 7, v5
v_lshrrev_b32 v4, 1, v4
v_lshl_or_b32 v3, v3, 1, v4
v_lshrrev_b32 v4, 4, v{vL}
v_xor_b32 v3, v3, v4
v_lshl_add_u32 v10, v3, 4, v5
v_xor_b32 v11, 64, v10
v_add_u32 v12, 40960, v10
v_add_u32 v13, 40960, v11""")
    def xreads(st, buf):
        u = st // 2
        ad = 10 + (st % 2) + (2 if u >= 5 else 0)
        return [f"ds_read_b128 {rng(FR+16*buf+4*t)}, v{ad} offset:{(u%5)*8192 + (t//2)*4096 + (t%2)*512}" for t in range(4)]
    xacc = lambda s, t, p: ACC + 32*s + 8*t + 4*p
    def xm(st, buf, first):
        L = []
        for t in range(4):
            for p in range(2):
                d = rng(xacc(st//10, t, p)); b = P(st%10) if p == 0 else Q(st%10)
                L.append(f"v_mfma_f32_16x16x32_bf16 {d}, {rng(FR+16*buf+4*t)}, {rng(b)}, {'0' if first else d}")
        return L
    kloop(a, 4, xreads, xm, lambda c: 16 - 4*c + 8, st)
    st(a, 10)
    a(f"""s_mul_i32 s36, s29, 81920
s_lshl_b32 s37, s30, 2
s_add_u32 s37, s37, s28
s_lshl_b32 s37, s37, 12
s_add_u32 s36, s36, s37
v_and_b32 v2, 15, v{vL}
v_lshrrev_b32 v3, 4, v{vL}
v_lshlrev_b32 v3, 4, v3
v_lshl_add_u32 v14, v2, 7, v3""")
    for p in range(2):
        for h in range(2):
            o = FR + 8*p + 4*h
            for tt_ in range(2):
                t = 2*h + tt_
                for r in range(4): a(f"v_fma_f32 v{xacc(0,t,p)+r}, v{xacc(1,t,p)+r}, s35, v{xacc(0,t,p)+r}")
                for rp in range(2): a(f"v_cvt_pk_bf16_f32 v{o+2*tt_+rp}, v{xacc(0,t,p)+2*rp}, v{xacc(0,t,p)+2*rp+1}")
            a(f"v_and_b32 v{o}, -2, v{o}\nbuffer_store_dwordx4 {rng(o)}, v14, s[20:23], s36 offen offset:{p*2048 + h*64}")
    a(f"""s_cmp_ge_u32 s30, 4
s_cbranch_scc1 k1_end
s_lshl_b32 s36, s30, 1
s_lshr_b32 s37, s28, 1
s_add_u32 s36, s36, s37
s_and_b32 s37, s28, 1
s_lshl_b32 s37, s37, 2
v_lshrrev_b32 v2, 4, v{vL}
v_add_u32 v2, s37, v2
s_and_b32 s38, s36, 3
s_lshl_b32 s38, s38, 1
v_bfe_u32 v3, v2, 1, 1
v_or_b32 v3, s38, v3
v_and_b32 v4, 7, v{vL}
v_xor_b32 v3, v3, v4
v_lshlrev_b32 v3, 4, v3
v_lshl_add_u32 v3, v2, 7, v3
v_bfe_u32 v4, v{vL}, 3, 1
v_lshl_add_u32 v3, v4, 13, v3
s_lshl_b32 s38, s36, 10
v_add_u32 v10, s38, v3
v_add_u32 v11, 0x8000, v10""")
    S = FR + 16
    for v in range(5):
        a(f"ds_read_b128 {rng(S+4*v)}, v{10 if v < 2 else 11} offset:{(v if v < 2 else v-2)*16384}")
    a("v_mov_b32 v4, 0\nv_mov_b32 v5, 0\ns_mov_b32 s38, 0x3f803f80\ns_waitcnt lgkmcnt(0)")
    for i in range(20): a(f"v_dot2_f32_bf16 v4, v{S+i}, v{S+i}, v4")
    for i in range(20): a(f"v_dot2_f32_bf16 v5, v{S+i}, s38, v5")
    for sh in (8, 4, 2, 1):
        a(f"v_add_f32_dpp v4, v4, v4 row_ror:{sh} row_mask:0xf bank_mask:0xf\nv_add_f32_dpp v5, v5, v5 row_ror:{sh} row_mask:0xf bank_mask:0xf")
    a(f"""v_mul_f32 v5, {f2h(1/640)}, v5
v_mul_f32 v4, {f2h(1/640)}, v4
v_fma_f32 v4, -v5, v5, v4
v_max_f32 v4, 0, v4
v_add_f32 v4, {f2h(EPS)}, v4
v_rsq_f32 v4, v4
s_lshl_b32 s37, s29, 7
s_lshl_b32 s38, s36, 4
s_add_u32 s37, s37, s38
s_add_u32 s37, s37, {RB}
v_mul_f32 v4, {f2h(2.0**-11)}, v4
v_and_b32 v6, 3, v2
v_lshlrev_b32 v6, 2, v6
v_lshrrev_b32 v7, 2, v2
v_lshl_add_u32 v6, v7, 12, v6
s_lshl_b32 s38, s29, 8
s_lshl_b32 s39, s36, 5
s_add_u32 s38, s38, s39
s_add_u32 s38, s38, {MU}
v_lshlrev_b32 v7, 2, v2
v_and_b32 v8, 15, v{vL}
v_cmp_eq_u32 vcc, 0, v8
s_and_saveexec_b64 s[42:43], vcc
buffer_store_dword v4, v6, s[20:23], s37 offen
buffer_store_dword v5, v7, s[20:23], s38 offen
s_branch k1_end""")
    a("k1_w:")
    srd(a, 24, 10, 1966080)
    a("""buffer_store_dwordx4 v[4:7], v3, s[20:23], s31 offen
s_sub_u32 s32, s2, 160
s_and_b32 s29, s32, 7
s_lshl_b32 s29, s29, 1
s_bfe_u32 s33, s32, 0x10003
s_add_u32 s29, s29, s33
s_lshr_b32 s30, s32, 4""")
    for e in range(3):
        div12(a, 2, 3, e)
        a(f"v_bfe_u32 v4, v2, 3, 1\nv_lshlrev_b32 v4, 1, v4\nv_xor_b32 v3, v3, v4\nv_mul_u32_u24 v2, 3072, v2\nv_lshl_add_u32 v{14+e}, v3, 4, v2")
    a("""s_lshr_b32 s32, s28, 1
s_and_b32 s33, s28, 1
s_mul_i32 s33, s33, 10
s_add_u32 s32, s32, s33
s_mul_i32 s41, s32, 6144
s_mul_i32 s42, s32, 98304
s_mul_i32 s33, s29, 192
s_add_u32 s42, s42, s33""")
    D = []
    for c in range(5):
        for hf in range(2):
            for e in range(3):
                d = [f"s_add_u32 m0, s41, {c*12288 + (3*hf+e)*1024}"]
                if e == 0: d.append(f"s_add_u32 s43, s42, {c*196608 + hf*49152}")
                else: d.append("s_nop 0")
                d.append(f"buffer_load_dwordx4 v{14+e}, s[24:27], s43 offen {ldflag} lds")
                D.append(d)
    for d in D[:10]:
        for x in d: a(x)
    k = 10
    for i, x in enumerate(Gn):
        a(x)
        if i >= 11 and (i - 11) % 8 == 7 and k < 30:
            for y in D[k]: a(y)
            k += 1
    assert k == 30, k
    st(a, 2)
    phi_fix(a, "k1w")
    st(a, 3)
    a(f"""v_lshrrev_b32 v2, 4, v{vL}
v_bfe_u32 v3, v{vL}, 2, 2
v_lshl_add_u32 v3, v2, 3, v3
v_mul_u32_u24 v3, 192, v3
v_and_b32 v4, 3, v{vL}
v_lshl_add_u32 v3, v4, 3, v3
v_and_b32 v2, 1, v2
v_lshlrev_b32 v2, 5, v2
v_add_u32 v10, v3, v2
v_sub_u32 v11, v3, v2
v_add_u32 v11, 32, v11
v_add_u32 v12, 61440, v10
v_add_u32 v13, 61440, v11""")
    def wreads(st, buf):
        L = []
        for ft in range(6):
            for h in range(2):
                ad = 10 + (ft % 2) + (2 if st >= 10 else 0)
                r = FR + 24*buf + 4*ft + 2*h
                L.append(f"ds_read_b64_tr_b16 v[{r}:{r+1}], v{ad} offset:{(st%10)*6144 + h*768 + 64*(ft//2)}")
        return L
    wacc = lambda s, ft, p: ACC + 48*s + 8*ft + 4*p
    def wm(st, buf, first):
        L = []
        for ft in range(6):
            for p in range(2):
                d = rng(wacc(st//10, ft, p)); b = P(st%10) if p == 0 else Q(st%10)
                L.append(f"v_mfma_f32_16x16x32_bf16 {d}, {rng(b)}, {rng(FR+24*buf+4*ft)}, {'0' if first else d}")
        return L
    kloop(a, 6, wreads, wm, lambda c: 24 - 6*c, st)
    st(a, 10)
    a(f"""s_mul_i32 s36, s29, {6*20*1024}
s_lshl_b32 s37, s30, 2
s_add_u32 s37, s37, s28
s_lshl_b32 s37, s37, 10
s_add_u32 s36, s36, s37
s_add_u32 s36, s36, {W1F}
v_lshlrev_b32 v14, 4, v{vL}""")
    for ft in range(6):
        o = FR + 4*ft
        for p in range(2):
            for r in range(4): a(f"v_fma_f32 v{wacc(0,ft,p)+r}, v{wacc(1,ft,p)+r}, s35, v{wacc(0,ft,p)+r}")
            for rp in range(2): a(f"v_cvt_pk_bf16_f32 v{o+2*p+rp}, v{wacc(0,ft,p)+2*rp}, v{wacc(0,ft,p)+2*rp+1}")
        a(f"buffer_store_dwordx4 {rng(o)}, v14, s[20:23], s36 offen\ns_add_u32 s36, s36, 20480")
    a("s_branch k1_end")
    a("k1_spare:")
    srd(a, 24, 12, 1966080)
    a("buffer_store_dwordx4 v[4:7], v3, s[20:23], s31 offen\ns_sub_u32 s40, s2, 240\ns_lshl_b32 s40, s40, 1\ns_add_u32 s40, s40, 32\ns_add_u32 s44, s40, 1")
    w2f_setup(a)
    for x in w2f_dma(40, 0): a(x.replace("offen lds", f"offen {ldflag} lds"))
    for x in w2f_dma(44, 36864): a(x.replace("offen lds", f"offen {ldflag} lds"))
    a("s_waitcnt vmcnt(9)")
    w2f_proc(a, 40, 0, ACC)
    a("s_waitcnt vmcnt(8)")
    w2f_proc(a, 44, 36864, ACC+32)
    a("k1_end:")
    st(a, 11)
    st.flush(a, 14, 28)
    a("k1_exit:\ns_endpgm")
    if stflag:
        a.items = [(k, x + " " + stflag) if k == "i" and x.startswith("buffer_store") else (k, x) for k, x in a.items]
    return a
```

```python
from asmlib import *
from layout import *
import math

K2_LDS = 163840
HT = 0
RG = 81920
RX = RG + 61440
vL = 1
rng = lambda b, n=4: f"v[{b}:{b+n-1}]"
arng = lambda b, n=4: f"a[{b}:{b+n-1}]"
MF = "v_mfma_f32_16x16x32_bf16"
def srd(a, d, base, size):
    a(f"s_mov_b32 s{d}, s{base}\ns_and_b32 s{d+1}, s{base+1}, 0xffff\ns_mov_b32 s{d+2}, {size}\ns_mov_b32 s{d+3}, 0x20000")

class VM:
    def __init__(self): self.n = 0; self.tags = {}
    def op(self, tag=None):
        self.n += 1
        if tag is not None: self.tags[tag] = self.n
    def wait(self, tag): return f"s_waitcnt vmcnt({min(63, self.n - self.tags[tag])})"

class Emit:
    def __init__(self, a): self.a = a; self.vm = VM()
    def __call__(self, L):
        if isinstance(L, str): L = [L]
        L = [y for x in L for y in x.split("\n")]
        for x in L:
            x = x.strip()
            if not x: continue
            if x.startswith("@vm "): self.a(self.vm.wait(x[4:])); continue
            tag = None
            if " #" in x: x, tag = x.split(" #")
            if x.startswith("buffer_") or x.startswith("global_"): self.vm.op(tag)
            self.a(x)

FAc, FAs, FAn = 20, 28, 36
FBc, FBs, FBn = 44, 52, 60
TC, TS = 68, 76
WTR = 84
XI = 116
ZF = 148
A1 = 212
wt = lambda c, p, t: WTR + 16*c + 8*p + 4*t
xi = lambda c, p, t: XI + 16*c + 8*p + 4*t
zf = lambda c, p, t, ks: ZF + 32*c + 16*p + 8*t + 4*ks
a1 = lambda c, p, t: A1 + 16*c + 8*p + 4*t
pk = lambda c, p: ZF + 32*c + 4*p
TMP = 244

def p2_consts():
    L = []
    L += [f"v_and_b32 v2, 15, v{vL}", "s_lshl_b32 s31, s28, 4", "v_add_u32 v2, s31, v2", "v_cvt_f32_u32 v2, v2",
          f"v_lshrrev_b32 v3, 4, v{vL}", "v_cvt_f32_u32 v3, v3",
          f"v_mul_f32 v4, {f2h(1/64)}, v2", "v_mul_f32 v5, 4.0, v3", "v_mul_f32 v5, v5, v4"]
    def pairs(step, base, offs, dc, ds, dn):
        out = []
        for q in range(len(offs)//2):
            out += [f"v_fmamk_f32 v6, v{step}, {f2h(offs[2*q])}, v{base}", f"v_fmamk_f32 v7, v{step}, {f2h(offs[2*q+1])}, v{base}",
                    "v_cos_f32 v8, v6", "v_cos_f32 v9, v7", "v_sin_f32 v6, v6", "v_sin_f32 v7, v7",
                    f"v_cvt_pk_bf16_f32 v{dc+q}, v8, v9", f"v_cvt_pk_bf16_f32 v{ds+q}, v6, v7", f"v_xor_b32 v{dn+q}, 0x80008000, v{ds+q}"]
        return out
    L += pairs(4, 5, [32*ks + 16*(j//4) + j%4 for ks in range(2) for j in range(8)], FAc, FAs, FAn)
    L += [f"v_mul_f32 v4, {f2h(1/2048)}, v2", f"v_mul_f32 v5, {f2h(8.0)}, v3", "v_mul_f32 v5, v5, v4"]
    for e in range(8):
        L += [f"v_fmamk_f32 v6, v4, {f2h(e)}, v5", f"v_cos_f32 v{TC+e}, v6", f"v_sin_f32 v{TS+e}, v6"]
    L += [f"v_bfe_u32 v2, v{vL}, 2, 2", f"v_and_b32 v4, 3, v{vL}", "v_lshl_add_u32 v2, v2, 3, v4", "v_cvt_f32_u32 v2, v2",
          f"v_mul_f32 v3, {f2h(8.0)}, v3"]
    for t in range(2):
        L += [f"v_add_f32 v4, {f2h(4.0*t)}, v2", f"v_mul_f32 v4, {f2h(1/32)}, v4", "v_mul_f32 v5, v3, v4"]
        L += pairs(4, 5, list(range(8)), FBc+4*t, FBs+4*t, FBn+4*t)
    return L

def cmul(c, src, wr, wi, conj):
    L = []
    for t in range(2):
        for rp in range(2):
            T = TMP + 4*((2*t+rp) % 2)
            for e in range(2):
                r = 2*rp + e
                re, im = src(c, 0, t) + r, src(c, 1, t) + r
                L += [f"v_mul_f32 v{T+e}, v{re}, v{wr(t)+r}", f"v_mul_f32 v{T+2+e}, v{im}, v{wr(t)+r}"]
            for e in range(2):
                r = 2*rp + e
                re, im = src(c, 0, t) + r, src(c, 1, t) + r
                if conj: L += [f"v_fmac_f32 v{T+e}, v{im}, v{wi(t)+r}", f"v_fma_f32 v{T+2+e}, -v{re}, v{wi(t)+r}, v{T+2+e}"]
                else:    L += [f"v_fma_f32 v{T+e}, -v{im}, v{wi(t)+r}, v{T+e}", f"v_fmac_f32 v{T+2+e}, v{re}, v{wi(t)+r}"]
            L += [f"v_cvt_pk_bf16_f32 v{pk(c,0)+2*t+rp}, v{T}, v{T+1}", f"v_cvt_pk_bf16_f32 v{pk(c,1)+2*t+rp}, v{T+2}, v{T+3}"]
    return L

def stage64(c, inv):
    L = []
    dst = xi if inv else a1
    X1, X2 = (FAn, FAs) if inv else (FAs, FAn)
    seq = [(0, 0, FAc), (1, 1, FAc), (0, 1, X1), (1, 0, X2)]
    started = set()
    for ks in range(2):
        for (po, pi_, F) in seq:
            for t in range(2):
                d = rng(dst(c, po, t))
                cin = d if (inv or (po, t) in started) else "0"
                started.add((po, t))
                L.append(f"{MF} {d}, {rng(zf(c, pi_, t, ks))}, {rng(F+4*ks)}, {cin}")
    return L

def stage32(c, inv):
    L = []
    X1, X2 = (FBn, FBs) if inv else (FBs, FBn)
    for n, (po, pi_, F) in enumerate([(0, 0, FBc), (1, 1, FBc), (0, 1, X1), (1, 0, X2)]):
        for t in range(2):
            d = rng(a1(c, po, t))
            L.append(f"{MF} {d}, {rng(F+4*t)}, {rng(pk(c, pi_))}, {'0' if n < 2 else d}")
    return L

def trreads(c, base):
    L = []
    for ks in range(2):
        for p in range(2):
            for t in range(2):
                for h in range(2):
                    r = zf(c, p, t, ks) + 2*h
                    L.append(f"ds_read_b64_tr_b16 v[{r}:{r+1}], v{14+t} offset:{base + c*8192 + p*4096 + ks*2048 + h*1024}")
    return L

def build_k2(name, diag=False, spin=1<<16, wsoff=0):
    a = Asm(); e = Emit(a); st = Stamps(diag)
    st.start(a)
    e(f"""s_cmp_ge_u32 s2, 256
s_cbranch_scc1 k2_exit
s_load_dwordx2 s[4:5], s[0:1], 40
s_load_dwordx4 s[8:11], s[0:1], 56
s_load_dwordx2 s[14:15], s[0:1], 80
v_lshrrev_b32 v2, 6, v0
v_and_b32 v{vL}, 63, v0
v_readfirstlane_b32 s28, v2
s_and_b32 s29, s2, 7
s_lshl_b32 s29, s29, 2
s_bfe_u32 s32, s2, 0x20003
s_add_u32 s29, s29, s32
s_lshr_b32 s30, s2, 5
v_lshlrev_b32 v10, 4, v{vL}
v_add_u32 v11, 20480, v10
v_add_u32 v12, 40960, v10
s_mul_i32 s44, s30, 12
s_mul_i32 s32, s28, 3
s_add_u32 s44, s44, s32
s_mul_i32 s44, s44, 20480
s_add_u32 s44, s44, {W1F}
s_mov_b32 s50, {spin}
s_waitcnt lgkmcnt(0)""")
    if wsoff: a(f"s_add_u32 s14, s14, {wsoff}\ns_addc_u32 s15, s15, 0")
    srd(a, 20, 14, WSEND); srd(a, 16, 10, 2621440)
    st(a, 1)
    W1L = []
    for kp in range(20):
        for i in range(3):
            pre = [f"s_add_u32 s45, s44, {kp*1024}"] if (kp % 4 == 0 and i == 0) else []
            W1L.append(pre + [f"buffer_load_dwordx4 {arng(12*kp+4*i)}, v{10+i}, s[20:23], s45 offen offset:{(kp%4)*1024} #w1_{kp}"])
    e("s_cmp_ge_u32 s2, 160\ns_cbranch_scc1 k2_nop2")
    e(f"""v_bfe_u32 v2, v{vL}, 3, 1
s_lshl_b32 s32, s28, 1
v_add_u32 v2, s32, v2
v_lshrrev_b32 v3, 4, v{vL}
v_lshl_add_u32 v2, v2, 2, v3
v_and_b32 v4, 7, v{vL}
v_lshlrev_b32 v4, 4, v4
v_lshl_add_u32 v5, v2, 7, v4
s_mov_b32 s32, 81920
v_mad_u32_u24 v13, v2, s32, v4
s_lshr_b32 s33, s2, 3
s_lshl_b32 s33, s33, 12
s_and_b32 s34, s2, 7
s_lshl_b32 s34, s34, 8
s_add_u32 s33, s33, s34
s_mov_b32 s34, {RB}
s_add_u32 s35, s34, 4096
s_lshl_b32 s36, s2, 15
s_lshl_b32 s37, s28, 12
s_add_u32 s36, s36, s37
s_add_u32 s36, s36, {WT}
s_add_u32 s37, s36, 16384""")
    RAW, RR = ZF, ZF + 16
    for c in range(2):
        for p in range(2):
            e(f"buffer_load_dwordx4 {rng(RAW+8*c+4*p)}, v13, s[20:23], s33 offen offset:{c*128 + p*2048} #x{c}{p}")
        if c == 0:
            e(f"buffer_load_dwordx4 {rng(RR)}, v5, s[20:23], s34 offen\nbuffer_load_dwordx4 {rng(RR+4)}, v5, s[20:23], s35 offen #r")
    for c in range(2):
        for p in range(2):
            for t in range(2):
                e(f"buffer_load_dwordx4 {rng(wt(c,p,t))}, v10, s[20:23], s{36+c} offen offset:{p*2048 + t*1024} #wt{c}")
    e(p2_consts())
    e(f"""v_bfe_u32 v2, v{vL}, 1, 1
v_bfe_u32 v3, v{vL}, 3, 1
v_lshl_or_b32 v2, v3, 1, v2
v_lshrrev_b32 v3, 4, v{vL}
v_xor_b32 v2, v2, v3
v_lshlrev_b32 v2, 4, v2
v_bfe_u32 v3, v{vL}, 2, 1
v_lshl_or_b32 v2, v3, 3, v2
v_and_b32 v3, 15, v{vL}
v_lshl_add_u32 v2, v3, 6, v2
s_lshl_b32 s32, s28, 10
s_add_u32 s32, s32, {RG}
v_add_u32 v16, s32, v2
v_xor_b32 v17, 8, v16
v_bfe_u32 v2, v{vL}, 3, 1
v_bfe_u32 v3, v{vL}, 5, 1
v_lshl_or_b32 v2, v3, 1, v2
v_and_b32 v3, 3, v{vL}
v_xor_b32 v2, v2, v3
v_lshlrev_b32 v2, 4, v2
v_bfe_u32 v3, v{vL}, 4, 1
v_lshl_or_b32 v2, v3, 3, v2
v_lshrrev_b32 v3, 2, v{vL}
v_lshl_add_u32 v2, v3, 6, v2
v_add_u32 v14, {RG}, v2
v_xor_b32 v15, 8, v14""")
    st(a, 2)
    SC = ZF + 24
    for c in range(2):
        for p in range(2):
            e(f"@vm {'r' if c == 0 else 'x1%d' % p}")
            raw = RAW + 8*c + 4*p
            for q in range(4):
                d = xi(c, p, 0) + 2*q
                e(f"v_lshlrev_b32 v{d}, 16, v{raw+q}\nv_and_b32 v{d+1}, 0xffff0000, v{raw+q}")
                e(f"v_pk_mul_f32 v[{TMP+2*(q%4)}:{TMP+2*(q%4)+1}], v[{d}:{d+1}], v[{RR+2*q}:{RR+2*q+1}]")
            o = SC + 8*c + 4*p
            for q in range(4): e(f"v_cvt_pk_bf16_f32 v{o+q}, v{TMP+2*q}, v{TMP+2*q+1}")
            e(f"ds_write_b64 v16, v[{o}:{o+1}] offset:{c*8192 + p*4096}\nds_write_b64 v17, v[{o+2}:{o+3}] offset:{c*8192 + p*4096}")
    e("s_waitcnt lgkmcnt(0)\ns_barrier")
    st(a, 3)
    wl = iter(W1L)
    def bg(L, every):
        out = []
        for i, x in enumerate(L):
            out.append(x)
            if i % every == every - 1:
                n = next(wl, None)
                if n: out += n
        return out
    R0, R1 = trreads(0, 0), trreads(1, 0)
    e(R0[:8]); e(R0[8:12]); e("s_waitcnt lgkmcnt(4)")
    A0 = stage64(0, False)
    e(weave(A0[:8], R0[12:] + R1[:4], 0, 1, 1)); e("s_waitcnt lgkmcnt(4)")
    e(weave(A0[8:], R1[4:12], 0, 1, 1)); e("s_waitcnt lgkmcnt(4)"); e(R1[12:])
    tw = lambda c, conj: cmul(c, a1, lambda t: TC+4*t, lambda t: TS+4*t, conj)
    wm = lambda c: cmul(c, a1, lambda t: wt(c, 0, t), lambda t: wt(c, 1, t), False)
    A1_ = stage64(1, False); T0 = tw(0, True)
    seq = A1_[:8] + ["s_waitcnt lgkmcnt(0)"] + weave(A1_[8:], T0[:16], 0, 1, 2) + T0[16:]
    T1 = tw(1, True)
    seq += weave(stage32(0, False), T1[:16], 0, 1, 2) + T1[16:]
    W0 = wm(0)
    seq += ["@vm wt1"] + weave(stage32(1, False), W0[:16], 0, 1, 2) + W0[16:]
    W1_ = wm(1)
    seq += weave(stage32(0, True), W1_[:16], 0, 1, 2) + W1_[16:]
    U0 = tw(0, False)
    seq += weave(stage32(1, True), U0[:16], 0, 1, 2) + U0[16:]
    wr = lambda c: [f"ds_write_b64 v{16+h}, v[{pk(c,p)+2*h}:{pk(c,p)+2*h+1}] offset:{16384 + c*8192 + p*4096}" for p in range(2) for h in range(2)]
    seq += wr(0) + tw(1, False) + wr(1)
    e(bg(seq, 9))
    e("s_waitcnt lgkmcnt(0)\ns_barrier")
    st(a, 4)
    R0, R1 = trreads(0, 16384), trreads(1, 16384)
    e(R0[:12]); e("s_waitcnt lgkmcnt(4)")
    A0 = stage64(0, True)
    e(weave(A0[:8], R0[12:] + R1[:4], 0, 1, 1)); e("s_waitcnt lgkmcnt(4)")
    e(weave(A0[8:], R1[4:12], 0, 1, 1)); e("s_waitcnt lgkmcnt(4)"); e(R1[12:])
    e("s_cmp_eq_u32 s2, 159\ns_cselect_b32 s32, 0, -1")
    def fin(c):
        L = []
        for p in range(2):
            o = a1(c, p, 0)
            for q in range(4): L.append(f"v_cvt_pk_bf16_f32 v{o+q}, v{xi(c,p,0)+2*q}, v{xi(c,p,0)+2*q+1}")
            if c == 1 and p == 1:
                L += [f"v_and_or_b32 v{o}, v{o}, s32, 1"] + [f"v_and_b32 v{o+q}, s32, v{o+q}" for q in (1, 2, 3)]
            else: L.append(f"v_or_b32 v{o}, 1, v{o}")
            L.append(f"buffer_store_dwordx4 {rng(o)}, v13, s[20:23], s33 offen offset:{c*128 + p*2048} sc1")
        return L
    A1_ = stage64(1, True)
    e(A1_[:8] + ["s_waitcnt lgkmcnt(0)"] + weave(A1_[8:], fin(0), 0, 1, 2) + fin(1))
    st(a, 5)
    rest = list(wl)
    vm_p2 = e.vm.n
    e("s_branch k2_join\nk2_nop2:")
    keep = (e.vm.n, dict(e.vm.tags))
    for n in W1L[:len(W1L) - len(rest)]: e(n)
    e.vm.n, e.vm.tags = keep
    e("k2_join:")
    PH, AC, GR, BF, SG = 20, 120, 168, 172, 204
    ph = lambda ki, dt: PH + 20*ki + 4*dt
    L = [f"v_bfe_u32 v2, v{vL}, 2, 2", f"v_and_b32 v3, 3, v{vL}", "v_lshl_add_u32 v2, v2, 3, v3", "s_mul_i32 s32, s30, 80",
         "v_add_u32 v2, s32, v2", f"v_and_b32 v3, 15, v{vL}", "v_add_u32 v3, s32, v3", "s_movk_i32 s33, 320"]
    DN = SG
    for dt in range(5):
        off = 32*(dt//2) + 4*(dt%2) if dt < 4 else 64
        L += [f"v_add_u32 v4, {off}, v{2 if dt < 4 else 3}", "v_subrev_u32 v5, 640, v4", "v_cmp_le_u32 vcc, s33, v4",
              "v_cndmask_b32 v4, v4, v5, vcc", "v_cvt_f32_i32 v4, v4", f"v_mul_f32 v{DN+dt}, {f2h(1/640)}, v4"]
    L += [f"v_lshrrev_b32 v2, 4, v{vL}", "s_cmp_eq_u32 s28, 3", "s_cselect_b32 s33, 3, 4", "v_cmp_eq_u32 vcc, s33, v2",
          f"v_mov_b32 v4, {f2h(math.sqrt(0.5))}", f"v_cndmask_b32 v{DN+5}, 1.0, v4, vcc", "v_lshlrev_b32 v2, 4, v2", "s_mul_i32 s34, s28, 5"]
    KV = DN + 6
    for ki in range(5):
        L += [f"s_add_u32 s32, s34, {ki}", "s_lshr_b32 s33, s32, 2", "s_lshl_b32 s33, s33, 6", "s_and_b32 s32, s32, 3", "s_add_u32 s32, s32, s33", "s_add_u32 s32, s32, 1",
              "v_add_u32 v3, s32, v2", f"v_cvt_f32_u32 v{KV}, v3"]
        for jr in range(1, 4): L.append(f"v_add_f32 v{KV+jr}, {f2h(4.0*jr)}, v{KV}")
        for dt in range(5):
            for q in range(2):
                L += [f"v_mul_f32 v4, v{KV+2*q}, v{DN+dt}", f"v_mul_f32 v5, v{KV+2*q+1}, v{DN+dt}",
                      "v_cos_f32 v6, v4", "v_cos_f32 v7, v5", "v_sin_f32_e64 v8, -v4", "v_sin_f32_e64 v9, -v5"]
                if ki == 4 and q == 1: L.append(f"v_mul_f32 v7, v7, v{DN+5}")
                L += [f"v_cvt_pk_bf16_f32 v{ph(ki,dt)+q}, v6, v7", f"v_cvt_pk_bf16_f32 v{ph(ki,dt)+2+q}, v8, v9"]
    wl = iter(rest)
    e(bg(L, 12))
    for n in wl: e(n)
    st(a, 6)
    e(f"""s_mul_i32 s33, s29, 81920
s_lshl_b32 s32, s28, 12
s_add_u32 s33, s33, s32
v_bfe_u32 v2, v{vL}, 1, 2
v_bfe_u32 v3, v{vL}, 4, 2
v_xor_b32 v2, v2, v3
v_lshlrev_b32 v2, 5, v2
v_and_b32 v3, 1, v{vL}
v_lshl_or_b32 v2, v3, 4, v2
v_lshrrev_b32 v3, 3, v{vL}
v_lshl_add_u32 v2, v3, 7, v2
v_add_u32 v13, s32, v2
v_add_u32 v18, 0x10000, v13
v_lshrrev_b32 v2, 2, v{vL}
v_bfe_u32 v3, v2, 1, 2
v_and_b32 v4, 3, v{vL}
v_lshlrev_b32 v4, 3, v4
v_lshl_add_u32 v4, v2, 7, v4""")
    for u in range(4):
        e(f"s_add_u32 s{40+u}, s28, {u}\ns_and_b32 s{40+u}, s{40+u}, 3\nv_xor_b32 v5, s{40+u}, v3\nv_lshl_add_u32 v{14+u}, v5, 5, v4")
    sg = lambda c, q: SG + 16*(c % 3) + 4*q
    def hload(c, sreg): return [f"buffer_load_dwordx4 {rng(sg(c,q))}, v10, s[20:23], s{sreg} offen offset:{q*1024} sc1" + (f" #h{c}" if q == 3 else "") for q in range(4)]
    def hcheck(c): return [f"v_bitop3_b32 v2, v{sg(c,0)}, v{sg(c,1)}, v{sg(c,2)} bitop3:0x80", f"v_bitop3_b32 v2, v2, v{sg(c,3)}, 1 bitop3:0x80", "v_cmp_eq_u32 vcc, 0, v2"]
    def hwrite(c): return [f"ds_write_b128 v{13 if c < 4 else 18}, {rng(sg(c,q))} offset:{(c%4)*16384 + q*1024}" for q in range(4)]
    retries = []
    def retry_block(tag, loads, check):
        retries.append((tag, loads, check))
        return [f"s_cbranch_vccnz k2_rt_{tag}\nk2_ok_{tag}:"]
    for c in range(1, 5): e(f"s_add_u32 s{34+c}, s33, {c*16384}")
    e("k2_poll0:")
    e(hload(0, 33)); e("s_sub_u32 s50, s50, 1\ns_cbranch_scc1 k2_fail\ns_waitcnt vmcnt(0)"); e(hcheck(0)); e("s_cbranch_vccnz k2_poll0")
    st(a, 7)
    e(hload(1, 35)); e(hload(2, 36)); e(hwrite(0)); e("s_waitcnt lgkmcnt(0)\ns_barrier"); e(hload(3, 37))
    bf = lambda b, u: BF + 16*b + 4*u
    def breads(kp, b, koff=0):
        return [f"ds_read_b64_tr_b16 v[{bf(b,u)+2*h}:{bf(b,u)+2*h+1}], v{14+u} offset:{(kp-koff)*4096 + h*2048}" for u in range(4) for h in range(2)]
    ac = lambda i, u: AC + 16*i + 4*u
    e(f"s_mul_i32 s44, s30, 48\ns_mul_i32 s32, s28, 12\ns_add_u32 s44, s44, s32\ns_mul_i32 s44, s44, 5120\ns_add_u32 s44, s44, {W2F}")
    W2L = []
    for n in range(60):
        pre = [f"s_add_u32 s45, s44, {n*1024}"] if n % 4 == 0 else []
        W2L.append(pre + [f"buffer_load_dwordx4 {arng(4*n)}, v10, s[20:23], s45 offen offset:{(n%4)*1024} #w2_{n//5}"])
    w2i = 0
    e(breads(0, 0))
    for kp in range(20):
        b = kp % 2; c = kp // 4; ph_ = kp % 4
        M = [f"{MF} {rng(GR)}, {rng(bf(b,0))}, {rng(bf(b,0))}, {'0' if kp == 0 else rng(GR)}"]
        for u in range(4):
            for i in range(3):
                M.append(f"{MF} {rng(ac(i,u))}, {arng(12*kp+4*i)}, {rng(bf(b,u))}, {'0' if kp == 0 else rng(ac(i,u))}")
        e("s_waitcnt lgkmcnt(0)")
        if kp == 15:
            pass
        fill = []
        if kp < 19:
            if kp + 1 == 16: fill += [f"v_add_u32 v{14+u}, 0x10000, v{14+u}" for u in range(4)]
            nxt = breads(kp+1, 1-b, 16 if kp + 1 >= 16 else 0)
            if ph_ == 3:
                e(M[:2]); M = M[2:]; e("s_barrier")
                if c + 3 <= 4 and c >= 1: fill += hload(c+3, 34+c+3)
            fill += nxt
        if ph_ == 2 and c < 4:
            fill += [f"@vm h{c+1}"] + hcheck(c+1) + retry_block(f"h{c+1}", hload(c+1, 34+c+1), hcheck(c+1)) + hwrite(c+1)
        if kp >= 9:
            while w2i < 60 and 4*w2i + 3 < 12*(kp-1) and len([x for x in fill if 'a[' in x]) < 4:
                fill += W2L[w2i]; w2i += 1
        if kp == 12:
            fill += ["s_mul_i32 s32, s30, 384", "s_mul_i32 s34, s28, 96", "s_add_u32 s32, s32, s34", f"v_lshrrev_b32 v19, 4, v{vL}", "v_lshlrev_b32 v19, 3, v19", "v_add_u32 v19, s32, v19"]
            fill += [f"global_load_dwordx2 v[{SG+32+2*i}:{SG+33+2*i}], v19, s[4:5] offset:{32*i}" + (" #b1x" if i == 2 else "") for i in range(3)]
        if kp == 13:
            fill += ["s_mul_i32 s32, s30, 160", f"v_lshrrev_b32 v2, 4, v{vL}", "v_lshl_add_u32 v3, v2, 4, s32", "v_lshl_add_u32 v4, v2, 3, s32",
                     "global_load_dwordx4 v[242:245], v3, s[8:9]", "global_load_dwordx4 v[246:249], v3, s[8:9] offset:64", "global_load_dwordx2 v[250:251], v4, s[8:9] offset:128",
                     "s_lshl_b32 s32, s29, 8", "s_lshl_b32 s34, s28, 6", "s_add_u32 s32, s32, s34", f"s_add_u32 s32, s32, {MU}",
                     f"v_and_b32 v5, 15, v{vL}", "v_lshlrev_b32 v5, 2, v5", "buffer_load_dword v252, v5, s[20:23], s32 offen #b1"]
        e(weave(M, fill, 0, 1, 2))
    st(a, 8)
    B1 = SG + 16
    e(f"""v_and_b32 v2, 3, v{vL}
v_cmp_eq_u32 vcc, 1, v2
v_cmp_eq_u32 s[34:35], 2, v2
v_cmp_eq_u32 s[36:37], 3, v2
v_bfe_u32 v3, v{vL}, 2, 2
v_lshrrev_b32 v4, 4, v{vL}
v_cmp_eq_u32 s[38:39], v3, v4
v_and_b32 v3, 15, v{vL}
v_lshlrev_b32 v3, 2, v3
s_lshl_b32 s32, s28, 6
s_add_u32 s32, s32, {RX}
v_add_u32 v4, s32, v3
v_add_u32 v3, {RX}, v3
v_cndmask_b32 v5, v{GR}, v{GR+1}, vcc
v_cndmask_b32 v5, v5, v{GR+2}, s[34:35]
v_cndmask_b32 v5, v5, v{GR+3}, s[36:37]
v_mul_f32 v5, {f2h(2/640**2)}, v5
v_add_f32 v6, {f2h(EPS)}, v5
v_rcp_f32 v7, v6
v_rsq_f32 v6, v6
v_fmaak_f32 v5, v5, v7, {f2h(EPS)}
v_rsq_f32 v5, v5
v_mul_f32 v6, {f2h(2/640)}, v6
v_mul_f32 v5, v5, v6
s_mov_b64 exec, s[38:39]
ds_write_b32 v4, v5
s_mov_b64 exec, -1
@vm b1""")
    for i in range(3):
        for q in range(2):
            e(f"v_and_b32 v{B1+4*i+2*q+1}, 0xffff0000, v{SG+32+2*i+q}\nv_lshlrev_b32 v{B1+4*i+2*q}, 16, v{SG+32+2*i+q}")
    e("s_waitcnt lgkmcnt(0)\ns_barrier")
    for u in range(4): e(f"s_lshl_b32 s32, s{40+u}, 6\nv_add_u32 v4, s32, v3\nds_read_b32 v{GR+u}, v4")
    e(f"""s_lshl_b32 s32, s29, 3
s_add_u32 s32, s32, s30
s_mul_i32 s32, s32, 24576
s_add_u32 s32, s32, {G}
s_lshl_b32 s33, s28, 10
s_add_u32 s33, s33, s32
s_lshr_b32 s34, s28, 1
s_add_u32 s34, s34, 4
s_lshl_b32 s34, s34, 10
s_add_u32 s34, s34, s32
s_and_b32 s35, s28, 1
s_lshl_b32 s35, s35, 9
s_add_u32 s34, s34, s35
v_and_b32 v2, 31, v{vL}
v_lshlrev_b32 v2, 4, v2
v_cmp_gt_u32 vcc, 32, v{vL}""")
    for u in range(4): e(f"s_mul_i32 s{36+u}, s{40+u}, 6144")
    e("v_mov_b32 v4, s36\nv_mov_b32 v5, s37\nv_cndmask_b32 v4, v5, v4, vcc\nv_add_u32 v18, v2, v4\nv_mov_b32 v4, s38\nv_mov_b32 v5, s39\nv_cndmask_b32 v4, v5, v4, vcc\nv_add_u32 v19, v2, v4")
    for u in range(4): e(f"s_add_u32 s{36+u}, s{36+u}, s33")
    c1 = -2*math.log2(math.e)*math.sqrt(2/math.pi); c2 = c1*0.044715
    e(f"s_mov_b32 s46, {f2h(c2)}\ns_mov_b32 s47, {f2h(c2)}\ns_mov_b32 s48, {f2h(c1)}\ns_mov_b32 s49, {f2h(c1)}\nv_mov_b32 v8, s48\nv_mov_b32 v9, s48\ns_waitcnt lgkmcnt(0)")
    OUT = BF
    def gelu4(i, u, o, T):
        L = []; x = ac(i, u)
        for q in range(2): L.append(f"v_pk_fma_f32 v[{x+2*q}:{x+2*q+1}], v[{x+2*q}:{x+2*q+1}], v[{GR+(u&2)}:{GR+(u&2)+1}], v[{B1+4*i+2*q}:{B1+4*i+2*q+1}] op_sel:[0,{u&1},0] op_sel_hi:[1,{u&1},1]")
        for q in range(2): L.append(f"v_pk_mul_f32 v[{T+2*q}:{T+2*q+1}], v[{x+2*q}:{x+2*q+1}], v[{x+2*q}:{x+2*q+1}]")
        for q in range(2): L.append(f"v_pk_fma_f32 v[{T+2*q}:{T+2*q+1}], v[{T+2*q}:{T+2*q+1}], s[46:47], v[8:9]")
        for q in range(2): L.append(f"v_pk_mul_f32 v[{T+2*q}:{T+2*q+1}], v[{T+2*q}:{T+2*q+1}], v[{x+2*q}:{x+2*q+1}]")
        for r in range(4): L.append(f"v_exp_f32 v{T+r}, v{T+r}")
        for q in range(2): L.append(f"v_pk_add_f32 v[{T+2*q}:{T+2*q+1}], v[{T+2*q}:{T+2*q+1}], 1.0 op_sel_hi:[1,0]")
        for r in range(4): L.append(f"v_rcp_f32 v{T+r}, v{T+r}")
        for q in range(2): L.append(f"v_pk_mul_f32 v[{T+2*q}:{T+2*q+1}], v[{T+2*q}:{T+2*q+1}], v[{x+2*q}:{x+2*q+1}]")
        for q in range(2): L.append(f"v_cvt_pk_bf16_f32 v{o+q}, v{T+2*q}, v{T+2*q+1}")
        return L
    wl = iter(W2L[w2i:])
    L = []
    for u in range(4):
        o = OUT + 4*u
        L += gelu4(0, u, o, SG) + gelu4(1, u, o+2, SG+4)
        L += [f"v_or_b32 v{o}, 1, v{o}", f"buffer_store_dwordx4 {rng(o)}, v10, s[20:23], s{36+u} offen sc1"]
        if u % 2 == 1:
            o = OUT + 16 + 4*(u//2)
            L += gelu4(2, u-1, o, SG) + gelu4(2, u, o+2, SG+4)
            L += [f"v_permlane32_swap_b32 v{o}, v{o+2}", f"v_permlane32_swap_b32 v{o+1}, v{o+3}",
                  f"v_or_b32 v{o}, 1, v{o}", f"buffer_store_dwordx4 {rng(o)}, v{18+u//2}, s[20:23], s34 offen sc1"]
    e(bg(L, 12))
    for n in wl: e(n)
    st(a, 9)
    A2 = 120; BF2 = 204
    a2 = lambda u, dt: A2 + 20*u + 4*dt
    e("s_mul_i32 s32, s28, 20480\ns_sub_u32 s32, s32, 0x10000")
    for u in range(4): e(f"v_add_u32 v{14+u}, s32, v{14+u}")
    MB = 236
    bf2 = lambda b, u: BF2 + 16*b + 4*u
    br2 = lambda ki, b: [f"ds_read_b64_tr_b16 v[{bf2(b,u)+2*h}:{bf2(b,u)+2*h+1}], v{14+u} offset:{ki*4096 + h*2048}" for u in range(4) for h in range(2)]
    UB = ["v_mov_b32 v9, v252"]
    for q in [0, 1, 2, 3, 4, 5, 9, 8, 7, 6]:
        lo, hi = f"v_lshlrev_b32 v{MB+2*q}, 16, v{242+q}", f"v_and_b32 v{MB+2*q+1}, 0xffff0000, v{242+q}"
        UB += ([lo, hi] if q <= 5 else [hi, lo]) + [f"v_add_f32 v{MB+2*q}, v9, v{MB+2*q}", f"v_add_f32 v{MB+2*q+1}, v9, v{MB+2*q+1}"]
    e(br2(0, 0))
    for ki in range(5):
        M = [f"{MF} {rng(a2(u,dt))}, {rng(ph(ki,dt))}, {rng(bf2(ki%2,u))}, {'0' if ki == 0 else rng(a2(u,dt))}" for u in range(4) for dt in range(5)]
        e("s_waitcnt lgkmcnt(0)")
        e(weave(M, (br2(ki+1, 1-ki%2) if ki < 4 else []) + (UB[:21] if ki == 0 else UB[21:] if ki == 1 else []), 0, 1, 2))
    e(f"s_mov_b32 s46, {f2h(2/640)}\ns_mov_b32 s47, {f2h(2/640)}")
    for q in range(40): e(f"v_pk_mul_f32 v[{A2+2*q}:{A2+2*q+1}], v[{A2+2*q}:{A2+2*q+1}], s[46:47]")
    st(a, 10)
    GB = 20
    gb = lambda b, ks: GB + 48*b + 4*ks
    e(f"""s_lshl_b32 s32, s29, 3
s_lshl_b32 s33, s28, 1
s_add_u32 s32, s32, s33
s_mul_i32 s32, s32, 24576
s_add_u32 s32, s32, {G}
v_add_u32 v11, 4096, v10
v_add_u32 v12, 24576, v10
v_add_u32 v13, 28672, v10""")
    for u in range(4): e(f"s_mul_i32 s{36+u}, s{40+u}, 6144\ns_add_u32 s{36+u}, s{36+u}, s32")
    def gload(u, b):
        L = []
        for ks in range(12):
            k6 = ks % 6
            L.append(f"buffer_load_dwordx4 {rng(gb(b,ks))}, v{10 + 2*(ks//6) + k6//4}, s[20:23], s{36+u} offen offset:{(k6%4)*1024} sc1" + (f" #g{u}" if ks == 11 else ""))
        return L
    def gcheck(b):
        L = [f"v_bitop3_b32 v2, v{gb(b,0)}, v{gb(b,1)}, v{gb(b,2)} bitop3:0x80"]
        for q in range(4): L.append(f"v_bitop3_b32 v2, v2, v{gb(b,3+2*q)}, v{gb(b,4+2*q)} bitop3:0x80")
        return L + [f"v_bitop3_b32 v2, v2, v{gb(b,11)}, 1 bitop3:0x80", "v_cmp_eq_u32 vcc, 0, v2"]
    for u in range(1, 4): e(f"s_mul_i32 s33, s{40+u}, 15360\ns_add_u32 s33, s33, {RG + (u-1)*5120}\nv_add_u32 v{13+u}, s33, v10")
    e(f"s_mul_i32 s33, s28, 15360\ns_add_u32 s33, s33, {RG}\nv_add_u32 v17, s33, v10")
    e("k2_poll1:")
    e(gload(1, 0)); e("s_sub_u32 s50, s50, 1\ns_cbranch_scc1 k2_fail\ns_waitcnt vmcnt(0)"); e(gcheck(0)); e("s_cbranch_vccnz k2_poll1")
    st(a, 11)
    order = [1, 2, 3, 0]
    e(gload(2, 1))
    PS = 204
    for n, u in enumerate(order):
        b = n % 2
        M = [f"{MF} {rng(a2(u,dt))}, {arng(20*ks+4*dt)}, {rng(gb(b,ks))}, {rng(a2(u,dt))}" for ks in range(12) for dt in range(5)]
        first, second = [], []
        if n >= 1:
            pu = order[n-1]
            first += [f"ds_write_b128 v{13+pu}, {rng(a2(pu,dt))} offset:{dt*1024}" for dt in range(5)]
            if n + 1 < 4: first += gload(order[n+1], 1-b)
        if n == 3:
            first += ["s_waitcnt lgkmcnt(0)", "s_barrier"]
            for sidx in range(3):
                first += [f"ds_read_b128 {rng(PS+4*dt)}, v17 offset:{sidx*5120 + dt*1024}" for dt in range(5)]
                first += ["s_nop 0"]*3 + ["s_waitcnt lgkmcnt(0)"] + [f"v_add_f32 v{MB+q}, v{MB+q}, v{PS+q}" for q in range(20)]
        if n + 1 < 4:
            nu = order[n+1]
            second += [f"@vm g{nu}"] + gcheck(1-b) + retry_block(f"g{nu}", gload(nu, 1-b), gcheck(1-b))
        if n < 3:
            e(weave(M[:50], first, 2, 2, 1)); e(weave(M[50:], second, 0, 1, 1))
        else:
            e(weave(M, first, 2, 1, 2))
    e(f"""s_lshr_b32 s32, s29, 2
s_lshl_b32 s32, s32, 8
s_and_b32 s33, s29, 3
s_lshl_b32 s33, s33, 3
s_add_u32 s32, s32, s33
s_lshl_b32 s33, s28, 6
s_add_u32 s32, s32, s33
v_bfe_u32 v2, v{vL}, 3, 1
v_and_b32 v3, 7, v{vL}
v_lshl_add_u32 v2, v2, 5, v3
v_add_u32 v2, s32, v2
v_mul_u32_u24 v2, 1280, v2
v_lshrrev_b32 v3, 4, v{vL}
v_lshl_add_u32 v4, v3, 4, v2
v_lshl_add_u32 v5, v3, 3, v2
s_mul_i32 s32, s30, 160""")
    for q in range(10):
        e(f"v_pk_add_f32 v[{A2+2*q}:{A2+2*q+1}], v[{A2+2*q}:{A2+2*q+1}], v[{MB+2*q}:{MB+2*q+1}]\nv_cvt_pk_bf16_f32 v{PS+q}, v{A2+2*q}, v{A2+2*q+1}")
        if q == 3: e(f"buffer_store_dwordx4 {rng(PS)}, v4, s[16:19], s32 offen")
        if q == 7: e(f"buffer_store_dwordx4 {rng(PS+4)}, v4, s[16:19], s32 offen offset:64")
    e(f"buffer_store_dwordx2 v[{PS+8}:{PS+9}], v5, s[16:19], s32 offen offset:128")
    e("k2_fail:")
    st.flush(a, 14, 28, koff=65536)
    e("k2_exit:\ns_endpgm")
    for tag, loads, check in retries:
        a(f"k2_rt_{tag}:")
        for x in loads: a(x.split(" #")[0])
        a("s_sub_u32 s50, s50, 1\ns_cbranch_scc1 k2_fail\ns_waitcnt vmcnt(0)")
        for x in check: a(x)
        a(f"s_cbranch_vccnz k2_rt_{tag}\ns_branch k2_ok_{tag}")
    return a
```

```python
from build import *
from k1 import *
from k2 import build_k2, K2_LDS
import sys
make([("k1_kernel", build_k1("k1"), 256, 256, 96, 256, K1_LDS), ("k2_kernel", build_k2("k2"), 512, 256, 96, 256, K2_LDS)], "v2.s")
make([("k1_kernel", build_k1("k1", diag=True), 256, 256, 96, 256, K1_LDS), ("k2_kernel", build_k2("k2", diag=True), 512, 256, 96, 256, K2_LDS)], "v2d.s")
```

```python
from build import *
from k1 import *
from k2 import build_k2, K2_LDS
def empty():
    a = Asm(); a("s_endpgm"); return a
K1 = lambda **k: ("k1_kernel", build_k1("k1", **k), 256, 256, 96, 256, K1_LDS)
K2 = lambda **k: ("k2_kernel", build_k2("k2", **k), 512, 256, 96, 256, K2_LDS)
E = lambda: ("e_kernel", empty(), 8, 8, 16, 256, 0)
make([K1(), K2()], "a0.s")
make([K1(), K2(), E()], "a1.s")
make([K1(), K2(), E(), E(), E()], "a2.s")
make([E(), K1(), K2()], "a3.s")
make([K1(ldflag="nt"), K2()], "a4.s")
make([K1(), K1(), K2()], "a5.s")
```

```python
from build import *
from k1 import *
from k2 import build_k2, K2_LDS
def empty():
    a = Asm(); a("s_endpgm"); return a
K1 = lambda **k: ("k1_kernel", build_k1("k1", **k), 256, 256, 96, 256, K1_LDS)
K2 = lambda **k: ("k2_kernel", build_k2("k2", **k), 512, 256, 96, 256, K2_LDS)
E = lambda: ("e_kernel", empty(), 8, 8, 16, 256, 0)
make([K1(), K2()], "a0.s")
make([K1(), K2(), K1(), K2()], "a1.s")
make([K1(stflag="sc1"), K2()], "a2.s")
make([K1(stflag="nt"), K2()], "a3.s")
make([K1(stflag="sc0 sc1"), K2()], "a4.s")
make([K1(stflag="sc1", ldflag="nt"), K2()], "a5.s")
```

```python
from asmlib import *
from layout import *

K1_LDS = 122880
SIDE = 81920

def srd(a, d, base, size):
    a(f"s_mov_b32 s{d}, s{base}\ns_and_b32 s{d+1}, s{base+1}, 0xffff\ns_mov_b32 s{d+2}, {size}\ns_mov_b32 s{d+3}, 0x20000")

vTID, vL = 0, 1
vT = 2
vADR = 10
PHI = 20
FR = 100
ACC = 148
P = lambda i: PHI + 8*i
Q = lambda i: PHI + 8*i + 4
rng = lambda b, n=4: f"v[{b}:{b+n-1}]"

def phi_gen():
    L = []
    L += ["s_lshl_b32 s31, s30, 6", "s_add_u32 s31, s31, s28", "s_add_u32 s31, s31, 1",
          f"v_and_b32 v2, 15, v{vL}", "v_lshl_add_u32 v2, v2, 2, s31", "v_cvt_f32_u32 v2, v2",
          f"v_mul_f32 v2, {f2h(1/640)}, v2",
          f"v_lshrrev_b32 v3, 4, v{vL}", "v_lshlrev_b32 v3, 3, v3", "v_cvt_f32_u32 v3, v3", "v_mul_f32 v3, v3, v2"]
    for i in range(5):
        for jp in range(4):
            j = 2*jp
            L += [f"v_fmamk_f32 v4, v2, {f2h(32*i+j)}, v3", f"v_fmamk_f32 v5, v2, {f2h(32*i+j+1)}, v3",
                  "v_cos_f32 v6, v4", "v_cos_f32 v7, v5", "v_sin_f32_e64 v8, -v4", "v_sin_f32_e64 v9, -v5",
                  f"v_cvt_pk_bf16_f32 v{P(i)+jp}, v6, v7", f"v_cvt_pk_bf16_f32 v{Q(i)+jp}, v8, v9"]
    return L

def phi_fix(a, tag):
    a(f"s_cmp_eq_u32 s31, 260\ns_cbranch_scc0 {tag}_nofix")
    a(f"v_and_b32 v2, 15, v{vL}\nv_cmp_eq_u32 vcc, 15, v2\nv_mov_b32 v3, 0xbf353f35\nv_mov_b32 v4, 0")
    for i in range(5):
        for jp in range(4):
            a(f"v_cndmask_b32 v{P(i)+jp}, v{P(i)+jp}, v3, vcc\nv_cndmask_b32 v{Q(i)+jp}, v{Q(i)+jp}, v4, vcc")
    a(f"{tag}_nofix:")
    a("""s_add_u32 s32, s28, 1
s_and_b32 s32, s32, 2
s_cmp_lg_u32 s32, 0
s_cselect_b32 s33, 0x80008000, 0
s_cmp_lt_u32 s28, 2
s_cselect_b32 s34, 0x80008000, 0
s_bitcmp1_b32 s28, 0
s_cselect_b32 s35, 1.0, -1.0""")
    a(f"s_cbranch_scc1 {tag}_keep")
    for i in range(5):
        for jp in range(4):
            a(f"v_xor_b32 v{P(5+i)+jp}, s33, v{Q(i)+jp}\nv_xor_b32 v{Q(5+i)+jp}, s34, v{P(i)+jp}")
    a(f"s_branch {tag}_shifted\n{tag}_keep:")
    for i in range(5):
        for jp in range(4):
            a(f"v_xor_b32 v{P(5+i)+jp}, s33, v{P(i)+jp}\nv_xor_b32 v{Q(5+i)+jp}, s34, v{Q(i)+jp}")
    a(f"{tag}_shifted:")

def div12(a, dst_row, dst_pc, e):
    a(f"""v_add_u32 v{dst_pc}, {64*e}, v{vL}
v_mul_u32_u24 v{dst_row}, 5462, v{dst_pc}
v_lshrrev_b32 v{dst_row}, 16, v{dst_row}
v_mul_u32_u24 v9, 12, v{dst_row}
v_sub_u32 v{dst_pc}, v{dst_pc}, v9""")

def w2f_setup(a):
    for e in range(3):
        div12(a, 2, 3, e)
        a(f"v_mul_u32_u24 v2, 1280, v2\nv_lshl_add_u32 v{10+e}, v3, 4, v2")

def w2f_dma(sU, ldsbase):
    L = [f"s_lshr_b32 s36, s{sU}, 3", f"s_and_b32 s37, s{sU}, 7",
         "s_mul_i32 s36, s36, 192", "s_mul_i32 s39, s28, 48", "s_add_u32 s36, s36, s39", "s_mul_i32 s36, s36, 1280",
         "s_mul_i32 s37, s37, 160", "s_and_b32 s38, s37, 63", "s_sub_u32 s37, s37, s38", "s_add_u32 s36, s36, s37",
         "s_mul_i32 s39, s28, 9216", f"s_add_u32 s39, s39, {ldsbase}"]
    for blk in range(3):
        for e in range(3):
            L += [f"s_add_u32 m0, s39, {(3*blk+e)*1024}", f"buffer_load_dwordx4 v{10+e}, s[24:27], s36 offen lds"]
        if blk < 2: L += [f"s_add_u32 s36, s36, {16*1280}"]
    return L

def w2f_proc(a, sU, ldsbase, R):
    a(f"""s_and_b32 s37, s{sU}, 7
s_mul_i32 s38, s37, 160
s_and_b32 s38, s38, 63
s_mul_i32 s39, s28, 9216
s_add_u32 s39, s39, {ldsbase}
s_add_u32 s39, s39, s38
v_lshrrev_b32 v2, 2, v{vL}
v_mul_u32_u24 v3, 192, v2
v_and_b32 v4, 3, v{vL}
v_add_u32 v3, s39, v3
v_lshl_add_u32 v13, v4, 4, v3
v_lshl_add_u32 v14, v4, 3, v3
v_and_b32 v2, 7, v2
v_mul_u32_u24 v3, 192, v2
v_add_u32 v3, s39, v3
v_lshrrev_b32 v5, 5, v{vL}
v_lshl_add_u32 v15, v4, 4, v3
v_lshl_add_u32 v15, v5, 3, v15
v_lshl_add_u32 v16, v4, 3, v3""")
    for dt in range(5):
        for h in range(2):
            if dt < 4: a(f"ds_read_b64_tr_b16 v[{R+4*dt+2*h}:{R+4*dt+2*h+1}], v13 offset:{h*16*192 + 64*(dt//2) + 8*(dt%2)}")
            else: a(f"ds_read_b64_tr_b16 v[{R+4*dt+2*h}:{R+4*dt+2*h+1}], v14 offset:{h*16*192 + 128}")
    a("s_waitcnt lgkmcnt(8)")
    for pi in range(3):
        for h in range(2):
            r = R + 20 + 4*pi + 2*h
            if pi < 2: a(f"ds_read_b64_tr_b16 v[{r}:{r+1}], v15 offset:{32*192 + h*8*192 + 64*pi}")
            else: a(f"ds_read_b64_tr_b16 v[{r}:{r+1}], v16 offset:{32*192 + h*8*192 + 128}")
    a(f"""s_lshr_b32 s36, s{sU}, 3
s_mul_i32 s36, s36, 6
s_mul_i32 s37, s37, 48
s_add_u32 s36, s36, s37
s_add_u32 s37, s36, s28
s_mul_i32 s37, s37, 5120
s_add_u32 s37, s37, {W2F}
s_lshr_b32 s38, s28, 1
s_add_u32 s36, s36, s38
s_add_u32 s36, s36, 4
s_mul_i32 s36, s36, 5120
s_add_u32 s36, s36, {W2F}
s_and_b32 s38, s28, 1
s_lshl_b32 s38, s38, 9
s_add_u32 s36, s36, s38
v_lshlrev_b32 v2, 4, v{vL}
v_and_b32 v3, 31, v{vL}
v_lshlrev_b32 v3, 4, v3
v_lshl_add_u32 v4, v5, 10, v3
v_add_u32 v6, 4096, v2
v_add_u32 v7, 4096, v3""")
    for dt in range(5):
        a(f"s_waitcnt lgkmcnt({14-2*dt})")
        if dt < 4: a(f"buffer_store_dwordx4 {rng(R+4*dt)}, v2, s[20:23], s37 offen offset:{dt*1024}")
        else: a(f"buffer_store_dwordx4 {rng(R+4*dt)}, v6, s[20:23], s37 offen")
    for pi in range(3):
        a(f"s_waitcnt lgkmcnt({4-2*pi})")
        if pi < 2: a(f"buffer_store_dwordx4 {rng(R+20+4*pi)}, v4, s[20:23], s36 offen offset:{pi*2048}")
        else: a(f"buffer_store_dwordx4 {rng(R+20+4*pi)}, v7, s[20:23], s36 offen")

STEPS = [s for u in range(5) for s in (2*u, 2*u+10, 2*u+1, 2*u+11)]

def kloop(a, nfr, reads, mfmas, vm, stp):
    a(f"s_waitcnt vmcnt({vm(0)})\ns_barrier")
    stp(a, 5)
    for x in reads(STEPS[0], 0): a(x)
    seen = set()
    for n, st in enumerate(STEPS):
        first = (st // 10) not in seen; seen.add(st // 10)
        M = mfmas(st, n % 2, first)
        a("s_waitcnt lgkmcnt(0)")
        if n + 1 < 20:
            Rd = reads(STEPS[n+1], (n+1) % 2)
            if (n + 1) % 4 == 0:
                for x in M[:2]: a(x)
                a(f"s_waitcnt vmcnt({vm((n+1)//4)})\ns_barrier")
                stp(a, 5 + (n+1)//4)
                for x in weave(M[2:], Rd, 0, 1, 2 if len(Rd) > len(M)-2 else 1): a(x)
            else:
                for x in weave(M, Rd, 0, 1, 2 if len(Rd) > len(M) else 1): a(x)
        else:
            for x in M: a(x)

def build_k1(name, ldflag="", k2_code=None, diag=False, stflag="", drop=(), wsoff=0, extra=0):
    a = Asm()
    st = Stamps(diag)
    st.start(a)
    a(f"""s_cmp_ge_u32 s2, 256
s_cbranch_scc1 k1_exit
s_load_dwordx4 s[4:7], s[0:1], 0
s_load_dwordx2 s[8:9], s[0:1], 16
s_load_dwordx2 s[10:11], s[0:1], 32
s_load_dwordx2 s[12:13], s[0:1], 48
s_load_dwordx2 s[14:15], s[0:1], 80
v_lshrrev_b32 v2, 6, v0
v_and_b32 v{vL}, 63, v0
v_readfirstlane_b32 s28, v2
v_mov_b32 v4, 0
v_mov_b32 v5, 0
v_mov_b32 v6, 0
v_mov_b32 v7, 0
v_lshlrev_b32 v3, 4, v0
s_lshl_b32 s31, s2, 12
s_add_u32 s31, s31, {GTAIL}
s_waitcnt lgkmcnt(0)""")
    if wsoff: a(f"s_add_u32 s14, s14, {wsoff}\ns_addc_u32 s15, s15, 0")
    srd(a, 16, 4, 2621440); srd(a, 20, 14, WSEND + 0x800000)
    if extra:
        a(f"s_mul_i32 s32, s2, {extra*4096}\ns_add_u32 s32, s32, {WSEND}")
        for i in range(extra): a("buffer_store_dwordx4 v[4:7], v3, s[20:23], s32 offen\ns_add_u32 s32, s32, 4096")
    st(a, 1)
    a("""s_cmp_ge_u32 s2, 240
s_cbranch_scc1 k1_spare
s_cmp_ge_u32 s2, 160
s_cbranch_scc1 k1_w""")
    a("""s_and_b32 s29, s2, 7
s_lshl_b32 s29, s29, 2
s_bfe_u32 s32, s2, 0x20003
s_add_u32 s29, s29, s32
s_lshr_b32 s30, s2, 5
s_cmp_ge_u32 s2, 128
s_cbranch_scc1 k1_x_side2""")
    a("""s_bitcmp1_b32 s2, 0
s_cselect_b32 s24, s8, s6
s_cselect_b32 s25, s9, s7
s_and_b32 s25, s25, 0xffff
s_mov_b32 s26, 1314816
s_mov_b32 s27, 0x20000
s_bfe_u32 s36, s2, 0x30001
s_lshl_b32 s36, s36, 3
s_lshr_b32 s37, s2, 4
s_lshl_b32 s37, s37, 8
s_add_u32 s36, s36, s37
s_lshl_b32 s37, s28, 6
s_add_u32 s36, s36, s37
s_mul_i32 s36, s36, 642
s_mul_i32 s39, s28, 6144""")
    a(f"s_add_u32 s39, s39, {SIDE}\nv_lshlrev_b32 v10, 4, v{vL}")
    for e in range(6):
        a(f"s_add_u32 m0, s39, {e*1024}\ns_nop 0\nbuffer_load_dwordx4 v10, s[24:27], s36 offen {ldflag} lds\ns_add_u32 s36, s36, 1024")
    a("buffer_store_dwordx4 v[4:7], v3, s[20:23], s31 offen\ns_branch k1_x_main\nk1_x_side2:")
    srd(a, 24, 12, 1966080)
    a("buffer_store_dwordx4 v[4:7], v3, s[20:23], s31 offen\ns_sub_u32 s40, s2, 128")
    w2f_setup(a)
    for x in w2f_dma(40, SIDE): a(x.replace("offen lds", f"offen {ldflag} lds"))
    a("k1_x_main:")
    a(f"""s_lshr_b32 s32, s29, 2
s_lshl_b32 s32, s32, 8
s_and_b32 s33, s29, 3
s_lshl_b32 s33, s33, 3
s_add_u32 s32, s32, s33
s_lshl_b32 s33, s28, 5
s_add_u32 s32, s32, s33
v_lshrrev_b32 v2, 3, v{vL}
v_add_u32 v2, s32, v2
v_mul_u32_u24 v2, 1280, v2
v_bfe_u32 v3, v{vL}, 4, 1
s_lshl_b32 s33, s28, 1
v_or_b32 v3, s33, v3
v_and_b32 v4, 7, v{vL}
v_xor_b32 v3, v3, v4
v_lshl_add_u32 v17, v3, 4, v2
s_lshl_b32 s41, s28, 10""")
    D = []
    for c in range(5):
        for u in (c, c+5):
            for hi in range(2):
                D.append([f"s_add_u32 m0, s41, {(8*u+4*hi)*1024}", f"s_mov_b32 s42, {128*u + hi*163840}",
                          f"buffer_load_dwordx4 v17, s[16:19], s42 offen {ldflag} lds"])
    Gn = phi_gen()
    for d in D[:6]:
        for x in d: a(x)
    k = 6
    for i, x in enumerate(Gn):
        a(x)
        if i >= 11 and (i - 11) % 10 == 9 and k < 20:
            for y in D[k]: a(y)
            k += 1
    assert k == 20, k
    st(a, 2)
    phi_fix(a, "k1x")
    st(a, 3)
    a("s_cmp_ge_u32 s2, 128\ns_cbranch_scc1 k1_x_side2p")
    for i in range(40): a(f"v_mov_b32 v{ACC+i}, 0")
    a(f"""v_and_b32 v2, 7, v0
v_mul_u32_u24 v3, 642, v2
v_bfe_u32 v4, v0, 3, 2
v_bfe_u32 v5, v0, 5, 2
v_lshl_add_u32 v4, v4, 2, v5
v_lshrrev_b32 v5, 7, v0
v_lshl_add_u32 v6, v4, 2, v5
v_lshl_add_u32 v3, v6, 1, v3
v_add_u32 v10, {SIDE+2}, v3
v_lshl_add_u32 v4, v5, 4, v4
v_lshlrev_b32 v4, 14, v4
v_lshl_add_u32 v11, v2, 4, v4
s_bfe_u32 s36, s2, 0x30001
s_lshr_b32 s37, s36, 1
s_lshl_b32 s37, s37, 12
s_and_b32 s36, s36, 1
s_lshl_b32 s36, s36, 7
s_add_u32 s36, s36, s37
s_and_b32 s37, s2, 1
s_lshl_b32 s37, s37, 11
s_add_u32 s36, s36, s37
s_bfe_u32 s37, s2, 0x10004
s_lshl_b32 s37, s37, 10
s_add_u32 s36, s36, s37
s_lshr_b32 s37, s2, 5
s_lshl_b32 s37, s37, 8
s_add_u32 s36, s36, s37
s_add_u32 s36, s36, {WT}
s_waitcnt vmcnt(20)
s_barrier""")
    for v in range(10):
        for r in range(4):
            a(f"ds_read_u16_d16_hi v{ACC+4*v+r}, v10 offset:{r*6144 + 128*(v//2) + 4*(v%2)}")
        if v >= 2:
            a(f"s_waitcnt lgkmcnt(8)\nbuffer_store_dwordx4 {rng(ACC+4*(v-2))}, v11, s[20:23], s36 offen\ns_add_u32 s36, s36, {32*16384}")
    for v in (8, 9):
        a(f"s_waitcnt lgkmcnt({4*(9-v)})\nbuffer_store_dwordx4 {rng(ACC+4*v)}, v11, s[20:23], s36 offen\ns_add_u32 s36, s36, {32*16384}")
    a("s_branch k1_x_loop\nk1_x_side2p:\ns_waitcnt vmcnt(20)")
    w2f_proc(a, 40, SIDE, ACC)
    a("k1_x_loop:")
    st(a, 4)
    a(f"""v_and_b32 v2, 15, v{vL}
v_lshrrev_b32 v3, 2, v2
v_and_b32 v4, 3, v2
v_lshlrev_b32 v5, 10, v3
v_lshl_add_u32 v5, v4, 7, v5
v_lshrrev_b32 v4, 1, v4
v_lshl_or_b32 v3, v3, 1, v4
v_lshrrev_b32 v4, 4, v{vL}
v_xor_b32 v3, v3, v4
v_lshl_add_u32 v10, v3, 4, v5
v_xor_b32 v11, 64, v10
v_add_u32 v12, 40960, v10
v_add_u32 v13, 40960, v11""")
    def xreads(st, buf):
        u = st // 2
        ad = 10 + (st % 2) + (2 if u >= 5 else 0)
        return [f"ds_read_b128 {rng(FR+16*buf+4*t)}, v{ad} offset:{(u%5)*8192 + (t//2)*4096 + (t%2)*512}" for t in range(4)]
    xacc = lambda s, t, p: ACC + 32*s + 8*t + 4*p
    def xm(st, buf, first):
        L = []
        for t in range(4):
            for p in range(2):
                d = rng(xacc(st//10, t, p)); b = P(st%10) if p == 0 else Q(st%10)
                L.append(f"v_mfma_f32_16x16x32_bf16 {d}, {rng(FR+16*buf+4*t)}, {rng(b)}, {'0' if first else d}")
        return L
    kloop(a, 4, xreads, xm, lambda c: 16 - 4*c + 8, st)
    st(a, 10)
    a(f"""s_mul_i32 s36, s29, 81920
s_lshl_b32 s37, s30, 2
s_add_u32 s37, s37, s28
s_lshl_b32 s37, s37, 12
s_add_u32 s36, s36, s37
v_and_b32 v2, 15, v{vL}
v_lshrrev_b32 v3, 4, v{vL}
v_lshlrev_b32 v3, 4, v3
v_lshl_add_u32 v14, v2, 7, v3""")
    for p in range(2):
        for h in range(2):
            o = FR + 8*p + 4*h
            for tt_ in range(2):
                t = 2*h + tt_
                for r in range(4): a(f"v_fma_f32 v{xacc(0,t,p)+r}, v{xacc(1,t,p)+r}, s35, v{xacc(0,t,p)+r}")
                for rp in range(2): a(f"v_cvt_pk_bf16_f32 v{o+2*tt_+rp}, v{xacc(0,t,p)+2*rp}, v{xacc(0,t,p)+2*rp+1}")
            a(f"v_and_b32 v{o}, -2, v{o}\nbuffer_store_dwordx4 {rng(o)}, v14, s[20:23], s36 offen offset:{p*2048 + h*64}")
    a(f"""s_cmp_ge_u32 s30, 4
s_cbranch_scc1 k1_end
s_lshl_b32 s36, s30, 1
s_lshr_b32 s37, s28, 1
s_add_u32 s36, s36, s37
s_and_b32 s37, s28, 1
s_lshl_b32 s37, s37, 2
v_lshrrev_b32 v2, 4, v{vL}
v_add_u32 v2, s37, v2
s_and_b32 s38, s36, 3
s_lshl_b32 s38, s38, 1
v_bfe_u32 v3, v2, 1, 1
v_or_b32 v3, s38, v3
v_and_b32 v4, 7, v{vL}
v_xor_b32 v3, v3, v4
v_lshlrev_b32 v3, 4, v3
v_lshl_add_u32 v3, v2, 7, v3
v_bfe_u32 v4, v{vL}, 3, 1
v_lshl_add_u32 v3, v4, 13, v3
s_lshl_b32 s38, s36, 10
v_add_u32 v10, s38, v3
v_add_u32 v11, 0x8000, v10""")
    S = FR + 16
    for v in range(5):
        a(f"ds_read_b128 {rng(S+4*v)}, v{10 if v < 2 else 11} offset:{(v if v < 2 else v-2)*16384}")
    a("v_mov_b32 v4, 0\nv_mov_b32 v5, 0\ns_mov_b32 s38, 0x3f803f80\ns_waitcnt lgkmcnt(0)")
    for i in range(20): a(f"v_dot2_f32_bf16 v4, v{S+i}, v{S+i}, v4")
    for i in range(20): a(f"v_dot2_f32_bf16 v5, v{S+i}, s38, v5")
    for sh in (8, 4, 2, 1):
        a(f"v_add_f32_dpp v4, v4, v4 row_ror:{sh} row_mask:0xf bank_mask:0xf\nv_add_f32_dpp v5, v5, v5 row_ror:{sh} row_mask:0xf bank_mask:0xf")
    a(f"""v_mul_f32 v5, {f2h(1/640)}, v5
v_mul_f32 v4, {f2h(1/640)}, v4
v_fma_f32 v4, -v5, v5, v4
v_max_f32 v4, 0, v4
v_add_f32 v4, {f2h(EPS)}, v4
v_rsq_f32 v4, v4
s_lshl_b32 s37, s29, 7
s_lshl_b32 s38, s36, 4
s_add_u32 s37, s37, s38
s_add_u32 s37, s37, {RB}
v_mul_f32 v4, {f2h(2.0**-11)}, v4
v_and_b32 v6, 3, v2
v_lshlrev_b32 v6, 2, v6
v_lshrrev_b32 v7, 2, v2
v_lshl_add_u32 v6, v7, 12, v6
s_lshl_b32 s38, s29, 8
s_lshl_b32 s39, s36, 5
s_add_u32 s38, s38, s39
s_add_u32 s38, s38, {MU}
v_lshlrev_b32 v7, 2, v2
v_and_b32 v8, 15, v{vL}
v_cmp_eq_u32 vcc, 0, v8
s_and_saveexec_b64 s[42:43], vcc
buffer_store_dword v4, v6, s[20:23], s37 offen
buffer_store_dword v5, v7, s[20:23], s38 offen
s_branch k1_end""")
    a("k1_w:")
    srd(a, 24, 10, 1966080)
    a("""buffer_store_dwordx4 v[4:7], v3, s[20:23], s31 offen
s_sub_u32 s32, s2, 160
s_and_b32 s29, s32, 7
s_lshl_b32 s29, s29, 1
s_bfe_u32 s33, s32, 0x10003
s_add_u32 s29, s29, s33
s_lshr_b32 s30, s32, 4""")
    for e in range(3):
        div12(a, 2, 3, e)
        a(f"v_bfe_u32 v4, v2, 3, 1\nv_lshlrev_b32 v4, 1, v4\nv_xor_b32 v3, v3, v4\nv_mul_u32_u24 v2, 3072, v2\nv_lshl_add_u32 v{14+e}, v3, 4, v2")
    a("""s_lshr_b32 s32, s28, 1
s_and_b32 s33, s28, 1
s_mul_i32 s33, s33, 10
s_add_u32 s32, s32, s33
s_mul_i32 s41, s32, 6144
s_mul_i32 s42, s32, 98304
s_mul_i32 s33, s29, 192
s_add_u32 s42, s42, s33""")
    D = []
    for c in range(5):
        for hf in range(2):
            for e in range(3):
                d = [f"s_add_u32 m0, s41, {c*12288 + (3*hf+e)*1024}"]
                if e == 0: d.append(f"s_add_u32 s43, s42, {c*196608 + hf*49152}")
                else: d.append("s_nop 0")
                d.append(f"buffer_load_dwordx4 v{14+e}, s[24:27], s43 offen {ldflag} lds")
                D.append(d)
    for d in D[:10]:
        for x in d: a(x)
    k = 10
    for i, x in enumerate(Gn):
        a(x)
        if i >= 11 and (i - 11) % 8 == 7 and k < 30:
            for y in D[k]: a(y)
            k += 1
    assert k == 30, k
    st(a, 2)
    phi_fix(a, "k1w")
    st(a, 3)
    a(f"""v_lshrrev_b32 v2, 4, v{vL}
v_bfe_u32 v3, v{vL}, 2, 2
v_lshl_add_u32 v3, v2, 3, v3
v_mul_u32_u24 v3, 192, v3
v_and_b32 v4, 3, v{vL}
v_lshl_add_u32 v3, v4, 3, v3
v_and_b32 v2, 1, v2
v_lshlrev_b32 v2, 5, v2
v_add_u32 v10, v3, v2
v_sub_u32 v11, v3, v2
v_add_u32 v11, 32, v11
v_add_u32 v12, 61440, v10
v_add_u32 v13, 61440, v11""")
    def wreads(st, buf):
        L = []
        for ft in range(6):
            for h in range(2):
                ad = 10 + (ft % 2) + (2 if st >= 10 else 0)
                r = FR + 24*buf + 4*ft + 2*h
                L.append(f"ds_read_b64_tr_b16 v[{r}:{r+1}], v{ad} offset:{(st%10)*6144 + h*768 + 64*(ft//2)}")
        return L
    wacc = lambda s, ft, p: ACC + 48*s + 8*ft + 4*p
    def wm(st, buf, first):
        L = []
        for ft in range(6):
            for p in range(2):
                d = rng(wacc(st//10, ft, p)); b = P(st%10) if p == 0 else Q(st%10)
                L.append(f"v_mfma_f32_16x16x32_bf16 {d}, {rng(b)}, {rng(FR+24*buf+4*ft)}, {'0' if first else d}")
        return L
    kloop(a, 6, wreads, wm, lambda c: 24 - 6*c, st)
    st(a, 10)
    a(f"""s_mul_i32 s36, s29, {6*20*1024}
s_lshl_b32 s37, s30, 2
s_add_u32 s37, s37, s28
s_lshl_b32 s37, s37, 10
s_add_u32 s36, s36, s37
s_add_u32 s36, s36, {W1F}
v_lshlrev_b32 v14, 4, v{vL}""")
    for ft in range(6):
        o = FR + 4*ft
        for p in range(2):
            for r in range(4): a(f"v_fma_f32 v{wacc(0,ft,p)+r}, v{wacc(1,ft,p)+r}, s35, v{wacc(0,ft,p)+r}")
            for rp in range(2): a(f"v_cvt_pk_bf16_f32 v{o+2*p+rp}, v{wacc(0,ft,p)+2*rp}, v{wacc(0,ft,p)+2*rp+1}")
        a(f"buffer_store_dwordx4 {rng(o)}, v14, s[20:23], s36 offen\ns_add_u32 s36, s36, 20480")
    a("s_branch k1_end")
    a("k1_spare:")
    srd(a, 24, 12, 1966080)
    a("buffer_store_dwordx4 v[4:7], v3, s[20:23], s31 offen\ns_sub_u32 s40, s2, 240\ns_lshl_b32 s40, s40, 1\ns_add_u32 s40, s40, 32\ns_add_u32 s44, s40, 1")
    w2f_setup(a)
    for x in w2f_dma(40, 0): a(x.replace("offen lds", f"offen {ldflag} lds"))
    for x in w2f_dma(44, 36864): a(x.replace("offen lds", f"offen {ldflag} lds"))
    a("s_waitcnt vmcnt(9)")
    w2f_proc(a, 40, 0, ACC)
    a("s_waitcnt vmcnt(8)")
    w2f_proc(a, 44, 36864, ACC+32)
    a("k1_end:")
    st(a, 11)
    st.flush(a, 14, 28)
    a("k1_exit:\ns_endpgm")
    for d in drop:
        a.items = [(k, "s_nop 0") if k == "i" and x.startswith("buffer_store") and d in x else (k, x) for k, x in a.items]
    if stflag:
        a.items = [(k, x + " " + stflag) if k == "i" and x.startswith("buffer_store") else (k, x) for k, x in a.items]
    return a
```

```python
from build import *
from k1 import *
from k2 import build_k2, K2_LDS
K1 = lambda **k: ("k1_kernel", build_k1("k1", **k), 256, 256, 96, 256, K1_LDS)
K2 = lambda **k: ("k2_kernel", build_k2("k2", **k), 512, 256, 96, 256, K2_LDS)
END = (256-22) << 20
MID = 128 << 20
make([K1(), K2()], "a0.s")
make([K1(wsoff=END), K2(wsoff=END)], "a1.s")
make([K1(wsoff=MID), K2(wsoff=MID)], "a2.s")
make([K1(extra=6), K2()], "a3.s")
make([K1(wsoff=END, extra=6), K2(wsoff=END)], "a4.s")
make([K1(wsoff=END, stflag="sc1"), K2(wsoff=END)], "a5.s")
```

```python
from asmlib import *
def build_k3(kind, mult=10, wsoff=0, word=None, lo=0, hi=256):
    a = Asm()
    a(f"""s_cmp_ge_u32 s2, 1
s_cbranch_scc1 k3_exit
s_load_dwordx2 s[14:15], s[0:1], 80
v_lshlrev_b32 v1, 8, v0
v_add_u32 v1, {0xE00000 + wsoff}, v1
v_add_u32 v2, 65536, v1
v_mov_b32 v10, 0
v_mov_b32 v11, -1
ds_write_b32 v10, v11
ds_write_b32 v10, v10 offset:4
ds_write_b32 v10, v11 offset:8
ds_write_b32 v10, v10 offset:12
ds_write_b32 v10, v10 offset:16
s_waitcnt lgkmcnt(0)
s_barrier""")
    for w in range(4):
        a(f"""global_load_dword v3, v1, s[14:15] offset:{64*w}
global_load_dword v4, v1, s[14:15] offset:{64*w+52}
global_load_dword v5, v2, s[14:15] offset:{64*w}
global_load_dword v6, v2, s[14:15] offset:{64*w+52}
s_waitcnt vmcnt(0)
ds_min_u32 v10, v3
ds_max_u32 v10, v4 offset:4
ds_min_u32 v10, v5 offset:8
ds_max_u32 v10, v6 offset:12""")
    if isinstance(kind, tuple):
        _, kn, word = kind
        a(f"""global_load_dword v3, v{1+kn}, s[14:15] offset:{4*word}
v_cmp_le_u32 vcc, {lo}, v0
v_cmp_gt_u32 s[20:21], {hi}, v0
s_and_b64 vcc, vcc, s[20:21]
s_waitcnt vmcnt(0)
v_cndmask_b32 v3, v10, v3, vcc
ds_add_u32 v10, v3 offset:16""".replace(f"v_cmp_gt_u32 s[20:21], {hi}, v0", f"s_movk_i32 s22, {hi}\nv_cmp_gt_u32 s[20:21], s22, v0").replace(f"v_cmp_le_u32 vcc, {lo}, v0", f"s_movk_i32 s23, {lo}\nv_cmp_le_u32 vcc, s23, v0"))
    a("""s_waitcnt lgkmcnt(0)
s_barrier
ds_read_b128 v[4:7], v10
ds_read_b32 v8, v10 offset:16
s_waitcnt lgkmcnt(0)
v_readfirstlane_b32 s4, v4
v_readfirstlane_b32 s5, v5
v_readfirstlane_b32 s6, v6
v_readfirstlane_b32 s7, v7""")
    if isinstance(kind, tuple):
        a(f"v_cvt_f32_u32 v8, v8\nv_mul_f32 v8, {f2h(1.0/(hi-lo)/10)}, v8\nv_cvt_u32_f32 v8, v8\ns_nop 1\nv_readfirstlane_b32 s8, v8\ns_nop 3")
    else:
        x, y = {"k1": (5, 4), "gap": (6, 5), "k2": (7, 6)}[kind]
        a(f"s_nop 3\ns_sub_u32 s8, s{x}, s{y}\ns_mul_i32 s8, s8, {mult}")
    a("""s_min_u32 s8, s8, 100000
s_memrealtime s[10:11]
s_waitcnt lgkmcnt(0)
k3_spin:
s_memrealtime s[12:13]
s_waitcnt lgkmcnt(0)
s_sub_u32 s9, s12, s10
s_cmp_lt_u32 s9, s8
s_cbranch_scc1 k3_spin
k3_exit:
s_endpgm""")
    return a
```

```python
from build import *
from k1 import *
from k2 import build_k2, K2_LDS
from k3diag import build_k3
K1 = lambda **k: ("k1_kernel", build_k1("k1", **k), 256, 256, 96, 256, K1_LDS)
K2 = lambda **k: ("k2_kernel", build_k2("k2", **k), 512, 256, 96, 256, K2_LDS)
K3 = lambda kind, **k: ("k3_kernel", build_k3(kind, **k), 16, 16, 32, 1, 64)
make([K1(diag=True), K2(diag=True), K3("k1", mult=0)], "a0.s")
make([K1(diag=True), K2(diag=True), K3("k1")], "a1.s")
make([K1(diag=True), K2(diag=True), K3("gap")], "a2.s")
make([K1(diag=True), K2(diag=True), K3("k2")], "a3.s")
make([K1(diag=True), K2(diag=True), K3(("w",0,2), lo=160, hi=240)], "a4.s")
make([K1(diag=True), K2(diag=True), K3(("w",1,12))], "a5.s")
```

```python
from asmlib import *
def build_k3(kind, mult=10, wsoff=0, word=None, lo=0, hi=256):
    a = Asm()
    a(f"""s_cmp_ge_u32 s2, 1
s_cbranch_scc1 k3_exit
s_load_dwordx2 s[14:15], s[0:1], 80
v_lshlrev_b32 v1, 8, v0
v_add_u32 v1, {0xE00000 + wsoff}, v1
v_add_u32 v2, 65536, v1
v_mov_b32 v10, 0
v_mov_b32 v11, -1
ds_write_b32 v10, v11
ds_write_b32 v10, v10 offset:4
ds_write_b32 v10, v11 offset:8
ds_write_b32 v10, v10 offset:12
ds_write_b32 v10, v10 offset:16
s_waitcnt lgkmcnt(0)
s_barrier""")
    for w in range(4):
        a(f"""global_load_dword v3, v1, s[14:15] offset:{64*w}
global_load_dword v4, v1, s[14:15] offset:{64*w+52}
global_load_dword v5, v2, s[14:15] offset:{64*w}
global_load_dword v6, v2, s[14:15] offset:{64*w+52}
s_waitcnt vmcnt(0)
ds_min_u32 v10, v3
ds_max_u32 v10, v4 offset:4
ds_min_u32 v10, v5 offset:8
ds_max_u32 v10, v6 offset:12""")
    if isinstance(kind, tuple):
        _, kn, word = kind
        a(f"""v_add_u32 v7, {kn*65536}, v1
global_load_dword v3, v7, s[14:15] offset:{4*word}
v_cmp_le_u32 vcc, {lo}, v0
v_cmp_gt_u32 s[20:21], {hi}, v0
s_and_b64 vcc, vcc, s[20:21]
s_waitcnt vmcnt(0)
v_cndmask_b32 v3, v10, v3, vcc
ds_add_u32 v10, v3 offset:16""".replace(f"v_cmp_gt_u32 s[20:21], {hi}, v0", f"s_movk_i32 s22, {hi}\nv_cmp_gt_u32 s[20:21], s22, v0").replace(f"v_cmp_le_u32 vcc, {lo}, v0", f"s_movk_i32 s23, {lo}\nv_cmp_le_u32 vcc, s23, v0"))
    a("""s_waitcnt lgkmcnt(0)
s_barrier
ds_read_b128 v[4:7], v10
ds_read_b32 v8, v10 offset:16
s_waitcnt lgkmcnt(0)
v_readfirstlane_b32 s4, v4
v_readfirstlane_b32 s5, v5
v_readfirstlane_b32 s6, v6
v_readfirstlane_b32 s7, v7""")
    if isinstance(kind, tuple):
        a(f"v_cvt_f32_u32 v8, v8\nv_mul_f32 v8, {f2h(1.0/(hi-lo)/10)}, v8\nv_cvt_u32_f32 v8, v8\ns_nop 1\nv_readfirstlane_b32 s8, v8\ns_nop 3")
    else:
        x, y = {"k1": (5, 4), "gap": (6, 5), "k2": (7, 6)}[kind]
        a(f"s_nop 3\ns_sub_u32 s8, s{x}, s{y}\ns_mul_i32 s8, s8, {mult}")
    a("""s_min_u32 s8, s8, 100000
s_memrealtime s[10:11]
s_waitcnt lgkmcnt(0)
k3_spin:
s_memrealtime s[12:13]
s_waitcnt lgkmcnt(0)
s_sub_u32 s9, s12, s10
s_cmp_lt_u32 s9, s8
s_cbranch_scc1 k3_spin
k3_exit:
s_endpgm""")
    return a

def build_k0(flag="sc1", n=6):
    a = Asm(); st = Stamps(True)
    st.start(a)
    a(f"""s_cmp_ge_u32 s2, 256
s_cbranch_scc1 k0_exit
s_load_dwordx2 s[14:15], s[0:1], 80
s_load_dwordx2 s[4:5], s[0:1], 0
v_lshrrev_b32 v2, 6, v0
v_lshlrev_b32 v3, 4, v0
v_readfirstlane_b32 s28, v2
v_mov_b32 v4, 0
v_mov_b32 v5, 0
v_mov_b32 v6, 0
v_mov_b32 v7, 0
s_waitcnt lgkmcnt(0)
s_mov_b32 s20, s14
s_and_b32 s21, s15, 0xffff
s_mov_b32 s22, 0x4000000
s_mov_b32 s23, 0x20000
s_mov_b32 s16, s4
s_and_b32 s17, s5, 0xffff
s_mov_b32 s18, 2621440
s_mov_b32 s19, 0x20000""")
    st(a, 1)
    for p in range(2):
        a(f"s_mul_i32 s32, s2, {n*4096}\ns_add_u32 s32, s32, 0x2000000")
        for i in range(n): a(f"buffer_store_dwordx4 v[4:7], v3, s[20:23], s32 offen {flag}\ns_add_u32 s32, s32, 4096")
        a("s_waitcnt vmcnt(0)\ns_barrier"); st(a, 2+p)
    a("s_mul_i32 s32, s2, 8192\nbuffer_load_dwordx4 v[8:11], v3, s[16:19], s32 offen\ns_add_u32 s32, s32, 4096\nbuffer_load_dwordx4 v[12:15], v3, s[16:19], s32 offen\ns_waitcnt vmcnt(0)\ns_barrier")
    st(a, 4)
    st.flush(a, 14, 28, koff=131072)
    a("k0_exit:\ns_endpgm")
    return a
```

```python
from build import *
from k1 import *
from k2 import build_k2, K2_LDS
from k3diag import build_k3, build_k0
K1 = lambda **k: ("k1_kernel", build_k1("k1", **k), 256, 256, 96, 256, K1_LDS)
K2 = lambda **k: ("k2_kernel", build_k2("k2", **k), 512, 256, 96, 256, K2_LDS)
K3 = lambda kind, **k: ("k3_kernel", build_k3(kind, **k), 16, 16, 32, 1, 64)
K0 = lambda **k: ("k0_kernel", build_k0(**k), 32, 32, 96, 256, 0)
make([K0(), K1(), K2(), K3("k1", mult=0)], "a0.s")
make([K0(), K1(), K2(), K3(("w",2,1))], "a1.s")
make([K0(), K1(), K2(), K3(("w",2,2))], "a2.s")
make([K0(), K1(), K2(), K3(("w",2,3))], "a3.s")
make([K0(), K1(), K2(), K3(("w",2,4))], "a4.s")
make([K0(flag=""), K1(), K2(), K3(("w",2,2))], "a5.s")
```

```python
import re, struct

def f2h(x):
    return "0x%08x" % struct.unpack("<I", struct.pack("<f", x))[0]

REG = re.compile(r"(?<![\w.])(-?\|?|abs\()?([vas])(?:(\d+)|\[(\d+):(\d+)\])")
TRANS = ("v_exp_f32", "v_log_f32", "v_rcp_f32", "v_rsq_f32", "v_sqrt_f32", "v_sin_f32", "v_cos_f32")

def regs_of(tok):
    tok = tok.strip()
    out = set()
    if tok.startswith("vcc"): return {("s", "vcc")}
    if tok.startswith("exec"): return {("s", "exec")}
    if tok == "m0": return {("s", "m0")}
    m = REG.search(tok)
    if not m: return out
    k = m.group(2)
    if m.group(3) is not None: out.add((k, int(m.group(3))))
    else:
        for i in range(int(m.group(4)), int(m.group(5)) + 1): out.add((k, i))
    return out

class Ins:
    __slots__ = ("text", "mn", "kind", "wr", "rd", "A", "B", "C", "passes", "states", "target", "stdata", "dpp", "addr_s")
    def __init__(self, text):
        self.text = text
        t = text.split(";")[0].strip()
        parts = t.split(None, 1)
        mn = parts[0]; self.mn = mn
        rest = parts[1] if len(parts) > 1 else ""
        ops = [o.strip() for o in re.split(r",(?![^\[]*\])", rest)] if rest else []
        opsr = []
        for o in ops:
            opsr.append(o.split()[0] if o and not o.startswith("abs(") else o)
        self.wr = set(); self.rd = set(); self.A = self.B = self.C = set(); self.passes = 0
        self.states = 1; self.target = None; self.stdata = set(); self.dpp = ("dpp" in mn) or ("row_" in t) or ("quad_perm" in t)
        self.addr_s = set()
        base = re.sub(r"_(e32|e64|dpp|sdwa)$", "", mn)
        R = [regs_of(o) for o in opsr]
        if mn == "s_nop":
            self.kind = "nop"; self.states = int(opsr[0], 0) + 1
        elif mn.startswith("v_mfma"):
            self.kind = "mfma"; self.wr = R[0]; self.A = R[1]; self.B = R[2]; self.C = R[3]
            self.rd = R[1] | R[2] | R[3]
            self.passes = 8 if "32x32" in mn else 4
        elif mn.startswith("v_"):
            self.kind = "valu"
            if base in TRANS: self.kind = "trans"
            if base.startswith("v_dot2"): self.kind = "dl"
            if base.startswith("v_permlane"):
                self.kind = "perm"; self.wr = R[0] | R[1]; self.rd = R[0] | R[1]
            else:
                self.wr = set(R[0]); srcs = R[1:]
                if base in ("v_add_co_u32", "v_sub_co_u32", "v_addc_co_u32", "v_subb_co_u32"):
                    self.wr |= R[1]; srcs = R[2:]
                for s in srcs: self.rd |= s
                if base in ("v_fmac_f32", "v_dot2c_f32_bf16", "v_pk_fmac_f16") or self.dpp: self.rd |= R[0]
                if base == "v_cndmask_b32" and len(R) == 3: self.rd.add(("s", "vcc"))
                if base.startswith("v_cmpx"): self.wr.add(("s", "exec"))
                if base in ("v_readfirstlane_b32", "v_readlane_b32"): self.kind = "rdlane"
        elif mn.startswith("buffer_") or mn.startswith("global_"):
            self.kind = "vmem"
            islds = t.endswith(" lds") or " lds " in t
            if mn.startswith("buffer_wbl2") or mn.startswith("buffer_inv"):
                pass
            elif "load" in mn:
                if islds:
                    for r in R: self.rd |= r
                    self.rd.add(("s", "m0")); self.kind = "dma"
                else:
                    self.wr = R[0]
                    for r in R[1:]: self.rd |= r
            else:
                for r in R: self.rd |= r
                d = R[0] if mn.startswith("buffer_") else R[1]
                if "x4" in mn or "x3" in mn: self.stdata = d
            self.addr_s = {r for r in self.rd if r[0] == "s"}
        elif mn.startswith("ds_"):
            self.kind = "ds"
            if "read" in mn or "permute" in mn or "swizzle" in mn:
                self.wr = R[0]
                for r in R[1:]: self.rd |= r
                if "d16" in mn: self.rd |= R[0]
            else:
                for r in R: self.rd |= r
        elif mn.startswith("s_cbranch") or mn == "s_branch":
            self.kind = "branch"; self.target = opsr[0]
        elif mn.startswith("s_"):
            self.kind = "salu"
            if mn.startswith("s_cmp") or mn.startswith("s_bitcmp") or mn in ("s_waitcnt", "s_barrier", "s_sleep", "s_endpgm", "s_setprio"):
                for r in R: self.rd |= r
            else:
                if R: self.wr = set(R[0])
                for r in R[1:]: self.rd |= r
                if "saveexec" in mn: self.wr.add(("s", "exec"))
        else:
            raise ValueError("unknown instruction " + text)

VALUISH = ("valu", "trans", "dl", "perm", "rdlane")

def need(p, c):
    n = 0
    pv = p.kind in VALUISH; cv = c.kind in VALUISH
    vec = lambda s: {r for r in s if r[0] != "s"}
    sca = lambda s: {r for r in s if r[0] == "s"}
    if p.kind == "mfma":
        big = 8 if p.passes == 4 else 12
        if c.kind == "mfma":
            if p.wr & (c.A | c.B): n = max(n, big)
            if p.wr & c.C:
                if not (p.wr == c.C and p.passes == c.passes): n = max(n, big - 2)
            if (p.wr & c.wr) and not (p.wr == c.C): n = max(n, big)
        else:
            if p.wr & (c.rd | c.wr): n = max(n, big)
            if cv and (p.C & c.wr): n = max(n, 3 if p.passes == 4 else 7)
            if c.kind in ("ds", "vmem") and ((p.A | p.B | p.C) & c.wr): n = max(n, 1)
    if pv:
        w = vec(p.wr); sw = sca(p.wr)
        if c.kind == "mfma" and (w & c.rd): n = max(n, 2)
        if c.kind == "mfma" and ("s", "exec") in sw: n = max(n, 4)
        if c.kind == "perm" and (w & c.rd): n = max(n, 2)
        if cv and c.dpp and (w & c.rd): n = max(n, 2)
        if cv and c.dpp and ("s", "exec") in sw: n = max(n, 5)
        if c.kind == "rdlane" and (w & c.rd): n = max(n, 1)
        if c.kind in ("rdlane", "perm") and ("s", "exec") in sw: n = max(n, 4)
        if p.kind == "trans" and cv and (w & c.rd): n = max(n, 1)
        if p.kind == "dl" and (w & (c.rd | c.wr)) and c.kind != "salu":
            if not (c.kind == "dl" and c.mn == p.mn and not (w & (c.rd - c.wr))): n = max(n, 3)
        if cv and (sw & c.rd): n = max(n, 2)
        if c.kind in ("vmem", "dma") and (sw & c.addr_s): n = max(n, 5)
        if c.kind in ("salu", "branch") and (sw & c.rd): n = max(n, 1)
    if p.kind == "salu" and ("s", "m0") in p.wr and c.kind == "dma": n = max(n, 1)
    if p.kind == "vmem" and p.stdata and (p.stdata & c.wr): n = max(n, 2)
    return n

class Asm:
    def __init__(self):
        self.items = []
    def __call__(self, text):
        for ln in text.split("\n"):
            s = ln.strip()
            if not s or s.startswith(";"): continue
            if s.endswith(":") and " " not in s: self.items.append(("l", s[:-1]))
            elif s.startswith("."): self.items.append(("r", s))
            else: self.items.append(("i", s))
    def label(self, l): self.items.append(("l", l))
    def raw(self, s): self.items.append(("r", s))
    def extend(self, other): self.items += other.items
    def finalize(self, W=16):
        out = []
        hists = [[]]
        pend = {}
        labelpos = {}
        nops = 0
        def trim(h):
            tot = 0; k = len(h)
            while k > 0 and tot < W:
                k -= 1; tot += h[k].states
            return h[k:]
        def req(h, c):
            d = 0; best = 0
            for p in reversed(h):
                best = max(best, need(p, c) - d)
                d += p.states
                if d >= W: break
            return best
        backs = []
        for kind, x in self.items:
            if kind == "r":
                out.append(x); continue
            if kind == "l":
                out.append(x + ":"); labelpos[x] = len(out)
                hists = hists + pend.pop(x, [])
                continue
            c = Ins(x)
            r = max([req(h, c) for h in hists] + [0])
            while r > 0:
                k = min(r, 16); np_ = Ins("s_nop %d" % (k - 1)); out.append(np_); nops += k
                hists = [h + [np_] for h in hists]; r -= k
            out.append(c)
            hists = [trim(h + [c]) for h in hists]
            uniq = []
            for h in hists:
                if not any(len(h) == len(u) and all(a is b for a, b in zip(h, u)) for u in uniq): uniq.append(h)
            hists = uniq
            if c.kind == "branch":
                if c.target in labelpos: backs.append((len(out) - 1, c.target, [list(h) for h in hists]))
                else: pend.setdefault(c.target, []).extend([list(h) for h in hists])
                if c.mn == "s_branch": hists = [[]]
            if c.mn == "s_endpgm": hists = [[]]
        assert not pend, "unresolved labels %s" % list(pend)
        ins_at = {}
        for pos, tgt, hs in backs:
            worst = 0
            for h in hs:
                d = 0; i = labelpos[tgt]
                while i < len(out) and d < W:
                    c = out[i]; i += 1
                    if not isinstance(c, Ins): continue
                    dd = d
                    for p in reversed(h):
                        worst = max(worst, need(p, c) - dd); dd += p.states
                    d += c.states
                    if c.mn == "s_branch": break
            if worst > 0: ins_at[pos] = worst
        lines = []
        for i, o in enumerate(out):
            if i in ins_at: lines.append("    s_nop %d" % (ins_at[i] - 1))
            lines.append("    " + o.text if isinstance(o, Ins) else o)
        self.nops = nops
        self.ninstr = sum(isinstance(o, Ins) for o in out)
        return "\n".join(lines) + "\n"

def weave(main, fill, start=0, every=1, per=1):
    out = []; fi = 0
    for i, m in enumerate(main):
        out.append(m)
        if i >= start and (i - start) % every == 0:
            for _ in range(per):
                if fi < len(fill): out.append(fill[fi]); fi += 1
    out += fill[fi:]
    return out


class Stamps:
    def __init__(self, on, base=64, dbg=0x1400000):
        self.on = on; self.base = base; self.dbg = dbg
    def start(self, a):
        if self.on:
            a(f"s_memrealtime s[{self.base}:{self.base+1}]\ns_memtime s[{self.base+2}:{self.base+3}]")
            for i in range(2, 14): a(f"s_mov_b32 s{self.base+2*i}, 0")
    def __call__(self, a, i):
        if self.on: a(f"s_memtime s[{self.base+2+2*i}:{self.base+3+2*i}]")
    def flush(self, a, ws, swave, vt=2, koff=0):
        if not self.on: return
        b = self.base
        a(f"{'s_nop 0' if getattr(self, 'nowait', False) else 's_waitcnt vmcnt(0)'}\ns_memtime s[{b+26}:{b+27}]\ns_memrealtime s[{b+28}:{b+29}]\ns_waitcnt lgkmcnt(0)\ns_mov_b64 exec, 1")
        a(f"s_lshl_b32 s{b+1}, s2, 8\ns_lshl_b32 s{b+3}, s{swave}, 6\ns_add_u32 s{b+1}, s{b+1}, s{b+3}\ns_add_u32 s{b+1}, s{b+1}, {self.dbg + koff}\nv_mov_b32 v{vt}, s{b+1}")
        a(f"v_mov_b32 v{vt+1}, s{b}\nglobal_store_dword v{vt}, v{vt+1}, s[{ws}:{ws+1}]")
        for i in range(1, 13):
            a(f"s_sub_u32 s{b+3}, s{b+2+2*i}, s{b+2}\ns_cmp_eq_u32 s{b+2+2*i}, 0\ns_cselect_b32 s{b+3}, 0, s{b+3}\nv_mov_b32 v{vt+1}, s{b+3}\nglobal_store_dword v{vt}, v{vt+1}, s[{ws}:{ws+1}] offset:{4*i}")
        a(f"v_mov_b32 v{vt+1}, s{b+28}\nglobal_store_dword v{vt}, v{vt+1}, s[{ws}:{ws+1}] offset:52")
        a(f"v_mov_b32 v{vt+1}, s50\nglobal_store_dword v{vt}, v{vt+1}, s[{ws}:{ws+1}] offset:56")


def est(x):
    t = 0
    for y in x.split("\n"):
        y = y.strip()
        if not y or y.endswith(":"): continue
        if y.startswith("v_mfma"): t += 9
        elif y.startswith(TRANS): t += 8.3
        else: t += 4.4
    return t

def sprinkle(L, Q, gap, first=None, limit=None):
    out = []; acc = 0 if first is None else gap - first; n = 0
    for x in L:
        out.append(x); acc += est(x)
        if acc >= gap and Q and (limit is None or n < limit):
            out += Q.pop(0); acc = 0; n += 1
    return out


def kind_of(x):
    ks = set()
    for y in x.split("\n"):
        y = y.strip()
        if y.startswith("ds_"): ks.add("lds")
        if y.startswith("buffer_") or y.startswith("global_"): ks.add("vm")
    return ks

class Sched:
    def __init__(self, vgap=4): self.vgap = vgap; self.since = 99
    def __call__(self, M, lds=(), other=(), bg=None, nbg=0, flush=True, start=0, low=None):
        out = []; lds = list(lds); other = other if isinstance(other, list) else list(other)
        for i, m in enumerate(M):
            out.append(m)
            if not m.lstrip().startswith("v_mfma"): continue
            self.since += 1
            if i < start: continue
            room = 8.9; used_lds = False
            if lds: out.append(lds.pop(0)); room -= 4.4; used_lds = True
            while room > 1:
                pick = None
                if other:
                    k = kind_of(other[0]); c = est(other[0])
                    if not (("lds" in k and used_lds) or ("vm" in k and self.since < self.vgap) or (c > room + 0.1 and room < 8)): pick = other
                if pick is None and bg and nbg > 0 and self.since >= self.vgap and not (other and "vm" in kind_of(other[0])):
                    it = "\n".join(bg.pop(0)); nbg -= 1
                    out.append(it); room -= est(it); self.since = 0; continue
                if pick is None and low and not (est(low[0]) > room + 0.1 and room < 8): pick = low
                if pick is None: break
                it = pick.pop(0); out.append(it); room -= max(est(it), 1)
                k = kind_of(it)
                if "lds" in k: used_lds = True
                if "vm" in k: self.since = 0
        out += lds
        if flush: out += other; del other[:]
        return out
```

```python
from asmlib import *
def build_k3(kind, mult=10, wsoff=0, word=None, lo=0, hi=256):
    a = Asm()
    a(f"""s_memrealtime s[24:25]
s_cmp_ge_u32 s2, 1
s_cbranch_scc1 k3_exit
s_load_dwordx2 s[14:15], s[0:1], 80
v_lshlrev_b32 v1, 8, v0
v_add_u32 v1, {0x1400000 + wsoff}, v1
v_add_u32 v2, 65536, v1
v_mov_b32 v10, 0
v_mov_b32 v11, -1
ds_write_b32 v10, v11
ds_write_b32 v10, v10 offset:4
ds_write_b32 v10, v11 offset:8
ds_write_b32 v10, v10 offset:12
ds_write_b32 v10, v10 offset:16
s_waitcnt lgkmcnt(0)
s_barrier""")
    for w in range(4):
        a(f"""global_load_dword v3, v1, s[14:15] offset:{64*w}
global_load_dword v4, v1, s[14:15] offset:{64*w+52}
global_load_dword v5, v2, s[14:15] offset:{64*w}
global_load_dword v6, v2, s[14:15] offset:{64*w+52}
s_waitcnt vmcnt(0)
ds_min_u32 v10, v3
ds_max_u32 v10, v4 offset:4
ds_min_u32 v10, v5 offset:8
ds_max_u32 v10, v6 offset:12""")
    if isinstance(kind, tuple):
        _, kn, word = kind
        a(f"""v_add_u32 v7, {kn*65536}, v1
global_load_dword v3, v7, s[14:15] offset:{4*word}
v_cmp_le_u32 vcc, {lo}, v0
v_cmp_gt_u32 s[20:21], {hi}, v0
s_and_b64 vcc, vcc, s[20:21]
s_waitcnt vmcnt(0)
v_cndmask_b32 v3, v10, v3, vcc
ds_add_u32 v10, v3 offset:16""".replace(f"v_cmp_gt_u32 s[20:21], {hi}, v0", f"s_movk_i32 s22, {hi}\nv_cmp_gt_u32 s[20:21], s22, v0").replace(f"v_cmp_le_u32 vcc, {lo}, v0", f"s_movk_i32 s23, {lo}\nv_cmp_le_u32 vcc, s23, v0"))
    a("""s_waitcnt lgkmcnt(0)
s_barrier
ds_read_b128 v[4:7], v10
ds_read_b32 v8, v10 offset:16
s_waitcnt lgkmcnt(0)
v_readfirstlane_b32 s4, v4
v_readfirstlane_b32 s5, v5
v_readfirstlane_b32 s6, v6
v_readfirstlane_b32 s7, v7""")
    if isinstance(kind, tuple):
        a(f"v_cvt_f32_u32 v8, v8\nv_mul_f32 v8, {f2h(1.0/(hi-lo)/2)}, v8\nv_cvt_u32_f32 v8, v8\ns_nop 1\nv_readfirstlane_b32 s8, v8\ns_nop 3")
    else:
        if kind == "pre": a("s_load_dword s26, s[14:15], 0x13ff000\ns_waitcnt lgkmcnt(0)".replace("0x13ff000", "0xff000") if False else "s_add_u32 s14, s14, 0x13ff000\ns_addc_u32 s15, s15, 0\ns_load_dword s26, s[14:15], 0\ns_waitcnt lgkmcnt(0)")
        x, y = {"k1": (5, 4), "gap": (6, 5), "k2": (7, 6), "post": (24, 5), "tot": (24, 4), "pre": (4, 26)}[kind]
        a(f"s_nop 3\ns_sub_u32 s8, s{x}, s{y}\ns_mul_i32 s8, s8, {mult}")
    a("""s_min_u32 s8, s8, 100000
s_memrealtime s[10:11]
s_waitcnt lgkmcnt(0)
k3_spin:
s_memrealtime s[12:13]
s_waitcnt lgkmcnt(0)
s_sub_u32 s9, s12, s10
s_cmp_lt_u32 s9, s8
s_cbranch_scc1 k3_spin
k3_exit:
s_endpgm""")
    return a

def build_k0(flag="sc1", n=6, base=0x2000000):
    a = Asm(); st = Stamps(True)
    st.start(a)
    a(f"""s_cmp_ge_u32 s2, 256
s_cbranch_scc1 k0_exit
s_load_dwordx2 s[14:15], s[0:1], 80
s_load_dwordx2 s[4:5], s[0:1], 0
v_lshrrev_b32 v2, 6, v0
v_lshlrev_b32 v3, 4, v0
v_readfirstlane_b32 s28, v2
v_mov_b32 v4, 0
v_mov_b32 v5, 0
v_mov_b32 v6, 0
v_mov_b32 v7, 0
s_waitcnt lgkmcnt(0)
s_mov_b32 s20, s14
s_and_b32 s21, s15, 0xffff
s_mov_b32 s22, 0x4000000
s_mov_b32 s23, 0x20000
s_mov_b32 s16, s4
s_and_b32 s17, s5, 0xffff
s_mov_b32 s18, 2621440
s_mov_b32 s19, 0x20000""")
    st(a, 1)
    for p in range(2):
        a(f"s_mul_i32 s32, s2, {n*4096}\ns_add_u32 s32, s32, {base}")
        for i in range(n): a(f"buffer_store_dwordx4 v[4:7], v3, s[20:23], s32 offen {flag}\ns_add_u32 s32, s32, 4096")
        a("s_waitcnt vmcnt(0)\ns_barrier"); st(a, 2+p)
    a("s_mul_i32 s32, s2, 8192\nbuffer_load_dwordx4 v[8:11], v3, s[16:19], s32 offen\ns_add_u32 s32, s32, 4096\nbuffer_load_dwordx4 v[12:15], v3, s[16:19], s32 offen\ns_waitcnt vmcnt(0)\ns_barrier")
    st(a, 4)
    st.flush(a, 14, 28, koff=131072)
    a("k0_exit:\ns_endpgm")
    return a

def build_tiny():
    a = Asm()
    a("""s_cmp_ge_u32 s2, 1
s_cbranch_scc1 kt_exit
s_load_dwordx2 s[14:15], s[0:1], 80
s_waitcnt lgkmcnt(0)
s_memrealtime s[4:5]
s_waitcnt lgkmcnt(0)
v_mov_b32 v1, 0x13ff000
v_mov_b32 v2, s4
global_store_dword v1, v2, s[14:15]
kt_exit:
s_endpgm""")
    return a
```

```python
from asmlib import *
from layout import *
import math
import k2 as P2
from k2 import rng, arng, MF, FAc, TC, TS, ZF, TMP, wt, xi, zf, a1, pk, stage64, stage32, trreads, p2_consts, RG, RX

LDS = 163840
vL = 1
PHI, FR, ACC, WG_ = 20, 100, 148, 212
P = lambda i: PHI + 8*i
Q = lambda i: PHI + 8*i + 4
SIDE = 81920
SIDE2 = 122880
STEPS = [s for u in range(5) for s in (2*u, 2*u+10, 2*u+1, 2*u+11)]

class VM:
    def __init__(self): self.n = 0; self.tags = {}; self.done = 0
    def op(self, tag=None):
        self.n += 1
        if tag is not None: self.tags[tag] = self.n
    def wait(self, tag):
        t = self.tags[tag]
        if t <= self.done: return None
        self.done = t
        return f"s_waitcnt vmcnt({min(63, self.n - t)})"
class Emit:
    def __init__(self, a): self.a = a; self.vm = VM(); self.marks = set()
    def __call__(self, L):
        if isinstance(L, str): L = [L]
        for x in [y.strip() for z in L for y in z.split("\n")]:
            if not x: continue
            if x.startswith("@vm "):
                w = self.vm.wait(x[4:])
                if w: self.a(w)
                continue
            if x.startswith("@mark "): self.marks.add(x[6:]); continue
            if x.startswith("@need "):
                assert x[6:] in self.marks, x
                continue
            if x == "@drain":
                self.a("s_waitcnt vmcnt(0)"); self.vm.done = self.vm.n; continue
            tag = None
            if " #" in x: x, tag = x.split(" #")
            if x.startswith("buffer_") or x.startswith("global_"): self.vm.op(tag)
            self.a(x)

def srd(e, d, base, size):
    e(f"s_mov_b32 s{d}, s{base}\ns_and_b32 s{d+1}, s{base+1}, 0xffff\ns_mov_b32 s{d+2}, {size}\ns_mov_b32 s{d+3}, 0x20000")

def phi_gen():
    L = ["s_lshl_b32 s31, s30, 6", "s_add_u32 s32, s31, s28", "s_add_u32 s32, s32, 1",
         f"v_and_b32 v2, 15, v{vL}", "v_lshl_add_u32 v2, v2, 2, s32", "v_cvt_f32_u32 v2, v2", f"v_mul_f32 v2, {f2h(1/640)}, v2",
         f"v_lshrrev_b32 v3, 4, v{vL}", "v_lshl_add_u32 v3, v3, 3, s31", "v_cvt_f32_u32 v3, v3", "v_mul_f32 v3, v3, v2"]
    for i in range(5):
        for jp in range(4):
            j = 2*jp
            L += [f"v_fmamk_f32 v4, v2, {f2h(32*i+j)}, v3", f"v_fmamk_f32 v5, v2, {f2h(32*i+j+1)}, v3",
                  "v_cos_f32 v6, v4", "v_cos_f32 v7, v5", "v_sin_f32_e64 v8, -v4", "v_sin_f32_e64 v9, -v5",
                  f"v_cvt_pk_bf16_f32 v{P(i)+jp}, v6, v7", f"v_cvt_pk_bf16_f32 v{Q(i)+jp}, v8, v9"]
    return L

def phi_fix(e, tag):
    e(f"s_lshl_b32 s32, s30, 2\ns_add_u32 s32, s32, s28\ns_cmp_eq_u32 s32, 19\ns_cbranch_scc0 {tag}_nofix")
    e(f"v_and_b32 v2, 15, v{vL}\nv_cmp_eq_u32 vcc, 15, v2\nv_mov_b32 v3, 0xbf353f35\nv_mov_b32 v4, 0")
    for i in range(5):
        for jp in range(4):
            e(f"v_cndmask_b32 v{P(i)+jp}, v{P(i)+jp}, v3, vcc\nv_cndmask_b32 v{Q(i)+jp}, v{Q(i)+jp}, v4, vcc")
    e(f"{tag}_nofix:")
    e("""s_add_u32 s32, s28, 1
s_and_b32 s32, s32, 2
s_cmp_lg_u32 s32, 0
s_cselect_b32 s33, 0x80008000, 0
s_cmp_lt_u32 s28, 2
s_cselect_b32 s34, 0x80008000, 0
s_bitcmp1_b32 s28, 0
s_cselect_b32 s46, 1.0, -1.0
s_cselect_b32 s47, 1.0, -1.0""")
    e(f"s_cbranch_scc1 {tag}_keep")
    for i in range(5):
        for jp in range(4): e(f"v_xor_b32 v{P(5+i)+jp}, s33, v{Q(i)+jp}\nv_xor_b32 v{Q(5+i)+jp}, s34, v{P(i)+jp}")
    e(f"s_branch {tag}_shifted\n{tag}_keep:")
    for i in range(5):
        for jp in range(4): e(f"v_xor_b32 v{P(5+i)+jp}, s33, v{P(i)+jp}\nv_xor_b32 v{Q(5+i)+jp}, s34, v{Q(i)+jp}")
    e(f"{tag}_shifted:")

def div12(e, row, pc, k):
    e(f"v_add_u32 v{pc}, {64*k}, v{vL}\nv_mul_u32_u24 v{row}, 5462, v{pc}\nv_lshrrev_b32 v{row}, 16, v{row}\nv_mul_u32_u24 v9, 12, v{row}\nv_sub_u32 v{pc}, v{pc}, v9")

def w2f_parts(ld, R):
    setup = ["s_mov_b32 s4, s56\ns_and_b32 s5, s57, 0xffff\ns_cmp_lt_u32 s51, 64\ns_cselect_b32 s6, 1966080, 0\ns_cselect_b32 s8, 0, 0x40000000\ns_mov_b32 s7, 0x20000"]
    for k in range(3):
        setup += [f"v_add_u32 v3, {64*k}, v{vL}", "v_mul_u32_u24 v2, 5462, v3", "v_lshrrev_b32 v2, 16, v2", "v_mul_u32_u24 v4, 12, v2", "v_sub_u32 v3, v3, v4",
                  "v_mul_u32_u24 v2, 1280, v2", f"v_lshl_add_u32 v{244+k}, v3, 4, v2"]
    setup += ["s_lshr_b32 s36, s51, 3\ns_and_b32 s37, s51, 7\ns_mul_i32 s38, s36, 192\ns_mul_i32 s39, s28, 48\ns_add_u32 s38, s38, s39\ns_mul_i32 s38, s38, 1280",
              f"s_mul_i32 s48, s37, 160\ns_and_b32 s49, s48, 63\ns_sub_u32 s48, s48, s49\ns_add_u32 s38, s38, s48\ns_mul_i32 s39, s28, 9216\ns_add_u32 s39, s39, {SIDE2}"]
    dma = []
    for blk in range(3):
        for k in range(3):
            dma.append([f"s_add_u32 m0, s39, {(3*blk+k)*1024}"] + ([f"s_add_u32 s38, s38, {16*1280}"] if blk and k == 0 else [])
                       + [f"buffer_load_dwordx4 v{244+k}, s[4:7], s38 offen {ld} lds" + (" #w2s" if blk == 2 and k == 2 else "")])
    addr = ["s_add_u32 s13, s39, s49", f"v_lshrrev_b32 v2, 2, v{vL}", "v_mul_u32_u24 v3, 192, v2", f"v_and_b32 v4, 3, v{vL}", "v_add_u32 v3, s13, v3",
            "v_lshl_add_u32 v247, v4, 4, v3", "v_lshl_add_u32 v248, v4, 3, v3", "v_and_b32 v2, 7, v2", "v_mul_u32_u24 v3, 192, v2", "v_add_u32 v3, s13, v3",
            f"v_lshrrev_b32 v5, 5, v{vL}", "v_lshl_add_u32 v249, v4, 4, v3", "v_lshl_add_u32 v249, v5, 3, v249", "v_lshl_add_u32 v250, v4, 3, v3",
            f"s_mul_i32 s36, s36, 6\ns_mul_i32 s37, s37, 48\ns_add_u32 s36, s36, s37\ns_add_u32 s37, s36, s28\ns_mul_i32 s37, s37, 5120\ns_add_u32 s37, s37, {W2F}",
            f"s_lshr_b32 s13, s28, 1\ns_add_u32 s36, s36, s13\ns_add_u32 s36, s36, 4\ns_mul_i32 s36, s36, 5120\ns_add_u32 s36, s36, {W2F}\ns_and_b32 s13, s28, 1\ns_lshl_b32 s13, s13, 9\ns_add_u32 s36, s36, s13",
            f"v_lshl_add_u32 v251, v{vL}, 4, s8", f"v_and_b32 v3, 31, v{vL}", "v_lshl_add_u32 v3, v3, 4, s8", "v_lshl_add_u32 v252, v5, 10, v3", "v_add_u32 v253, 4096, v251", "v_add_u32 v254, 4096, v3"]
    frag = []
    for j in range(8):
        r = R + 4*(j % 2)
        if j < 4: rd = [f"v247 offset:{h*16*192 + 64*(j//2) + 8*(j%2)}" for h in range(2)]; stv = f"v251, s[20:23], s37 offen offset:{j*1024}"
        elif j == 4: rd = [f"v248 offset:{h*16*192 + 128}" for h in range(2)]; stv = "v253, s[20:23], s37 offen"
        elif j < 7: rd = [f"v249 offset:{32*192 + h*8*192 + 64*(j-5)}" for h in range(2)]; stv = f"v252, s[20:23], s36 offen offset:{(j-5)*2048}"
        else: rd = [f"v250 offset:{32*192 + h*8*192 + 128}" for h in range(2)]; stv = "v254, s[20:23], s36 offen"
        frag.append(([f"ds_read_b64_tr_b16 v[{r+2*h}:{r+2*h+1}], {rd[h]}" for h in range(2)], f"buffer_store_dwordx4 {rng(r)}, {stv} sc1"))
    return setup, dma, addr, frag

def kloop(e, reads, mfmas, extra, stp, half, xlds=lambda n: [], atbar=lambda c: []):
    e("@vm c0\ns_barrier"); stp(5)
    e(reads(STEPS[0], 0))
    seen = set(); sc = Sched(4); pend = []
    for n, st in enumerate(STEPS):
        first = (st // 10) not in seen; seen.add(st // 10)
        M = mfmas(st, n % 2, first)
        Rd = reads(STEPS[n+1], (n+1) % 2) if n + 1 < 20 else []
        pend += extra(n)
        newchunk = n + 1 < 20 and (n + 1) % 4 == 0
        if half and not newchunk and n + 1 < 20:
            e(f"s_waitcnt lgkmcnt({len(Rd) - half})")
            h = len(M) // 2
            e(xlds(n))
            e(sc(M[:h], Rd[:h], pend, flush=False)); e(f"s_waitcnt lgkmcnt({h})"); e(sc(M[h:], Rd[h:], pend, flush=False))
        else:
            e("s_waitcnt lgkmcnt(0)")
            if newchunk:
                e(sc(M[:2], [], pend, flush=False)); M = M[2:]
                e(f"@vm c{(n+1)//4}"); e(atbar((n+1)//4)[:1]); e("s_barrier"); stp(40 + (n+1)//4)
                for f in atbar((n+1)//4)[1:]: f()
            e(sc(M, Rd, pend, flush=(n == 19 or not half)))

def gclear(e):
    e(f"""s_lshl_b32 s32, s29, 3
s_add_u32 s32, s32, s30
s_mul_i32 s32, s32, 24576
s_mul_i32 s33, s28, 6144
s_add_u32 s32, s32, s33
s_add_u32 s32, s32, {G}
s_add_u32 s33, s32, 4096
v_mov_b32 v4, 0
v_mov_b32 v5, 0
v_mov_b32 v6, 0
v_mov_b32 v7, 0
v_lshlrev_b32 v10, 4, v{vL}""")
    for i in range(6): e(f"buffer_store_dwordx4 v[4:7], v10, s[20:23], s{32 + i//4} offen offset:{(i%4)*1024} sc1")

def nonce_get(e, tag, R):
    e(f"""{tag}_n0:
v_readfirstlane_b32 s10, v{R}
v_readfirstlane_b32 s11, v{R+1}
s_cmp_lg_u32 s10, 0
s_cbranch_scc1 {tag}_n1
s_sub_u32 s50, s50, 1
s_cbranch_scc1 kf_fail
v_mov_b32 v{R}, 0""")
    e.a(f"global_load_dwordx2 v[{R}:{R+1}], v{R}, s[62:63] sc1\ns_waitcnt vmcnt(0)\ns_branch {tag}_n0\n{tag}_n1:")

def nonce_load(R): return [f"v_mov_b32 v{R}, 0", f"global_load_dwordx2 v[{R}:{R+1}], v{R}, s[62:63] sc1 #nonce"]

def flag_put(e, tag, base, R=2):
    e(f"""s_cmp_lg_u32 s28, 0
s_cbranch_scc1 {tag}_f
s_lshl_b32 s32, s2, 7
s_add_u32 s32, s32, {base}
v_mov_b32 v{R}, s10
v_mov_b32 v{R+1}, s11
v_mov_b32 v{R+2}, 0""")
    e.a(f"buffer_store_dwordx2 v[{R}:{R+1}], v{R+2}, s[20:23], s32 offen sc1\n{tag}_f:")

def flag_poll(e, tag, vaddr, R, pre=True):
    e(f"""{tag}_p:
buffer_load_dwordx2 v[{R}:{R+1}], v{vaddr}, s[20:23], 0 offen sc1
s_sub_u32 s50, s50, 1
s_cbranch_scc1 kf_fail
@drain
v_cmp_ne_u64 vcc, s[10:11], v[{R}:{R+1}]
s_cbranch_vccnz {tag}_p""")

def cmul2(c, src, wr, wi, conj):
    A, B = [], []
    for t in range(2):
        for rp in range(2):
            T = TMP + 4*((2*t+rp) % 2)
            re, im, x, y = src(c, 0, t) + 2*rp, src(c, 1, t) + 2*rp, wr(t) + 2*rp, wi(t) + 2*rp
            cv = [f"v_cvt_pk_bf16_f32 v{pk(c,0)+2*t+rp}, v{T}, v{T+1}", f"v_cvt_pk_bf16_f32 v{pk(c,1)+2*t+rp}, v{T+2}, v{T+3}"]
            if t == 0:
                for k in range(2): A += [f"v_mul_f32 v{T+k}, v{re+k}, v{x+k}", f"v_mul_f32 v{T+2+k}, v{im+k}, v{x+k}"]
                for k in range(2):
                    if conj: A += [f"v_fmac_f32 v{T+k}, v{im+k}, v{y+k}", f"v_fma_f32 v{T+2+k}, -v{re+k}, v{y+k}, v{T+2+k}"]
                    else:    A += [f"v_fma_f32 v{T+k}, -v{im+k}, v{y+k}, v{T+k}", f"v_fmac_f32 v{T+2+k}, v{re+k}, v{y+k}"]
                A += cv
            else:
                p2 = lambda r: f"v[{r}:{r+1}]"
                neg = " neg_lo:[1,0,0] neg_hi:[1,0,0]"
                B += [f"v_pk_mul_f32 {p2(T)}, {p2(re)}, {p2(x)}", f"v_pk_mul_f32 {p2(T+2)}, {p2(im)}, {p2(x)}",
                      f"v_pk_fma_f32 {p2(T)}, {p2(im)}, {p2(y)}, {p2(T)}" + ("" if conj else neg),
                      f"v_pk_fma_f32 {p2(T+2)}, {p2(re)}, {p2(y)}, {p2(T+2)}" + (neg if conj else "")] + cv
    return A, B

def build(diag=False, spin=1<<16, ld="", opt={}):
    O = dict(x_gap=90, w1_p2=18, w1_gap=95, w1_pre=12, npre=3, nst=1, np_gap=60, np_first=600, mapB=True, uf=[6, 8, 9, 10, 12, 13, 14, 16, 17], g1_start=1, g1_vgap=4, touch=True, touch2=True, g1_bg=3, gelu_gap=100, pf=True, w2_start=8, gflag_ki=1, ext_gap=90, w_gap=85, w_n=13); O.update(opt)
    a = Asm(); e = Emit(a); S = Stamps(bool(diag))
    smap = {"A": {i: i for i in range(1, 12)},
            "B": {9: 1, 10: 2, 11: 3, 20: 4, 21: 5, 22: 6, 23: 7, 24: 8, 25: 9, 26: 10, 27: 11},
            "D": {1: 1, 40: 2, 2: 3, 5: 4, 41: 5, 42: 6, 43: 7, 44: 8, 4: 9, 45: 10, 6: 11},
            "C": {8: 1, 33: 2, 34: 3, 35: 4, 36: 5, 30: 6, 31: 7, 32: 8, 9: 9, 37: 10, 38: 11}}.get(diag, {})
    st = lambda i: S(a, smap[i]) if i in smap else None
    S.start(a)
    e(f"""s_cmp_ge_u32 s2, 256
s_cbranch_scc1 kf_exit
s_load_dwordx4 s[4:7], s[0:1], 0
s_load_dwordx2 s[8:9], s[0:1], 16
s_load_dwordx8 s[52:59], s[0:1], 32
s_load_dwordx4 s[60:63], s[0:1], 64
s_load_dwordx2 s[14:15], s[0:1], 80
s_memrealtime s[12:13]
v_lshrrev_b32 v2, 6, v0
v_and_b32 v{vL}, 63, v0
v_readfirstlane_b32 s28, v2
s_and_b32 s29, s2, 7
s_lshl_b32 s29, s29, 2
s_bfe_u32 s32, s2, 0x20003
s_add_u32 s29, s29, s32
s_lshr_b32 s30, s2, 5
s_mov_b32 s50, {spin}""")
    if O["pf"]:
        e(f"""s_getpc_b64 s[32:33]
kf_pc:
s_lshr_b32 s34, s2, 3
s_lshl_b32 s34, s34, 11
v_and_b32 v2, 127, v0
v_lshl_add_u32 v2, v2, 4, s34
s_mov_b32 s35, kf_last-kf_pc-16
v_min_u32 v2, s35, v2
v_and_b32 v2, -16, v2
v_mov_b32 v3, s33
v_add_co_u32 v2, vcc, s32, v2
v_addc_co_u32 v3, vcc, 0, v3, vcc""")
        a("global_load_dwordx4 v[252:255], v[2:3], off")
    e("s_waitcnt lgkmcnt(0)")
    srd(e, 20, 14, WSEND)
    e("""s_or_b32 s32, s2, s28
s_cmp_lg_u32 s32, 0
s_cbranch_scc1 kf_nononce
s_or_b32 s12, s12, 1
v_mov_b32 v2, s12
v_mov_b32 v3, s13
v_mov_b32 v4, 0""")
    a("global_store_dwordx2 v4, v[2:3], s[62:63] sc1\nkf_nononce:")
    st(1)
    e("s_cmp_ge_u32 s2, 160\ns_cbranch_scc1 kf_notx")
    PH, AC, GR, BF, SG = 20, 120, 168, 172, 204
    ph = lambda ki, dt: PH + 20*ki + 4*dt
    DN = [0, 252, 253, 254, 255]
    PHS = [f"v_bfe_u32 v2, v{vL}, 2, 2", f"v_and_b32 v3, 3, v{vL}", "v_lshl_add_u32 v2, v2, 3, v3", "s_mul_i32 s32, s30, 80",
          "v_add_u32 v2, s32, v2", f"v_and_b32 v3, 15, v{vL}", "v_add_u32 v3, s32, v3", "s_movk_i32 s9, 320"]
    for dt in range(5):
        off = 32*(dt//2) + 4*(dt%2) if dt < 4 else 64
        PHS += [f"v_add_u32 v4, {off}, v{2 if dt < 4 else 3}", "v_subrev_u32 v5, 640, v4", "v_cmp_le_u32 vcc, s9, v4", "s_nop 0",
              "v_cndmask_b32 v4, v4, v5, vcc", "v_cvt_f32_i32 v4, v4", f"v_mul_f32 v{DN[dt]}, {f2h(1/640)}, v4"]
    PHS += [f"v_lshrrev_b32 v2, 4, v{vL}", "s_cmp_eq_u32 s28, 3", "s_cselect_b32 s9, 3, 4", "v_cmp_eq_u32 s[48:49], s9, v2", "s_mul_i32 s31, s28, 5"]
    def phx(ki, dst=None):
        ph_ = dst or ph
        X = [f"s_add_u32 s9, s31, {ki}\ns_lshr_b32 s51, s9, 2\ns_lshl_b32 s51, s51, 6\ns_and_b32 s9, s9, 3\ns_add_u32 s9, s9, s51\ns_add_u32 s9, s9, 1\nv_and_b32 v3, 48, v{vL}",
             "v_add_u32 v3, s9, v3", "v_cvt_f32_u32 v3, v3"]
        for dt in range(5):
            d = DN[dt]
            for q in range(2):
                if q == 0: X += [f"v_mul_f32 v4, v3, v{d}", f"v_fma_f32 v5, v{d}, 4.0, v4"]
                else: X += [f"v_fmamk_f32 v5, v{d}, {f2h(12.0)}, v4", f"v_fmamk_f32 v4, v{d}, {f2h(8.0)}, v4"]
                X += ["v_cos_f32 v6, v4", "v_cos_f32 v7, v5", "v_sin_f32_e64 v8, -v4", "v_sin_f32_e64 v9, -v5"]
                if ki == 4 and q == 1: X += [f"v_mul_f32 v5, {f2h(math.sqrt(0.5))}, v7", "v_cndmask_b32 v7, v7, v5, s[48:49]"]
                X += [f"v_cvt_pk_bf16_f32 v{ph_(ki,dt)+q}, v6, v7", f"v_cvt_pk_bf16_f32 v{ph_(ki,dt)+2+q}, v8, v9"]
            if dst: X += [f"ds_write_b128 v19, {rng(ph_(ki,dt))} offset:{(5*ki+dt)*1024}"]
        return X
    gemm_role = ["s_bfe_u32 s29, s2, 0x20001", "s_lshl_b32 s29, s29, 3", "s_lshr_b32 s32, s2, 5", "s_add_u32 s29, s29, s32",
               "s_and_b32 s30, s2, 1", "s_lshl_b32 s30, s30, 2", "s_bfe_u32 s32, s2, 0x20003", "s_add_u32 s30, s30, s32"]
    if not O['mapB']: gemm_role = ["s_and_b32 s29, s2, 7", "s_lshl_b32 s29, s29, 2", "s_bfe_u32 s32, s2, 0x20003", "s_add_u32 s29, s29, s32", "s_lshr_b32 s30, s2, 5"]
    retries = []
    def retry_block(tag, loads, check):
        retries.append((tag, loads, check)); return [f"s_cbranch_vccnz kf_rt_{tag}\nkf_ok_{tag}:"]
    srd(e, 16, 4, 2621440)
    e(f"""s_lshr_b32 s32, s29, 2
s_lshl_b32 s32, s32, 8
s_and_b32 s33, s29, 3
s_lshl_b32 s33, s33, 3
s_add_u32 s32, s32, s33
s_lshl_b32 s33, s28, 5
s_add_u32 s32, s32, s33
v_lshrrev_b32 v2, 3, v{vL}
v_add_u32 v2, s32, v2
v_mul_u32_u24 v2, 1280, v2
v_bfe_u32 v3, v{vL}, 4, 1
s_lshl_b32 s33, s28, 1
v_or_b32 v3, s33, v3
v_and_b32 v4, 7, v{vL}
v_xor_b32 v3, v3, v4
v_lshl_add_u32 v17, v3, 4, v2
v_add_u32 v19, 163840, v17
s_lshl_b32 s41, s28, 10
s_lshl_b32 s43, s30, 7
s_mov_b32 s42, s43
s_add_u32 s44, s43, 640""")
    XD = []
    for c in range(5):
        for k, u in enumerate((c, c+5)):
            sr = (42, 44)[k]
            adv = [f"s_add_u32 s{sr}, s{sr}, 128"] + ([f"s_cmp_eq_u32 s{sr}, 1280", f"s_cselect_b32 s{sr}, 0, s{sr}"] if k else [])
            XD.append([f"s_add_u32 m0, s41, {8*u*1024}"] + (adv if c else []) + [f"buffer_load_dwordx4 v17, s[16:19], s{sr} offen {ld} lds"])
            XD.append([f"s_add_u32 m0, s41, {(8*u+4)*1024}", f"buffer_load_dwordx4 v19, s[16:19], s{sr} offen {ld} lds" + (f" #c{c}" if k else "")])
    for d in XD[:4]: e(d)
    st(40)
    srd(e, 24, 6, 1314816); srd(e, 4, 8, 1314816)
    e(f"""s_and_b32 s36, s2, 3
s_lshl_b32 s36, s36, 4
s_bfe_u32 s37, s2, 0x30002
s_lshl_b32 s37, s37, 2
s_add_u32 s37, s37, s28
s_lshl_b32 s37, s37, 6
s_add_u32 s36, s36, s37
s_mul_i32 s36, s36, 642
s_add_u32 s36, s36, s43
s_add_u32 s36, s36, 2
s_lshl_b32 s39, s28, 11
s_add_u32 s39, s39, {SIDE}
v_lshrrev_b32 v2, 3, v{vL}
v_mul_u32_u24 v2, 642, v2
v_and_b32 v3, 7, v{vL}
v_lshrrev_b32 v4, 4, v{vL}
v_xor_b32 v3, v3, v4
v_lshl_add_u32 v15, v3, 4, v2
v_xor_b32 v3, 4, v3
v_lshl_add_u32 v16, v3, 4, v2
v_add_u32 v16, {8*642}, v16""")
    WD = [[f"s_add_u32 m0, s39, {arr*8192 + nh*1024}", f"buffer_load_dwordx4 v{15+nh}, s[{24 if arr == 0 else 4}:{27 if arr == 0 else 7}], s36 offen {ld} lds"] for arr in range(2) for nh in range(2)]
    BQ = XD[4:6] + WD + XD[6:10]
    e(sprinkle(phi_gen(), BQ, O['x_gap'], first=40))
    for d in BQ: e(d)
    BQ = XD[10:]
    st(2)
    phi_fix(e, "kx")
    e(f"""v_and_b32 v2, 15, v0
v_lshrrev_b32 v3, 4, v0
v_lshrrev_b32 v4, 1, v3
v_lshrrev_b32 v5, 1, v2
v_xor_b32 v4, v4, v5
v_lshlrev_b32 v4, 4, v4
v_and_b32 v5, 1, v3
v_lshl_or_b32 v4, v5, 3, v4
v_lshl_add_u32 v4, v2, 7, v4
v_add_u32 v15, {SIDE}, v4
v_lshlrev_b32 v3, 13, v3
v_lshl_add_u32 v16, v2, 4, v3
s_lshl_b32 s36, s30, 19
s_and_b32 s37, s2, 3
s_lshl_b32 s37, s37, 11
s_add_u32 s36, s36, s37
s_bfe_u32 s37, s2, 0x10002
s_lshl_b32 s37, s37, 10
s_add_u32 s36, s36, s37
s_bfe_u32 s37, s2, 0x20003
s_lshl_b32 s37, s37, 8
s_add_u32 s36, s36, s37
s_add_u32 s36, s36, {WT}
s_mov_b32 s48, 0x05040100
s_mov_b32 s49, 0x07060302
s_and_b32 s37, s30, 3
s_lshl_b32 s37, s37, 1
s_lshr_b32 s38, s28, 1
s_add_u32 s37, s37, s38
s_and_b32 s38, s28, 1
s_lshl_b32 s38, s38, 2
v_lshrrev_b32 v2, 4, v{vL}
v_add_u32 v2, s38, v2
s_and_b32 s38, s37, 3
s_lshl_b32 s38, s38, 1
v_bfe_u32 v3, v2, 1, 1
v_or_b32 v3, s38, v3
v_and_b32 v4, 7, v{vL}
v_xor_b32 v3, v3, v4
v_lshlrev_b32 v3, 4, v3
v_lshl_add_u32 v3, v2, 7, v3
v_bfe_u32 v4, v{vL}, 3, 1
v_mul_u32_u24 v4, 40960, v4
s_lshl_b32 s38, s37, 10
v_add3_u32 v14, s38, v3, v4
s_cmp_lt_u32 s30, 4
s_cselect_b32 s45, 0, 0x40000000
v_and_b32 v8, 3, v2
v_lshlrev_b32 v8, 2, v8
v_lshrrev_b32 v9, 2, v2
v_lshl_add_u32 v8, v9, 12, v8
v_add_u32 v8, s45, v8
v_lshl_add_u32 v9, v2, 2, s45
s_lshl_b32 s38, s29, 7
s_lshl_b32 s39, s37, 4
s_add_u32 s38, s38, s39
s_add_u32 s38, s38, {RB}
s_lshl_b32 s40, s29, 8
s_lshl_b32 s39, s37, 5
s_add_u32 s40, s40, s39
s_add_u32 s40, s40, {MU}
v_and_b32 v3, 15, v{vL}
v_cmp_eq_u32 s[34:35], 0, v3
v_and_b32 v2, 15, v{vL}
v_lshrrev_b32 v3, 2, v2
v_and_b32 v4, 3, v2
v_lshlrev_b32 v5, 10, v3
v_lshl_add_u32 v5, v4, 7, v5
v_lshrrev_b32 v4, 1, v4
v_lshl_or_b32 v3, v3, 1, v4
v_lshrrev_b32 v4, 4, v{vL}
v_xor_b32 v3, v3, v4
v_lshl_add_u32 v10, v3, 4, v5
v_xor_b32 v11, 64, v10
v_add_u32 v12, 40960, v10
v_add_u32 v13, 40960, v11""")
    e(f"""s_mul_i32 s12, s29, 81920
s_lshl_b32 s37, s30, 2
s_add_u32 s37, s37, s28
s_lshl_b32 s37, s37, 12
s_add_u32 s12, s12, s37
s_lshl_b32 s37, s28, 12
s_add_u32 s37, s37, {SIDE + 16384}
v_and_b32 v2, 7, v{vL}
v_lshrrev_b32 v3, 4, v{vL}
v_xor_b32 v3, v3, v2
v_and_b32 v4, 15, v{vL}
v_lshlrev_b32 v4, 7, v4
v_lshl_add_u32 v4, v3, 4, v4
v_add_u32 v248, s37, v4
v_xor_b32 v249, 64, v248
v_lshrrev_b32 v3, 3, v{vL}
v_xor_b32 v2, v2, v3
v_lshlrev_b32 v3, 7, v3
v_lshl_add_u32 v3, v2, 4, v3
v_add_u32 v18, s37, v3""")
    st(3)
    def xreads(s_, buf):
        u = s_ // 2
        return [f"ds_read_b128 {rng(FR+16*buf+4*t)}, v{10 + (s_ % 2) + (2 if u >= 5 else 0)} offset:{(u%5)*8192 + (t//2)*4096 + (t%2)*512}" for t in range(4)]
    xacc = lambda s_, t, p: ACC + 32*s_ + 8*t + 4*p
    def xm(s_, buf, first):
        return [f"{MF} {rng(xacc(s_//10,t,p))}, {rng(FR+16*buf+4*t)}, {rng(P(s_%10) if p == 0 else Q(s_%10))}, {'0' if first else rng(xacc(s_//10,t,p))}" for t in range(4) for p in range(2)]
    WDt, WO, ST = WG_, WG_ + 16, 244
    SQ = []
    def xextra(n):
        L = []
        if n % 4 == 0: L += [f"ds_read_b128 {rng(ST)}, v14 offset:{(n//4)*8192}"]
        if n < 10 and BQ: L += BQ.pop(0)
        if n == 5: L += [f"ds_read_b64 v[{WDt+8*arr+2*r}:{WDt+8*arr+2*r+1}], v15 offset:{(4*arr+r)*2048}" for arr in range(2) for r in range(4)]
        if n in (6, 7, 8, 9):
            for q in (n-6,):
                L += [f"v_perm_b32 v{WO+4*q+2*arr+rp}, v{WDt+8*arr+4*rp+2+q//2}, v{WDt+8*arr+4*rp+q//2}, s{48+q%2}" for arr in range(2) for rp in range(2)]
                L += [f"buffer_store_dwordx4 {rng(WO+4*q)}, v16, s[20:23], s36 offen sc1 #wts", f"s_add_u32 s36, s36, {16*8192}"]
        if n % 4 == 1:
            for d in range(ST, ST + 4):
                SQ.extend([f"v_lshlrev_b32 v2, 16, v{d}", f"v_and_b32 v3, 0xffff0000, v{d}"])
                if n == 1 and d == ST: SQ.extend(["v_mul_f32 v4, v2, v2", "v_mul_f32 v5, v3, v3", "v_add_f32 v6, v2, v3"])
                else: SQ.extend(["v_fmac_f32 v4, v2, v2", "v_fmac_f32 v5, v3, v3", "v_add_f32 v7, v2, v3", "v_add_f32 v6, v6, v7"])
        if n % 4:
            k = {1: 8, 2: 8, 3: 99}[n % 4] if n < 16 else {1: 12, 2: 99, 3: 0}[n % 4]
            L += SQ[:k]; del SQ[:k]
        if n == 10: L += nonce_load(250)
        if n == 19:
            L += ["v_add_f32 v4, v4, v5", "v_mov_b32 v5, v6"]
            for sh in (8, 4, 2, 1):
                L += [f"v_add_f32_dpp v4, v4, v4 row_ror:{sh} row_mask:0xf bank_mask:0xf", f"v_add_f32_dpp v5, v5, v5 row_ror:{sh} row_mask:0xf bank_mask:0xf"]
            L += [f"v_mul_f32 v5, {f2h(1/640)}, v5", f"v_mul_f32 v4, {f2h(1/640)}, v4", "v_fma_f32 v4, -v5, v5, v4", "v_max_f32 v4, 0, v4",
                  f"v_add_f32 v4, {f2h(EPS)}, v4", "v_rsq_f32 v4, v4", "s_nop 0", f"v_mul_f32 v4, {f2h(2.0**-11)}, v4",
                  "s_mov_b64 exec, s[34:35]\nbuffer_store_dword v4, v8, s[20:23], s38 offen sc1\nbuffer_store_dword v5, v9, s[20:23], s40 offen sc1\ns_mov_b64 exec, -1"]
        return L
    def early_flag():
        nonce_get(e, "kx", 250); flag_put(e, "kx0", FL0, 252)
    kloop(e, xreads, xm, xextra, st, 0, atbar=lambda c: ["@vm nonce", early_flag] if c == 4 else [])
    st(4)
    e(f"v_lshlrev_b32 v10, 4, v{vL}")
    for p in range(2):
        for h in range(2):
            o = FR + 8*p + 4*h
            for t in (2*h, 2*h+1):
                for rp in range(2):
                    d = xacc(0,t,p) + 2*rp; s_ = xacc(1,t,p) + 2*rp
                    e(f"v_pk_fma_f32 v[{d}:{d+1}], v[{s_}:{s_+1}], s[46:47], v[{d}:{d+1}]\nv_cvt_pk_bf16_f32 v{o+2*(t%2)+rp}, v{d}, v{d+1}")
            if p == 1 and h == 0:
                e("s_waitcnt lgkmcnt(0)")
                for i in range(2): e(f"buffer_store_dwordx4 {rng(FR+16+4*i)}, v10, s[20:23], s12 offen offset:{i*1024} sc1")
            e(f"v_and_b32 v{o}, -2, v{o}\nds_write_b128 v{248+h}, {rng(o)} offset:{p*2048}")
        e(f"s_waitcnt lgkmcnt(0)\nds_read_b128 {rng(FR+16+8*p)}, v18 offset:{p*2048}\nds_read_b128 {rng(FR+20+8*p)}, v18 offset:{p*2048+1024}")
    for i in (2, 3): e(f"s_waitcnt lgkmcnt({3-i})\nbuffer_store_dwordx4 {rng(FR+16+4*i)}, v10, s[20:23], s12 offen offset:{i*1024} sc1")
    st(45)
    e("@drain")
    e("s_barrier")
    flag_put(e, "kx1", FL1)
    st(6)
    e(f"""s_lshr_b32 s32, s2, 5
s_lshl_b32 s32, s32, 5
s_add_u32 s32, s32, s28
v_and_b32 v146, 7, v{vL}
v_lshl_add_u32 v146, v146, 2, s32
v_lshlrev_b32 v146, 7, v146
v_add_u32 v146, {FL0}, v146
buffer_load_dwordx2 v[144:145], v146, s[20:23], 0 offen sc1 #f0""")
    e(gemm_role)
    e(p2_consts())
    e(f"""v_bfe_u32 v2, v{vL}, 1, 1
v_bfe_u32 v3, v{vL}, 3, 1
v_lshl_or_b32 v2, v3, 1, v2
v_lshrrev_b32 v3, 4, v{vL}
v_xor_b32 v2, v2, v3
v_lshlrev_b32 v2, 4, v2
v_bfe_u32 v3, v{vL}, 2, 1
v_lshl_or_b32 v2, v3, 3, v2
v_and_b32 v3, 15, v{vL}
v_lshl_add_u32 v2, v3, 6, v2
s_lshl_b32 s32, s28, 10
s_add_u32 s32, s32, {RG}
v_add_u32 v16, s32, v2
v_xor_b32 v17, 8, v16
v_bfe_u32 v2, v{vL}, 3, 1
v_bfe_u32 v3, v{vL}, 5, 1
v_lshl_or_b32 v2, v3, 1, v2
v_and_b32 v3, 3, v{vL}
v_xor_b32 v2, v2, v3
v_lshlrev_b32 v2, 4, v2
v_bfe_u32 v3, v{vL}, 4, 1
v_lshl_or_b32 v2, v3, 3, v2
v_lshrrev_b32 v3, 2, v{vL}
v_lshl_add_u32 v2, v3, 6, v2
v_add_u32 v14, {RG}, v2
v_xor_b32 v15, 8, v14
v_bfe_u32 v2, v{vL}, 3, 1
s_lshl_b32 s32, s28, 1
v_add_u32 v2, s32, v2
v_lshrrev_b32 v3, 4, v{vL}
v_lshl_add_u32 v2, v2, 2, v3
v_and_b32 v4, 7, v{vL}
v_lshlrev_b32 v4, 4, v4
v_lshl_add_u32 v5, v2, 7, v4
s_mov_b32 s32, 81920
v_mad_u32_u24 v13, v2, s32, v4
s_lshr_b32 s33, s2, 3
s_lshl_b32 s33, s33, 12
s_and_b32 s34, s2, 7
s_lshl_b32 s34, s34, 8
s_add_u32 s33, s33, s34
s_mov_b32 s34, {RB}
s_add_u32 s35, s34, 4096
s_lshl_b32 s36, s2, 14
s_lshl_b32 s37, s28, 11
s_add_u32 s36, s36, s37
s_add_u32 s36, s36, {WT}
s_add_u32 s37, s36, 8192
v_min_u32 v6, 39, v{vL}
s_mul_i32 s32, s28, 40
v_add_u32 v6, s32, v6
v_lshlrev_b32 v6, 7, v6
v_add_u32 v6, {FL1}, v6""")
    wflag = [f"v_min_u32 v18, 9, v{vL}", "v_lshl_add_u32 v18, v18, 3, s30", "v_lshlrev_b32 v18, 7, v18", f"v_add_u32 v18, {FL1 + 160*128}, v18"]
    w1set = [f"v_lshlrev_b32 v10, 4, v{vL}", "v_add_u32 v11, 20480, v10", "v_add_u32 v12, 40960, v10", "s_mul_i32 s44, s30, 12", "s_mul_i32 s32, s28, 3",
             "s_add_u32 s44, s44, s32", "s_mul_i32 s44, s44, 20480", f"s_add_u32 s44, s44, {W1F}",
             ]
    for c in range(0):
        w1set += [f"s_add_u32 s{4+c}, s51, {c}", f"s_mul_i32 s32, s{4+c}, 52", "s_lshr_b32 s32, s32, 8", "s_mul_i32 s32, s32, 5", f"s_sub_u32 s{4+c}, s{4+c}, s32", f"s_lshl_b32 s{4+c}, s{4+c}, 12"]
    e(wflag); e(w1set)
    chk = ["v_cmp_ne_u64 vcc, s[10:11], v[144:145]"]
    e("@vm f0"); e(chk); e(retry_block("f0", ["buffer_load_dwordx2 v[144:145], v146, s[20:23], 0 offen sc1"], chk))
    for c in range(2):
        for t in range(2): e(f"buffer_load_dwordx4 {rng(wt(c,1,t))}, v10, s[20:23], s{36+c} offen offset:{t*1024} sc1 #wt{c}")
    e("v_mov_b32 v148, v5\nv_mov_b32 v149, v6\nbuffer_load_dwordx2 v[150:151], v6, s[20:23], 0 offen sc1 #f1")
    e(PHS); e(f"s_mul_i32 s32, s28, 10240\ns_add_u32 s32, s32, {RG + 32768}\nv_add_u32 v19, s32, v10")
    for ki in range(O["nst"]): e(phx(ki, lambda k, dt: 152 + 4*dt))
    st(7)
    chk = ["v_cmp_ne_u64 vcc, s[10:11], v[150:151]"]
    e("v_mov_b32 v5, v148\n@vm f1"); e(chk); e(retry_block("f1", ["buffer_load_dwordx2 v[150:151], v149, s[20:23], 0 offen sc1"], chk))
    e("s_barrier")
    st(8)
    RAW, RR, SC = ZF, ZF + 16, ZF + 24
    for c in range(2):
        for p in range(2):
            e(f"buffer_load_dwordx4 {rng(RAW+8*c+4*p)}, v13, s[20:23], s33 offen offset:{c*128 + p*2048} sc1 #x{c}{p}")
        if c == 0: e(f"buffer_load_dwordx4 {rng(RR)}, v5, s[20:23], s34 offen sc1\nbuffer_load_dwordx4 {rng(RR+4)}, v5, s[20:23], s35 offen sc1 #r")
    e("buffer_load_dwordx2 v[8:9], v18, s[20:23], 0 offen sc1 #wf")
    st(33)
    for c in range(2):
        for p in range(2):
            e(f"@vm {'r' if c == 0 else 'x1%d' % p}")
            if c == 0 and p == 0: st(34)
            raw = RAW + 8*c + 4*p
            for q in range(4):
                d = xi(c, p, 0) + 2*q
                e(f"v_lshlrev_b32 v{d}, 16, v{raw+q}\nv_and_b32 v{d+1}, 0xffff0000, v{raw+q}")
                e(f"v_pk_mul_f32 v[{TMP+2*q}:{TMP+2*q+1}], v[{d}:{d+1}], v[{RR+2*q}:{RR+2*q+1}]")
            o = SC + 8*c + 4*p
            for q in range(4): e(f"v_cvt_pk_bf16_f32 v{o+q}, v{TMP+2*q}, v{TMP+2*q+1}")
            e(f"ds_write_b64 v16, v[{o}:{o+1}] offset:{c*8192 + p*4096}\nds_write_b64 v17, v[{o+2}:{o+3}] offset:{c*8192 + p*4096}")
    st(35)
    e("@vm wf\nv_cmp_ne_u64 vcc, s[10:11], v[8:9]\ns_cbranch_vccnz kf_rt_wf\nkf_ok_wf:")
    st(36)
    e("s_waitcnt lgkmcnt(0)\ns_barrier")
    st(30)
    retries += [("wf", ["buffer_load_dwordx2 v[8:9], v18, s[20:23], 0 offen sc1"], ["v_cmp_ne_u64 vcc, s[10:11], v[8:9]"])]
    W1L = []
    for kp in range(20):
        for i in range(3):
            pre = [f"s_add_u32 s45, s44, {kp*1024}"] if (kp % 4 == 0 and i == 0) else []
            W1L.append(pre + [f"buffer_load_dwordx4 {arng(12*kp+4*i)}, v{10+i}, s[20:23], s45 offen offset:{(kp%4)*1024} sc1 #w1_{kp}"])
    W1Q = list(W1L)
    tw = lambda c, conj: cmul2(c, a1, lambda t: TC+4*t, lambda t: TS+4*t, conj)
    wm = lambda c: cmul2(c, a1, lambda t: wt(c, 0, t), lambda t: wt(c, 1, t), False)
    def unp(c):
        L = []
        for t in range(2):
            x, y = wt(c, 0, t), wt(c, 1, t)
            for (d, s_) in ((x, y), (x+2, y+1), (y, y+2), (y+2, y+3)): L += [f"v_lshlrev_b32 v{d}, 16, v{s_}", f"v_and_b32 v{d+1}, 0xffff0000, v{s_}"]
        return L
    def intro(base, inv):
        R0, R1 = trreads(0, base), trreads(1, base); A0 = stage64(0, inv)
        second = weave(A0[8:], R1[4:12])
        if not inv:
            U = unp(0); second = ["@vm wt0"] + [z for k in range(8) for z in (A0[8+k], R1[4+k], U[2*k], U[2*k+1])]
        return (R0[:12] + ["s_waitcnt lgkmcnt(4)"] + weave(A0[:8], R0[12:] + R1[:4]) + ["s_waitcnt lgkmcnt(4)"]
                + second + ["s_waitcnt lgkmcnt(4)"] + R1[12:])
    ov = lambda M, AB: weave(M, AB[0], 0, 1, 2) + AB[1]
    A1_ = stage64(1, False)
    seq = intro(0, False) + ["@vm wt1"] + weave(A1_[:8], unp(1), 0, 1, 2) + ["s_waitcnt lgkmcnt(0)"] + ov(A1_[8:], tw(0, True))
    seq += ov(stage32(0, False), tw(1, True)) + ov(stage32(1, False), wm(0)) + ov(stage32(0, True), wm(1)) + ov(stage32(1, True), tw(0, False))
    wr = lambda c: [f"ds_write_b64 v{16+h}, v[{pk(c,p)+2*h}:{pk(c,p)+2*h+1}] offset:{16384 + c*8192 + p*4096}" for p in range(2) for h in range(2)]
    U1 = tw(1, False)
    seq += wr(0) + U1[0] + U1[1] + wr(1)
    e(sprinkle(seq, W1Q, O["w1_gap"], limit=O["w1_p2"]))
    st(31)
    e("s_waitcnt lgkmcnt(0)\ns_barrier")
    st(32)
    e(intro(16384, True))
    e("s_cmp_eq_u32 s2, 159\ns_cselect_b32 s32, 0, -1")
    def fin(c):
        L = []
        for p in range(2):
            o = a1(c, p, 0)
            for q in range(4): L.append(f"v_cvt_pk_bf16_f32 v{o+q}, v{xi(c,p,0)+2*q}, v{xi(c,p,0)+2*q+1}")
            if c == 1 and p == 1: L += [f"v_and_or_b32 v{o}, v{o}, s32, 1"] + [f"v_and_b32 v{o+q}, s32, v{o+q}" for q in (1, 2, 3)]
            else: L.append(f"v_or_b32 v{o}, 1, v{o}")
            L.append(f"buffer_store_dwordx4 {rng(o)}, v13, s[20:23], s33 offen offset:{c*128 + p*2048} sc1")
        return L
    A1_ = stage64(1, True)
    e(A1_[:8] + ["s_waitcnt lgkmcnt(0)"] + weave(A1_[8:], fin(0), 0, 1, 2) + fin(1))
    st(9)
    e([f"ds_read_b128 {rng(ph(ki,dt))}, v19 offset:{(5*ki+dt)*1024}" for ki in range(O["nst"]) for dt in range(5)])
    e(sprinkle([x for ki in range(O["nst"], O["npre"]) for x in phx(ki)], W1Q, O["w1_gap"], limit=O["w1_pre"]))
    W1Q_after = list(W1Q)
    e("s_branch kf_join")
    vm_join = e.vm
    e.vm = VM()
    e("kf_notx:\ns_cmp_ge_u32 s2, 240\ns_cbranch_scc1 kf_spare")
    srd(e, 24, 52, 1966080)
    e("""s_sub_u32 s32, s2, 160
s_and_b32 s29, s32, 7
s_lshl_b32 s29, s29, 1
s_bfe_u32 s33, s32, 0x10003
s_add_u32 s29, s29, s33
s_lshr_b32 s30, s32, 4""")
    for k in range(3):
        div12(e, 2, 3, k)
        e(f"v_bfe_u32 v4, v2, 3, 1\nv_lshlrev_b32 v4, 1, v4\nv_xor_b32 v3, v3, v4\nv_mul_u32_u24 v2, 3072, v2\nv_lshl_add_u32 v{14+k}, v3, 4, v2")
    e("""s_lshr_b32 s32, s28, 1
s_and_b32 s33, s28, 1
s_mul_i32 s33, s33, 10
s_add_u32 s32, s32, s33
s_mul_i32 s41, s32, 6144
s_lshl_b32 s33, s30, 1
s_add_u32 s42, s32, s33
s_mul_i32 s40, s29, 192""")
    D = []
    for c in range(5):
        for hf in range(2):
            for k in range(3):
                d = []
                if hf == 0 and k == 0: d += [f"s_add_u32 s43, s42, {2*c}", "s_cmp_ge_u32 s43, 20", "s_cselect_b32 s44, 20, 0", "s_sub_u32 s43, s43, s44", "s_mul_i32 s43, s43, 98304", "s_add_u32 s43, s43, s40"]
                if hf == 1 and k == 0: d += ["s_add_u32 s43, s43, 49152"]
                d = [f"s_add_u32 m0, s41, {c*12288 + (3*hf+k)*1024}"] + d + [f"buffer_load_dwordx4 v{14+k}, s[24:27], s43 offen {ld} lds" + (f" #c{c}" if hf == 1 and k == 2 else "")]
                D.append(d)
    U_setup, U_dma, U_addr, U_frag = w2f_parts(ld, 2)
    e("s_sub_u32 s51, s2, 160"); e(U_setup)
    BQ = D[:O["w_n"]]
    e(sprinkle(phi_gen(), BQ, O["w_gap"], first=O.get("w_first", 10)))
    for d in BQ: e(d)
    e(U_addr + ["@mark uaddr"])
    BQ = U_dma + D[O["w_n"]:]
    st(2)
    phi_fix(e, "kw")
    e(f"""v_lshrrev_b32 v2, 4, v{vL}
v_bfe_u32 v3, v{vL}, 2, 2
v_lshl_add_u32 v3, v2, 3, v3
v_mul_u32_u24 v3, 192, v3
v_and_b32 v4, 3, v{vL}
v_lshl_add_u32 v3, v4, 3, v3
v_and_b32 v2, 1, v2
v_lshlrev_b32 v2, 5, v2
v_add_u32 v10, v3, v2
v_sub_u32 v11, v3, v2
v_add_u32 v11, 32, v11
v_add_u32 v12, 61440, v10
v_add_u32 v13, 61440, v11""")
    st(3)
    def wreads(s_, buf):
        return [f"ds_read_b64_tr_b16 v[{FR+24*buf+4*ft+2*h}:{FR+24*buf+4*ft+2*h+1}], v{10 + (ft % 2) + (2 if s_ >= 10 else 0)} offset:{(s_%10)*6144 + h*768 + 64*(ft//2)}" for ft in range(6) for h in range(2)]
    wacc = lambda s_, ft, p: ACC + 48*s_ + 8*ft + 4*p
    def wmf(s_, buf, first):
        return [f"{MF} {rng(wacc(s_//10,ft,p))}, {rng(P(s_%10) if p == 0 else Q(s_%10))}, {rng(FR+24*buf+4*ft)}, {'0' if first else rng(wacc(s_//10,ft,p))}" for ft in range(6) for p in range(2)]
    def wextra(n):
        L = []
        for _ in range(3):
            if BQ: L += BQ.pop(0)
        if n == 11: assert not BQ; L += nonce_load(18)
        return L
    UF = dict(zip(O["uf"], range(9)))
    kloop(e, wreads, wmf, wextra, st, 6, xlds=lambda n: (["@need uaddr", "@vm w2s"] + ([U_frag[UF[n]-1][1]] if UF[n] else []) + (U_frag[UF[n]][0] if UF[n] < 8 else [])) if n in UF else [])
    st(4)
    e(f"""s_mul_i32 s12, s29, {6*20*1024}
s_lshl_b32 s13, s30, 2
s_add_u32 s13, s13, s28
s_lshl_b32 s13, s13, 10
s_add_u32 s12, s12, s13
s_add_u32 s12, s12, {W1F}
v_lshlrev_b32 v14, 4, v{vL}""")
    for ft in range(6):
        o = FR + 4*ft
        for p in range(2):
            for rp in range(2):
                d = wacc(0,ft,p) + 2*rp; s_ = wacc(1,ft,p) + 2*rp
                e(f"v_pk_fma_f32 v[{d}:{d+1}], v[{s_}:{s_+1}], s[46:47], v[{d}:{d+1}]\nv_cvt_pk_bf16_f32 v{o+2*p+rp}, v{d}, v{d+1}")
        e(f"buffer_store_dwordx4 {rng(o)}, v14, s[20:23], s12 offen sc1 #w1f\ns_add_u32 s12, s12, 20480")
    e("@drain")
    nonce_get(e, "kv", 18); e("s_barrier"); flag_put(e, "kv1", FL1); st(37)
    e("s_branch kf_np2")
    e("kf_spare:"); e(nonce_load(18)); e("@drain"); nonce_get(e, "ks", 18)
    e("kf_np2:")
    st(6)
    e(gemm_role)
    e(wflag); e(w1set)
    flag_poll(e, "kn_w", 18, 200)
    st(8)
    third = """s_lshr_b32 s32, s2, 5
s_sub_u32 s32, s32, 5
s_lshl_b32 s32, s32, 2
s_add_u32 s32, s32, s28
s_mul_i32 s32, s32, 20480
s_mul_i32 s33, s30, 245760
s_add_u32 s32, s32, s33
s_add_u32 s33, s32, {0}
s_add_u32 s34, s33, 8192
s_add_u32 s35, s33, 12288"""
    touch = [f"buffer_load_dword v{200+k}, v203, s[20:23], s{33+k} offen sc1" for k in range(3)]
    e(f"v_lshlrev_b32 v203, 7, v{vL}")
    if O["touch"]: e(third.format(W1F)); e(touch)
    e(PHS)
    X = [x for ki in range(O["npre"]) for x in phx(ki)]
    NQ = list(W1L[:60 - len(W1Q_after)])
    e(sprinkle(X, NQ, O["np_gap"], first=O["np_first"]))
    for n in NQ: e(n)
    e(f"""s_and_b32 s32, s29, 3
s_lshl_b32 s32, s32, 3
s_lshr_b32 s33, s29, 2
s_add_u32 s32, s32, s33
v_lshl_add_u32 v2, v{vL}, 5, s32
v_subrev_u32 v19, 5, v{vL}
v_min_u32 v19, 7, v19
v_lshl_add_u32 v19, v19, 3, s30
v_add_u32 v19, 160, v19
v_cmp_gt_u32 vcc, 5, v{vL}
s_nop 0
v_cndmask_b32 v19, v19, v2, vcc
v_lshlrev_b32 v19, 7, v19
v_add_u32 v19, {FL1}, v19""")
    flag_poll(e, "kn_u", 19, 204)
    if O["touch2"]: e(third.format(W2F)); e(touch)
    st(9)
    e.vm = vm_join
    e("kf_join:")
    if W1Q: e(f"s_add_u32 s45, s44, {(60 - len(W1Q))//12*4096}")
    PHQ = [x for ki in range(O["npre"], 5) for x in phx(ki)]
    e(f"""s_mul_i32 s33, s29, 81920
s_lshl_b32 s39, s28, 12
s_add_u32 s33, s33, s39
v_bfe_u32 v2, v{vL}, 1, 2
v_bfe_u32 v12, v{vL}, 4, 2
v_xor_b32 v2, v2, v12
v_lshlrev_b32 v2, 5, v2
v_and_b32 v13, 1, v{vL}
v_lshl_or_b32 v2, v13, 4, v2
v_lshrrev_b32 v13, 3, v{vL}
v_lshl_add_u32 v13, v13, 7, v2
v_add_u32 v18, s39, v10""".replace("v12", "v204"))
    for c in range(1, 5): e(f"s_add_u32 s{34+c}, s33, {c*16384}")
    TG = SG
    hload = lambda c: [f"s_add_u32 m0, s39, {c*16384}\nbuffer_load_dwordx4 v13, s[20:23], s{33 if c == 0 else 34+c} offen offset:{q*1024} sc1 lds" + (f" #h{c}" if q == 3 else "") for q in range(4)]
    htag = lambda c: [f"ds_read_b32 v{TG+q}, v{18 if c < 4 else 19} offset:{(c%4)*16384 + q*1024}" for q in range(4)]
    hcheck = lambda c: [f"v_bitop3_b32 v2, v{TG}, v{TG+1}, v{TG+2} bitop3:0x80", f"v_bitop3_b32 v2, v2, v{TG+3}, 1 bitop3:0x80", "v_cmp_eq_u32 vcc, 0, v2"]
    hretry = lambda c: retry_block(f"h{c}", hload(c), htag(c) + ["s_waitcnt lgkmcnt(0)"] + hcheck(c))
    st(10)
    e(hload(0)); e(hload(1)); e(hload(2))
    e(f"""v_add_u32 v19, 0x10000, v18
v_lshrrev_b32 v2, 2, v{vL}
v_bfe_u32 v204, v2, 1, 2
v_and_b32 v205, 3, v{vL}
v_lshlrev_b32 v205, 3, v205
v_lshl_add_u32 v205, v2, 7, v205""")
    for u in range(4): e(f"s_add_u32 s{40+u}, s28, {u}\ns_and_b32 s{40+u}, s{40+u}, 3\nv_xor_b32 v2, s{40+u}, v204\nv_lshl_add_u32 v{14+u}, v2, 5, v205")
    e(f"s_mul_i32 s12, s30, 48\ns_mul_i32 s32, s28, 12\ns_add_u32 s12, s12, s32\ns_mul_i32 s12, s12, 5120\ns_add_u32 s12, s12, {W2F}")
    e("@vm h0"); e(htag(0)); e("s_waitcnt lgkmcnt(0)"); e(hcheck(0)); e(hretry(0))
    st(11)
    e("s_barrier")
    bf = lambda b, u: (BF + 16*b if b < 2 else SG + 4) + 4*u
    breads = lambda kp, b: [f"ds_read_b64_tr_b16 v[{bf(b,u)+2*h}:{bf(b,u)+2*h+1}], v{14+u} offset:{(kp%16)*4096 + h*2048}" for u in range(4) for h in range(2)]
    ac = lambda i, u: AC + 16*i + 4*u
    W2Q = []
    for n in range(60):
        m = n % 15
        m = n % 4
        pre = [f"s_add_u32 s13, s12, {n*1024}"] if m == 0 else []
        W2Q.append(pre + [f"buffer_load_dwordx4 {arng(4*n)}, v10, s[20:23], s13 offen offset:{(m%4)*1024} sc1"])
    B1, B1R, RT, FT = SG + 20, SG + 32, SG, SG + 20
    e(breads(0, 0)); e(breads(1, 1)[:6]); e("s_waitcnt lgkmcnt(6)"); e(breads(1, 1)[6:])
    sc1 = Sched(O["g1_vgap"])
    gram = lambda k: f"{MF} {rng(GR)}, {rng(bf(k%3,0))}, {rng(bf(k%3,0))}, {'0' if k == 0 else rng(GR)}"
    for kp in range(20):
        b = kp % 3; c = kp // 4; ph_ = kp % 4
        M = []
        if kp <= 16: M.append(gram(kp))
        for u in range(4):
            for i in range(3): M.append(f"{MF} {rng(ac(i,u))}, {arng(12*kp+4*i)}, {rng(bf(b,u))}, {'0' if kp == 0 else rng(ac(i,u))}")
        young = 12 if (ph_ == 1 and c < 4) else {18: 6, 19: 0}.get(kp, 8)
        e(f"@vm w1_{kp}\ns_waitcnt lgkmcnt({young})")
        if kp == 8: st(20)
        if kp == 16: st(21)
        lds, other = [], []
        if kp == 17:
            M = [gram(17)] + M[:8] + ["s_waitcnt lgkmcnt(8)", gram(18)] + M[8:]
        if kp == 18: M = [gram(19)] + M
        if kp < 18:
            if ph_ == 2 and c < 4:
                e(sc1(M[:2], [], [f"v_add_u32 v{14+u}, 0x10000, v{14+u}" for u in range(4)] if kp == 14 else [])); M = M[2:]; e("s_barrier")
            lds += breads(kp+2, (kp+2) % 3)
        if kp == 0: other += hload(3)
        if kp == 2: other += hload(4)
        if ph_ == 0 and c < 4: lds += [f"@vm h{c+1}\n" + htag(c+1)[0]] + htag(c+1)[1:]
        if ph_ == 1 and c < 4:
            e(sc1(M[:5], lds[:5], [], low=PHQ)); M = M[5:]; lds = lds[5:]
            other[:0] = ["s_waitcnt lgkmcnt(5)\n" + hcheck(c+1)[0]] + hcheck(c+1)[1:] + hretry(c+1)
        if kp == 4:
            other += [f"s_lshl_b32 s32, s28, 4\ns_add_u32 s32, s32, s30\ns_lshl_b32 s32, s32, 7\ns_add_u32 s32, s32, {FL1 + 160*128}", f"v_and_b32 v{FT}, 1, v{vL}", f"v_lshl_add_u32 v{FT}, v{FT}, 10, s32",
                      f"buffer_load_dwordx2 v[{FT+2}:{FT+3}], v{FT}, s[20:23], 0 offen sc1 #f2"]
        if kp == O["w2_start"]:
            chk = [f"v_cmp_ne_u64 vcc, s[10:11], v[{FT+2}:{FT+3}]"]
            other += ["@vm f2"] + chk + retry_block("f2", [f"buffer_load_dwordx2 v[{FT+2}:{FT+3}], v{FT}, s[20:23], 0 offen sc1"], chk)
        if kp == 11:
            other += ["s_mul_i32 s32, s30, 384\ns_mul_i32 s34, s28, 96\ns_add_u32 s32, s32, s34", f"v_lshrrev_b32 v2, 4, v{vL}", f"v_lshl_add_u32 v{B1R+4}, v2, 3, s32"]
            other += [f"global_load_dwordx2 v[{B1R+2*i}:{B1R+1+2*i}], v{B1R+4}, s[54:55] offset:{32*i}" for i in range(3)]
        if kp == 12:
            other += ["s_mul_i32 s32, s30, 160", f"v_lshrrev_b32 v2, 4, v{vL}", "v_lshl_add_u32 v246, v2, 4, s32", "v_lshl_add_u32 v250, v2, 3, s32",
                      "global_load_dwordx4 v[242:245], v246, s[58:59]", "global_load_dwordx4 v[246:249], v246, s[58:59] offset:64", "global_load_dwordx2 v[250:251], v250, s[58:59] offset:128"]
        if kp == 13:
            other += [f"s_lshl_b32 s32, s29, 8\ns_lshl_b32 s34, s28, 6\ns_add_u32 s32, s32, s34\ns_add_u32 s32, s32, {MU}",
                      f"v_and_b32 v13, 15, v{vL}", "v_lshlrev_b32 v13, 2, v13"]
        if kp == 15: other += ["buffer_load_dword v13, v13, s[20:23], s32 offen sc1 #b1"]
        if kp == 16:
            other += [f"v_and_b32 v2, 3, v{vL}", "v_cmp_eq_u32 vcc, 1, v2", "v_cmp_eq_u32 s[34:35], 2, v2", "v_cmp_eq_u32 s[36:37], 3, v2",
                      f"v_bfe_u32 v18, v{vL}, 2, 2", f"v_lshrrev_b32 v19, 4, v{vL}", "v_cmp_eq_u32 s[38:39], v18, v19", f"v_and_b32 v18, 15, v{vL}", "v_lshlrev_b32 v18, 2, v18",
                      f"s_lshl_b32 s32, s28, 6\ns_add_u32 s32, s32, {RX}", "v_add_u32 v19, s32, v18", f"v_add_u32 v18, {RX}, v18"]
        if kp == 18:
            other += ["@vm b1"]
            for i in range(3):
                for q in range(2): other += [f"v_and_b32 v{B1+4*i+2*q+1}, 0xffff0000, v{B1R+2*i+q}", f"v_lshlrev_b32 v{B1+4*i+2*q}, 16, v{B1R+2*i+q}"]
        if kp == 18:
            x5, x6, x7 = RT, RT+1, RT+2
            other += [f"v_cndmask_b32 v{x5}, v{GR}, v{GR+1}, vcc", f"v_cndmask_b32 v{x5}, v{x5}, v{GR+2}, s[34:35]", f"v_cndmask_b32 v{x5}, v{x5}, v{GR+3}, s[36:37]",
                      f"v_mul_f32 v{x5}, {f2h(2/640**2)}, v{x5}", f"v_add_f32 v{x6}, {f2h(EPS)}, v{x5}", f"v_rcp_f32 v{x7}, v{x6}", f"v_rsq_f32 v{x6}, v{x6}", f"v_fmaak_f32 v{x5}, v{x5}, v{x7}, {f2h(EPS)}",
                      f"v_rsq_f32 v{x5}, v{x5}", f"v_mul_f32 v{x6}, {f2h(2/640)}, v{x6}", f"v_mul_f32 v{x5}, v{x5}, v{x6}", f"s_mov_b64 exec, s[38:39]\nds_write_b32 v19, v{x5}\ns_mov_b64 exec, -1"]
        if kp == 19:
            assert not W1Q
            e(M[:2]); M = M[2:]; e("s_barrier")
            for u in range(4): other += [f"s_lshl_b32 s32, s{40+u}, 6\nv_add_u32 v19, s32, v18", f"ds_read_b32 v{GR+u}, v19"]
            other += [f"s_lshl_b32 s32, s29, 3\ns_add_u32 s32, s32, s30\ns_mul_i32 s32, s32, 24576\ns_add_u32 s32, s32, {G}\ns_lshl_b32 s33, s28, 10\ns_add_u32 s33, s33, s32",
                      "s_lshr_b32 s34, s28, 1\ns_add_u32 s34, s34, 4\ns_lshl_b32 s34, s34, 10\ns_add_u32 s34, s34, s32\ns_and_b32 s35, s28, 1\ns_lshl_b32 s35, s35, 9\ns_add_u32 s34, s34, s35",
                      "\n".join(f"s_mul_i32 s{36+u}, s{40+u}, 6144" for u in range(4)),
                      f"v_and_b32 v2, 31, v{vL}", "v_lshlrev_b32 v2, 4, v2", f"v_cmp_gt_u32 vcc, 32, v{vL}",
                      f"v_mov_b32 v{RT}, s36", f"v_mov_b32 v{RT+1}, s37", f"v_cndmask_b32 v{RT}, v{RT+1}, v{RT}, vcc", f"v_add_u32 v11, v2, v{RT}",
                      f"v_mov_b32 v{RT}, s38", f"v_mov_b32 v{RT+1}, s39", f"v_cndmask_b32 v{RT}, v{RT+1}, v{RT}, vcc", f"v_add_u32 v12, v2, v{RT}",
                      "\n".join(f"s_add_u32 s{36+u}, s{36+u}, s33" for u in range(4))]
        nb = O["g1_bg"] if kp >= O["g1_start"] else 0
        bgq = W1Q
        if not W1Q:
            bgq = W2Q; nb = min(nb, (12*(kp-1))//4 - (60 - len(W2Q))) if kp > O["w2_start"] else 0
        e(sc1(M, lds, other, bgq, nb, low=PHQ if 1 <= kp < 18 else None))
    assert not W1Q
    st(22)
    c1 = -2*math.log2(math.e)*math.sqrt(2/math.pi); c2 = c1*0.044715
    e(f"s_mov_b32 s46, {f2h(c2)}\ns_mov_b32 s47, {f2h(c2)}\ns_waitcnt lgkmcnt(0)\nv_mov_b32 v18, {f2h(c1)}\nv_mov_b32 v19, {f2h(c1)}")
    OUT = BF
    def gelu4(i, u, o, T):
        L = []; x = ac(i, u); p2 = lambda r: f"v[{r}:{r+1}]"
        for q in range(2): L.append(f"v_pk_fma_f32 {p2(x+2*q)}, {p2(x+2*q)}, {p2(GR+(u&2))}, {p2(B1+4*i+2*q)} op_sel:[0,{u&1},0] op_sel_hi:[1,{u&1},1]")
        for q in range(2): L.append(f"v_pk_mul_f32 {p2(T+2*q)}, {p2(x+2*q)}, {p2(x+2*q)}")
        for q in range(2): L.append(f"v_pk_fma_f32 {p2(T+2*q)}, {p2(T+2*q)}, s[46:47], v[18:19]")
        for q in range(2): L.append(f"v_pk_mul_f32 {p2(T+2*q)}, {p2(T+2*q)}, {p2(x+2*q)}")
        for r in range(4): L.append(f"v_exp_f32 v{T+r}, v{T+r}")
        for q in range(2): L.append(f"v_pk_add_f32 {p2(T+2*q)}, {p2(T+2*q)}, 1.0 op_sel_hi:[1,0]")
        for r in range(4): L.append(f"v_rcp_f32 v{T+r}, v{T+r}")
        for q in range(2): L.append(f"v_pk_mul_f32 {p2(T+2*q)}, {p2(T+2*q)}, {p2(x+2*q)}")
        for q in range(2): L.append(f"v_cvt_pk_bf16_f32 v{o+q}, v{T+2*q}, v{T+2*q+1}")
        return L
    L = []
    for u in range(4):
        o = OUT + 4*u
        L += gelu4(0, u, o, SG) + gelu4(1, u, o+2, SG+4) + [f"buffer_store_dwordx4 {rng(o)}, v10, s[20:23], s{36+u} offen sc1"]
        if u % 2 == 1:
            o = OUT + 16 + 4*(u//2)
            L += gelu4(2, u-1, o, SG) + gelu4(2, u, o+2, SG+4)
            L += [f"v_permlane32_swap_b32 v{o}, v{o+2}", f"v_permlane32_swap_b32 v{o+1}, v{o+3}", f"buffer_store_dwordx4 {rng(o)}, v{11+u//2}, s[20:23], s34 offen sc1 #gst"]
    cut = len(L) * 3 // 4
    e(sprinkle(L[:cut], W2Q, O["gelu_gap"])); e(L[cut:])
    st(23)
    A2, BF2, MB, GB, PS = 120, 204, 236, 20, 204
    a2 = lambda u, dt: A2 + 20*u + 4*dt
    bf2 = lambda b, u: BF2 + 16*b + 4*u
    gb = lambda b, ks: GB + 48*b + 4*ks
    e("s_mul_i32 s32, s28, 20480\ns_sub_u32 s32, s32, 0x10000")
    for u in range(4): e(f"v_add_u32 v{14+u}, s32, v{14+u}")
    br2 = lambda ki, b: [f"ds_read_b64_tr_b16 v[{bf2(b,u)+2*h}:{bf2(b,u)+2*h+1}], v{14+u} offset:{ki*4096 + h*2048}" for u in range(4) for h in range(2)]
    print("phi left for the third window:", len(PHQ), " W2 loads left:", len(W2Q))
    e(sprinkle(PHQ, W2Q, O["ext_gap"]))
    e(br2(0, 0))
    UB = []
    for q in [0, 1, 2, 3, 4, 5, 9, 8, 7, 6]:
        lo, hi = f"v_lshlrev_b32 v{MB+2*q}, 16, v{242+q}", f"v_and_b32 v{MB+2*q+1}, 0xffff0000, v{242+q}"
        UB += ([lo, hi] if q <= 5 else [hi, lo]) + [f"v_add_f32 v{MB+2*q}, v13, v{MB+2*q}", f"v_add_f32 v{MB+2*q+1}, v13, v{MB+2*q+1}"]
    UB += [f"s_lshl_b32 s32, s29, 3\ns_lshl_b32 s33, s28, 1\ns_add_u32 s32, s32, s33\ns_mul_i32 s32, s32, 24576\ns_add_u32 s32, s32, {G}",
           "\n".join(f"s_mul_i32 s{36+u}, s{40+u}, 6144\ns_add_u32 s{36+u}, s{36+u}, s32" for u in range(4)),
           f"s_lshl_b32 s32, s29, 3\ns_lshl_b32 s33, s28, 1\ns_add_u32 s33, s33, s32\ns_lshl_b32 s33, s33, 7\ns_add_u32 s33, s33, {FL3}",
           f"v_bfe_u32 v2, v{vL}, 2, 1", f"v_and_b32 v3, 3, v{vL}", "v_lshlrev_b32 v3, 3, v3", "v_lshl_add_u32 v3, v2, 7, v3", "v_add_u32 v11, s33, v3"]
    for gq in range(4):
        UB += [f"v_add_u32 v{6+gq}, {(gq//2)*24576 + (gq%2)*3072}, v10"]
    gflag = ["@vm gst", f"s_lshl_b32 s35, s29, 3\ns_add_u32 s35, s35, s30\ns_lshl_b32 s35, s35, 4\ns_add_u32 s35, s35, s28\ns_lshl_b32 s35, s35, 3\ns_add_u32 s35, s35, {FL3}",
             "v_mov_b32 v18, s10", "v_mov_b32 v19, s11", "v_mov_b32 v12, 0", "buffer_store_dwordx2 v[18:19], v12, s[20:23], s35 offen sc1"]
    def gl1(u, b, ks): return f"buffer_load_dwordx4 {rng(gb(b,ks))}, v{6 + ks//3}, s[20:23], s{36+u} offen offset:{(ks%3)*1024} sc1" + (f" #g{u}_{ks}")
    gload = lambda u, b: [gl1(u, b, ks) for ks in range(12)]
    for ki in range(5):
        M = [f"{MF} {rng(a2(u,dt))}, {rng(ph(ki,dt))}, {rng(bf2(ki%2,u))}, {'0' if ki == 0 else rng(a2(u,dt))}" for u in range(4) for dt in range(5)]
        e("s_waitcnt lgkmcnt(0)")
        if ki == O["gflag_ki"]: e(gflag[:1]); fl = gflag[1:]
        else: fl = []
        UB[:0] = fl
        e(sc1(M, br2(ki+1, 1-ki%2) if ki < 4 else [], UB, W2Q, 5, flush=(ki == 4)))
    for n in W2Q: e(n)
    e(f"s_mov_b32 s46, {f2h(2/640)}\ns_mov_b32 s47, {f2h(2/640)}")
    e("buffer_load_dwordx2 v[18:19], v11, s[20:23], 0 offen sc1 #gf")
    for u in range(1, 4): e(f"s_mul_i32 s33, s{40+u}, 15360\ns_add_u32 s33, s33, {RG + (u-1)*5120}\nv_add_u32 v{13+u}, s33, v10")
    e(f"s_mul_i32 s33, s28, 15360\ns_add_u32 s33, s33, {RG}\nv_add_u32 v17, s33, v10")
    e([f"v_pk_mul_f32 v[{A2+2*q}:{A2+2*q+1}], v[{A2+2*q}:{A2+2*q+1}], s[46:47]" for q in list(range(10, 40)) + list(range(10))])
    st(24)
    chk = ["v_cmp_ne_u64 vcc, s[10:11], v[18:19]"]
    e("@vm gf"); e(chk); e(retry_block("gf", ["buffer_load_dwordx2 v[18:19], v11, s[20:23], 0 offen sc1"], chk))
    e(gload(1, 0))
    st(25)
    order = [1, 2, 3, 0]
    srd(e, 16, 60, 2621440)
    for n, u in enumerate(order):
        b = n % 2
        first = []
        if n >= 1:
            pu = order[n-1]
            for dt in range(5): first += [f"ds_write_b128 v{13+pu}, {rng(a2(pu,dt))} offset:{dt*1024}"] + [""] * (3 if n < 3 else 5)
        if n == 3:
            first += ["s_waitcnt lgkmcnt(0)\ns_barrier"]
            for sidx in range(3):
                first += [f"ds_read_b128 {rng(PS+4*dt)}, v17 offset:{sidx*5120 + dt*1024}" for dt in range(5)]
                first += ["s_nop 0"]*4 + ["s_waitcnt lgkmcnt(0)"] + [f"v_add_f32 v{MB+q}, v{MB+q}, v{PS+q}" for q in range(20)]
        if n == 2:
            first += [f"s_lshr_b32 s32, s29, 2\ns_lshl_b32 s32, s32, 8\ns_and_b32 s33, s29, 3\ns_lshl_b32 s33, s33, 3\ns_add_u32 s32, s32, s33\ns_lshl_b32 s33, s28, 6\ns_add_u32 s32, s32, s33",
                      f"v_bfe_u32 v3, v{vL}, 3, 1", f"v_and_b32 v4, 7, v{vL}", "v_lshl_add_u32 v3, v3, 5, v4", "v_add_u32 v3, s32, v3", "v_mul_u32_u24 v3, 1280, v3",
                      f"v_lshrrev_b32 v5, 4, v{vL}", "v_lshl_add_u32 v4, v5, 4, v3", "v_lshl_add_u32 v5, v5, 3, v3", "s_mul_i32 s32, s30, 160"]
        X = []
        for ks in range(12):
            X.append(f"@vm g{u}_{ks}")
            for dt in range(5):
                X.append(f"{MF} {rng(a2(u,dt))}, {arng(20*ks+4*dt)}, {rng(gb(b,ks))}, {rng(a2(u,dt))}")
                k = 5*ks + dt
                if k >= 2:
                    for _ in range(2 if n == 3 else 1):
                        if first: X.append(first.pop(0))
                if dt == 0 and n + 1 < 4: X.append(gl1(order[n+1], 1-b, ks))
        e(X + first)
        if n == 1: st(26)
        if n == 3: st(27)
    for q in range(10):
        e(f"v_pk_add_f32 v[{A2+2*q}:{A2+2*q+1}], v[{A2+2*q}:{A2+2*q+1}], v[{MB+2*q}:{MB+2*q+1}]\nv_cvt_pk_bf16_f32 v{PS+q}, v{A2+2*q}, v{A2+2*q+1}")
        if q == 3: e(f"buffer_store_dwordx4 {rng(PS)}, v4, s[16:19], s32 offen")
        if q == 7: e(f"buffer_store_dwordx4 {rng(PS+4)}, v4, s[16:19], s32 offen offset:64")
    e(f"buffer_store_dwordx2 v[{PS+8}:{PS+9}], v5, s[16:19], s32 offen offset:128")
    e("kf_done:")
    S.flush(a, 14, 28)
    e("kf_exit:\ns_endpgm")
    for tag, loads, check in retries:
        a(f"kf_rt_{tag}:")
        for x in loads: a(x.split(" #")[0])
        a("s_sub_u32 s50, s50, 1\ns_cbranch_scc1 kf_fail\ns_waitcnt vmcnt(0)")
        for x in check: a(x)
        a(f"s_cbranch_vccnz kf_rt_{tag}\ns_branch kf_ok_{tag}")
    for d in O.get("drop", ()):
        a.items = [(k, "s_nop 0") if k == "i" and x.startswith("buffer_store") and d in x else (k, x) for k, x in a.items]
    if O.get("plainst"):
        a.items = [(k, x.replace(" sc1", O["plainst"][1])) if k == "i" and x.startswith("buffer_store") and any(d in x for d in O["plainst"][0]) else (k, x) for k, x in a.items]
    sites = []
    for i, (k, x) in enumerate(a.items):
        if k == "i" and x == "s_cbranch_scc1 kf_fail":
            sites.append(len(sites)); a.items[i] = (k, f"s_cbranch_scc1 kf_fail{sites[-1]}")
    for n in sites: a(f"kf_fail{n}:\ns_movk_i32 s3, {n}\ns_branch kf_fail")
    a("""kf_fail:
s_lshl_b32 s32, s2, 8
s_or_b32 s32, s32, s3
s_or_b32 s32, s32, 0x10000
v_mov_b32 v2, s32
s_and_b32 s32, s3, 31
s_lshl_b32 s32, s32, 2
s_add_u32 s32, s32, 16
v_mov_b32 v3, s32
global_store_dword v3, v2, s[62:63]
kf_last:
s_endpgm""")
    return a
```

```python
XH   = 0x000000
RB   = 0x280000
MU   = 0x282000
CT   = 0x290000
W1F  = 0x300000
W2F  = 0x500000
WT   = 0x700000
G    = 0xC00000
FL1  = 0x1200000
FL0  = 0x1208000
FL3  = 0x1210000
FL2  = 0x1218000
FLH  = 0x1220000
WSEND = 0x1228000
DBG  = 0x1400000
EPS = 1e-5
```

```python
import sys, io, contextlib
from build import *
import kf, k3diag
from layout import *
KF = lambda: ("kf_kernel", kf.build(), 512, 256, 96, 256, kf.LDS)
K3 = lambda kind, **k: ("k3_kernel", k3diag.build_k3(kind, **k), 16, 16, 32, 1, 64)
K0 = lambda **k: ("k0_kernel", k3diag.build_k0(**k), 32, 32, 96, 256, 0)
with contextlib.redirect_stdout(io.StringIO()):
    make([K0(), KF(), K3(("w",2,1))], "h0.s")
    make([K0(), KF(), K3(("w",2,2))], "h1.s")
    make([K0(base=G), KF(), K3(("w",2,2))], "h2.s")
    make([K0(base=W1F, n=4), KF(), K3(("w",2,2))], "h3.s")
    make([K0(n=4), KF(), K3(("w",2,2))], "h4.s")
    make([K0(base=G), KF(), K3(("w",2,3))], "h5.s")
```

```python
from asmlib import *
from layout import *
import math, re
import k2 as P2
from k2 import rng, arng, MF, FAc, TC, TS, ZF, TMP, wt, xi, zf, a1, pk, stage64, stage32, trreads, p2_consts, RG, RX

LDS = 163840
vL = 1
PHI, FR, ACC, WG_ = 20, 100, 148, 212
P = lambda i: PHI + 8*i
Q = lambda i: PHI + 8*i + 4
SIDE = 81920
SIDE2 = 122880
STEPS = [s for u in range(5) for s in (2*u, 2*u+10, 2*u+1, 2*u+11)]

class VM:
    def __init__(self): self.n = 0; self.tags = {}; self.done = 0
    def op(self, tag=None):
        self.n += 1
        if tag is not None: self.tags[tag] = self.n
    def wait(self, tag):
        t = self.tags[tag]
        if t <= self.done: return None
        self.done = t
        return f"s_waitcnt vmcnt({min(63, self.n - t)})"
class Emit:
    def __init__(self, a): self.a = a; self.vm = VM(); self.marks = set()
    def __call__(self, L):
        if isinstance(L, str): L = [L]
        for x in [y.strip() for z in L for y in z.split("\n")]:
            if not x: continue
            if x.startswith("@vm "):
                w = self.vm.wait(x[4:])
                if w: self.a(w)
                continue
            if x.startswith("@mark "): self.marks.add(x[6:]); continue
            if x.startswith("@need "):
                assert x[6:] in self.marks, x
                continue
            if x == "@drain":
                self.a("s_waitcnt vmcnt(0)"); self.vm.done = self.vm.n; continue
            tag = None
            if " #" in x: x, tag = x.split(" #")
            if x.startswith("buffer_") or x.startswith("global_"): self.vm.op(tag)
            self.a(x)

def srd(e, d, base, size):
    e(f"s_mov_b32 s{d}, s{base}\ns_and_b32 s{d+1}, s{base+1}, 0xffff\ns_mov_b32 s{d+2}, {size}\ns_mov_b32 s{d+3}, 0x20000")

def rot(dst, src, k):
    p2 = lambda r: f"v[{r}:{r+1}]"
    return [f"v_pk_mul_f32 {p2(dst)}, {p2(src)}, {p2(k)} op_sel_hi:[1,0]",
            f"v_pk_fma_f32 {p2(dst)}, {p2(src)}, {p2(k)}, {p2(dst)} op_sel:[1,1,0] op_sel_hi:[0,1,1] neg_lo:[1,0,0]"]

def phi_gen():
    ZA = lambda i: FR + 4*i; ZB = lambda i: FR + 4*i + 2; K = FR + 20
    H = ["s_lshl_b32 s31, s30, 6", "s_add_u32 s32, s31, s28", "s_add_u32 s32, s32, 1",
         f"v_and_b32 v2, 15, v{vL}", "v_lshl_add_u32 v2, v2, 2, s32", "v_cvt_f32_u32 v2, v2", f"v_mul_f32 v2, {f2h(1/640)}, v2",
         f"v_lshrrev_b32 v3, 4, v{vL}", "v_lshl_add_u32 v3, v3, 3, s31", "v_cvt_f32_u32 v3, v3", "v_mul_f32 v3, v3, v2",
         f"v_cos_f32 v{K}, v2", f"v_sin_f32_e64 v{K+1}, -v2"]
    for i in range(5):
        t = 4 + i % 2
        H += [f"v_fmamk_f32 v{t}, v2, {f2h(32*i)}, v3", f"v_cos_f32 v{ZA(i)}, v{t}", f"v_sin_f32_e64 v{ZA(i)+1}, -v{t}"]
    L = []
    for jp in range(4):
        R1 = [rot(ZB(i), ZA(i), K) for i in range(5)]
        L += [r[0] for r in R1] + [r[1] for r in R1]
        for i in range(5): L += [f"v_cvt_pk_bf16_f32 v{P(i)+jp}, v{ZA(i)}, v{ZB(i)}", f"v_cvt_pk_bf16_f32 v{Q(i)+jp}, v{ZA(i)+1}, v{ZB(i)+1}"]
        if jp < 3:
            R2 = [rot(ZA(i), ZB(i), K) for i in range(5)]
            L += [r[0] for r in R2] + [r[1] for r in R2]
    return H, L

def p2_consts_rot(T=196):
    from k2 import FAs, FAn, FBc, FBs, FBn
    L = [f"v_and_b32 v2, 15, v{vL}", "s_lshl_b32 s31, s28, 4", "v_add_u32 v2, s31, v2", "v_cvt_f32_u32 v2, v2",
         f"v_lshrrev_b32 v3, 4, v{vL}", "v_cvt_f32_u32 v3, v3",
         f"v_mul_f32 v4, {f2h(1/64)}, v2", "v_mul_f32 v5, 4.0, v3", "v_mul_f32 v5, v5, v4"]
    Z = lambda ch, j: T + 4 + 8*ch + 2*j
    def block(starts, consts, dc, ds, dn):
        X = []
        for ch, (sr, br, off) in enumerate(starts):
            X += [f"v_fmamk_f32 v{6+ch%2}, v{sr}, {f2h(off)}, v{br}", f"v_cos_f32 v{Z(ch,0)}, v{6+ch%2}", f"v_sin_f32 v{Z(ch,0)+1}, v{6+ch%2}"]
        for j in range(1, 4):
            R = [rot(Z(ch,j), Z(ch,j-1), consts[ch]) for ch in range(4)]
            X += [r[0] for r in R] + [r[1] for r in R]
        for ch in range(4):
            for q in range(2):
                X += [f"v_cvt_pk_bf16_f32 v{dc+2*ch+q}, v{Z(ch,2*q)}, v{Z(ch,2*q+1)}", f"v_cvt_pk_bf16_f32 v{ds+2*ch+q}, v{Z(ch,2*q)+1}, v{Z(ch,2*q+1)+1}"]
        return X + [f"v_xor_b32 v{dn+k}, 0x80008000, v{ds+k}" for k in range(8)]
    L += [f"v_cos_f32 v{T}, v4", f"v_sin_f32 v{T+1}, v4"]
    L += block([(4, 5, 16*ch) for ch in range(4)], [T]*4, FAc, FAs, FAn)
    L += [f"v_mul_f32 v4, {f2h(1/2048)}, v2", f"v_mul_f32 v3, {f2h(8.0)}, v3", "v_mul_f32 v5, v3, v4"]
    for k in range(8): L += [f"v_fmamk_f32 v{6+k%2}, v4, {f2h(k)}, v5", f"v_cos_f32 v{TC+k}, v{6+k%2}", f"v_sin_f32 v{TS+k}, v{6+k%2}"]
    L += [f"v_bfe_u32 v2, v{vL}, 2, 2", f"v_and_b32 v4, 3, v{vL}", "v_lshl_add_u32 v2, v2, 3, v4", "v_cvt_f32_u32 v2, v2",
          f"v_mul_f32 v4, {f2h(1/32)}, v2", f"v_add_f32 v8, {f2h(4/32)}, v4", "v_mul_f32 v5, v3, v4", "v_mul_f32 v9, v3, v8",
          f"v_cos_f32 v{T}, v4", f"v_sin_f32 v{T+1}, v4", f"v_cos_f32 v{T+2}, v8", f"v_sin_f32 v{T+3}, v8"]
    L += block([(4, 5, 0), (4, 5, 4), (8, 9, 0), (8, 9, 4)], [T, T, T+2, T+2], FBc, FBs, FBn)
    return L

def phi_fix(e, tag):
    e(f"s_lshl_b32 s32, s30, 2\ns_add_u32 s32, s32, s28\ns_cmp_eq_u32 s32, 19\ns_cbranch_scc0 {tag}_nofix")
    e(f"v_and_b32 v2, 15, v{vL}\nv_cmp_eq_u32 vcc, 15, v2\nv_mov_b32 v3, 0xbf353f35\nv_mov_b32 v4, 0")
    for i in range(5):
        for jp in range(4):
            e(f"v_cndmask_b32 v{P(i)+jp}, v{P(i)+jp}, v3, vcc\nv_cndmask_b32 v{Q(i)+jp}, v{Q(i)+jp}, v4, vcc")
    e(f"{tag}_nofix:")
    e("""s_add_u32 s32, s28, 1
s_and_b32 s32, s32, 2
s_cmp_lg_u32 s32, 0
s_cselect_b32 s33, 0x80008000, 0
s_cmp_lt_u32 s28, 2
s_cselect_b32 s34, 0x80008000, 0
s_bitcmp1_b32 s28, 0
s_cselect_b32 s46, 1.0, -1.0
s_cselect_b32 s47, 1.0, -1.0""")
    e(f"s_cbranch_scc1 {tag}_keep")
    for i in range(5):
        for jp in range(4): e(f"v_xor_b32 v{P(5+i)+jp}, s33, v{Q(i)+jp}\nv_xor_b32 v{Q(5+i)+jp}, s34, v{P(i)+jp}")
    e(f"s_branch {tag}_shifted\n{tag}_keep:")
    for i in range(5):
        for jp in range(4): e(f"v_xor_b32 v{P(5+i)+jp}, s33, v{P(i)+jp}\nv_xor_b32 v{Q(5+i)+jp}, s34, v{Q(i)+jp}")
    e(f"{tag}_shifted:")

def div12(e, row, pc, k):
    e(f"v_add_u32 v{pc}, {64*k}, v{vL}\nv_mul_u32_u24 v{row}, 5462, v{pc}\nv_lshrrev_b32 v{row}, 16, v{row}\nv_mul_u32_u24 v9, 12, v{row}\nv_sub_u32 v{pc}, v{pc}, v9")

def w2f_parts(ld, R, early=False):
    setup = ["s_mov_b32 s4, s56\ns_and_b32 s5, s57, 0xffff\ns_cmp_lt_u32 s51, 64\ns_cselect_b32 s6, 1966080, 0\ns_mov_b32 s7, 0x20000"]
    for k in range(3):
        setup += [f"v_add_u32 v3, {64*k}, v{vL}", "v_mul_u32_u24 v2, 5462, v3", "v_lshrrev_b32 v2, 16, v2", "v_mul_u32_u24 v4, 12, v2", "v_sub_u32 v3, v3, v4",
                  "v_mul_u32_u24 v2, 1280, v2", f"v_lshl_add_u32 v{244+k}, v3, 4, v2"]
    setup += ["s_lshr_b32 s36, s51, 3\ns_and_b32 s37, s51, 7\ns_mul_i32 s38, s36, 192\ns_mul_i32 s39, s28, 48\ns_add_u32 s38, s38, s39\ns_mul_i32 s38, s38, 1280",
              f"s_mul_i32 s48, s37, 160\ns_and_b32 s49, s48, 63\ns_sub_u32 s48, s48, s49\ns_add_u32 s38, s38, s48\ns_mul_i32 s39, s28, 9216\ns_add_u32 s39, s39, {SIDE2}"]
    dma = []
    for blk in range(3):
        for k in range(3):
            dma.append([f"s_add_u32 m0, s39, {(3*blk+k)*1024}"] + ([f"s_add_u32 s38, s38, {16*1280}"] if blk and k == 0 else [])
                       + [f"buffer_load_dwordx4 v{244+k}, s[4:7], s38 offen {ld} lds" + (" #w2s" if blk == 2 and k == 2 else "")])
    addr = [f"s_sub_u32 s13, s2, 160\ns_lshr_b32 s36, s13, 3\ns_and_b32 s37, s13, 7\ns_mul_i32 s13, s37, 160\ns_and_b32 s13, s13, 63\ns_mul_i32 s38, s28, 9216\ns_add_u32 s13, s13, s38\ns_add_u32 s13, s13, {SIDE2}",
            f"v_lshrrev_b32 v188, 2, v{vL}", "v_mul_u32_u24 v189, 192, v188", f"v_and_b32 v190, 3, v{vL}", "v_add_u32 v189, s13, v189",
            "v_lshl_add_u32 v180, v190, 4, v189", "v_lshl_add_u32 v181, v190, 3, v189", "v_and_b32 v188, 7, v188", "v_mul_u32_u24 v189, 192, v188", "v_add_u32 v189, s13, v189",
            f"v_lshrrev_b32 v191, 5, v{vL}", "v_lshl_add_u32 v182, v190, 4, v189", "v_lshl_add_u32 v182, v191, 3, v182", "v_lshl_add_u32 v183, v190, 3, v189",
            f"s_mul_i32 s36, s36, 6\ns_mul_i32 s37, s37, 48\ns_add_u32 s36, s36, s37\ns_add_u32 s37, s36, s28\ns_mul_i32 s37, s37, 5120\ns_add_u32 s37, s37, {W2F}",
            f"s_lshr_b32 s13, s28, 1\ns_add_u32 s36, s36, s13\ns_add_u32 s36, s36, 4\ns_mul_i32 s36, s36, 5120\ns_add_u32 s36, s36, {W2F}\ns_and_b32 s13, s28, 1\ns_lshl_b32 s13, s13, 9\ns_add_u32 s36, s36, s13",
            f"v_and_b32 v187, 31, v{vL}", "v_lshlrev_b32 v187, 4, v187", "v_lshl_add_u32 v185, v191, 10, v187", "v_add_u32 v186, 4096, v10", "v_add_u32 v187, 4096, v187"]
    frag = []
    for j in range(8):
        r = R + 4*(j % 2 if early else j)
        if j < 4: rd = [f"v180 offset:{h*16*192 + 64*(j//2) + 8*(j%2)}" for h in range(2)]; stv = f"v10, s[20:23], s37 offen offset:{j*1024}"
        elif j == 4: rd = [f"v181 offset:{h*16*192 + 128}" for h in range(2)]; stv = "v186, s[20:23], s37 offen"
        elif j < 7: rd = [f"v182 offset:{32*192 + h*8*192 + 64*(j-5)}" for h in range(2)]; stv = f"v185, s[20:23], s36 offen offset:{(j-5)*2048}"
        else: rd = [f"v183 offset:{32*192 + h*8*192 + 128}" for h in range(2)]; stv = "v187, s[20:23], s36 offen"
        frag.append(([f"ds_read_b64_tr_b16 v[{r+2*h}:{r+2*h+1}], {rd[h]}" for h in range(2)], f"buffer_store_dwordx4 {rng(r)}, {stv} sc1"))
    if early:
        ren = {"v180": "v247", "v181": "v248", "v182": "v249", "v183": "v250", "v185": "v251", "v186": "v252", "v187": "v253",
               "v188": "v2", "v189": "v3", "v190": "v4", "v191": "v5", "v10": "v17"}
        sub = lambda x: re.sub(r"v1?\d\d\b|v10\b", lambda m_: ren.get(m_.group(0), m_.group(0)), x)
        addr = ["s_cmp_lt_u32 s2, 224\ns_cselect_b32 s8, 0, 0x40000000", f"v_lshl_add_u32 v17, v{vL}, 4, s8"] + [sub(x).replace("s38", "s12") for x in addr]
        addr = [x.replace("v_lshlrev_b32 v253, 4, v253", "v_lshl_add_u32 v253, v253, 4, s8") for x in addr]
        frag = [([sub(x) for x in rd], sub(st_)) for rd, st_ in frag]
    return setup, dma, addr, frag

def kloop(e, reads, mfmas, extra, stp, half, xlds=lambda n: []):
    e("@vm c0\ns_barrier"); stp(5)
    nb = 2 if half else 3
    for k in range(nb - 1): e(reads(STEPS[k], k))
    seen = set(); sc = Sched(4); pend = []
    for n, st in enumerate(STEPS):
        first = (st // 10) not in seen; seen.add(st // 10)
        M = mfmas(st, n % nb, first)
        nx = n + nb - 1
        Rd = reads(STEPS[nx], nx % nb) if nx < 20 else []
        xl = extra(n)
        newchunk = nx < 20 and nx % 4 == 0
        if not half:
            Rd = Rd + [x for x in xl if x.startswith("ds_read")]; pend += [x for x in xl if not x.startswith("ds_read")]
            e(f"s_waitcnt lgkmcnt({4 if n < 19 else 0})")
            if newchunk:
                e(sc(M[:2], [], pend, flush=False)); M = M[2:]
                e(f"@vm c{nx//4}\ns_barrier"); stp(40 + nx//4)
            e(sc(M, Rd, pend, flush=(n == 19)))
            continue
        pend += xl
        if not newchunk and nx < 20:
            e(f"s_waitcnt lgkmcnt({len(Rd) - half})")
            h = len(M) // 2
            e(xlds(n))
            e(sc(M[:h], Rd[:h], pend, flush=False)); e(f"s_waitcnt lgkmcnt({h})"); e(sc(M[h:], Rd[h:], pend, flush=False))
        elif newchunk:
            h = len(M) // 2
            e(f"s_waitcnt lgkmcnt({len(Rd) - half})")
            e(sc(M[:2], [], pend, flush=False))
            e(f"@vm c{nx//4}\ns_barrier"); stp(40 + nx//4)
            e(sc(M[2:h], Rd[:h-2], pend, flush=False)); e(f"s_waitcnt lgkmcnt({h-2})"); e(sc(M[h:], Rd[h-2:], pend, flush=False))
        else:
            h = len(M) // 2
            e(f"s_waitcnt lgkmcnt({half})"); e(sc(M[:h], [], pend, flush=False)); e("s_waitcnt lgkmcnt(0)"); e(sc(M[h:], [], pend))

def gclear(e):
    e(f"""s_lshl_b32 s32, s29, 3
s_add_u32 s32, s32, s30
s_mul_i32 s32, s32, 24576
s_mul_i32 s33, s28, 6144
s_add_u32 s32, s32, s33
s_add_u32 s32, s32, {G}
s_add_u32 s33, s32, 4096
v_mov_b32 v4, 0
v_mov_b32 v5, 0
v_mov_b32 v6, 0
v_mov_b32 v7, 0
v_lshlrev_b32 v10, 4, v{vL}""")
    for i in range(6): e(f"buffer_store_dwordx4 v[4:7], v10, s[20:23], s{32 + i//4} offen offset:{(i%4)*1024} sc1")

def nonce_get(e, tag, R):
    e(f"""{tag}_n0:
v_readfirstlane_b32 s10, v{R}
v_readfirstlane_b32 s11, v{R+1}
s_cmp_lg_u32 s10, 0
s_cbranch_scc1 {tag}_n1
s_sub_u32 s50, s50, 1
s_cbranch_scc1 kf_fail
v_mov_b32 v{R}, 0""")
    e.a(f"global_load_dwordx2 v[{R}:{R+1}], v{R}, s[62:63] sc1\ns_waitcnt vmcnt(0)\ns_branch {tag}_n0\n{tag}_n1:")

def nonce_load(R): return [f"v_mov_b32 v{R}, 0", f"global_load_dwordx2 v[{R}:{R+1}], v{R}, s[62:63] sc1 #nonce"]

def flag_put(e, tag, base, R=2):
    e(f"""s_cmp_lg_u32 s28, 0
s_cbranch_scc1 {tag}_f
s_lshl_b32 s32, s2, 7
s_add_u32 s32, s32, {base}
v_mov_b32 v{R}, s10
v_mov_b32 v{R+1}, s11
v_mov_b32 v{R+2}, 0""")
    e.a(f"buffer_store_dwordx2 v[{R}:{R+1}], v{R+2}, s[20:23], s32 offen sc1\n{tag}_f:")

def flag_poll(e, tag, vaddr, R, back=4):
    e(f"""s_branch {tag}_q
{tag}_p:
s_sleep {back}
{tag}_q:
buffer_load_dwordx2 v[{R}:{R+1}], v{vaddr}, s[20:23], 0 offen sc1
s_sub_u32 s50, s50, 1
s_cbranch_scc1 kf_fail
@drain
v_cmp_ne_u64 vcc, s[10:11], v[{R}:{R+1}]
s_cbranch_vccnz {tag}_p""")

def cmul2(c, src, wr, wi, conj):
    A, B = [], []
    for t in range(2):
        for rp in range(2):
            T = TMP + 4*((2*t+rp) % 2)
            re, im, x, y = src(c, 0, t) + 2*rp, src(c, 1, t) + 2*rp, wr(t) + 2*rp, wi(t) + 2*rp
            cv = [f"v_cvt_pk_bf16_f32 v{pk(c,0)+2*t+rp}, v{T}, v{T+1}", f"v_cvt_pk_bf16_f32 v{pk(c,1)+2*t+rp}, v{T+2}, v{T+3}"]
            if t == 0:
                for k in range(2): A += [f"v_mul_f32 v{T+k}, v{re+k}, v{x+k}", f"v_mul_f32 v{T+2+k}, v{im+k}, v{x+k}"]
                for k in range(2):
                    if conj: A += [f"v_fmac_f32 v{T+k}, v{im+k}, v{y+k}", f"v_fma_f32 v{T+2+k}, -v{re+k}, v{y+k}, v{T+2+k}"]
                    else:    A += [f"v_fma_f32 v{T+k}, -v{im+k}, v{y+k}, v{T+k}", f"v_fmac_f32 v{T+2+k}, v{re+k}, v{y+k}"]
                A += cv
            else:
                p2 = lambda r: f"v[{r}:{r+1}]"
                neg = " neg_lo:[1,0,0] neg_hi:[1,0,0]"
                B += [f"v_pk_mul_f32 {p2(T)}, {p2(re)}, {p2(x)}", f"v_pk_mul_f32 {p2(T+2)}, {p2(im)}, {p2(x)}",
                      f"v_pk_fma_f32 {p2(T)}, {p2(im)}, {p2(y)}, {p2(T)}" + ("" if conj else neg),
                      f"v_pk_fma_f32 {p2(T+2)}, {p2(re)}, {p2(y)}, {p2(T+2)}" + (neg if conj else "")] + cv
    return A, B

def build(diag=False, spin=1<<16, ld="", opt={}):
    O = dict(x_gap=45, w1_p2=34, w1_gap=58, w1_pre=22, npre=4, wpre=0, nst=1, f1_at=0.1, eq_gap=10, ctab=False, np_gap=60, np_first=100, mapB=True, idrot=240, xtouch=False, relay=True, whead=False, x2split=True, opre_kp=99, opre_fl='sc1', biasa=False, nst2=1, gflag_at=0.5, lean=True, lean_w=True, wt_post=False, share1=False, share2=False, w2_lag=0, np_early=True, wf_at=0.2, tlb=0, wt_late=True, w_late=0, g1_bg2=3, gelu_cut=0.95, f0_n=17, x_n=14, nostat=False, unit_at=0, hint=True, prew=False, gpre_kp=99, uf=[1, 2, 4, 5, 6, 8, 9, 10, 12], uearly=False, u_pos=6, g1_start=1, g1_vgap=4, touch=False, touch2=False, g1_bg=3, gelu_gap=90, pf=True, w2_start=8, gflag_ki=1, ext_gap=75, w_gap=50, w_n=16); O.update(opt)
    a = Asm(); e = Emit(a); S = Stamps(bool(diag))
    smap = {"A": {i: i for i in range(1, 12)},
            "B": {9: 1, 10: 2, 11: 3, 20: 4, 21: 5, 22: 6, 23: 7, 24: 8, 25: 9, 26: 10, 27: 11},
            "G": {22: 1, 23: 2, 80: 3, 81: 4, 86: 5, 82: 6, 83: 7, 84: 8, 24: 9, 25: 10, 87: 11},
            "F": {8: 1, 70: 2, 71: 3, 72: 4, 73: 5, 74: 6, 9: 7, 10: 8, 11: 9},
            "E": {11: 1, 50: 2, 51: 3, 52: 4, 53: 5, 54: 6, 55: 7, 56: 8, 57: 9, 58: 10, 60: 11},
            "D": {1: 1, 40: 2, 2: 3, 5: 4, 41: 5, 42: 6, 43: 7, 44: 8, 4: 9, 45: 10, 6: 11},
            "C": {8: 1, 33: 2, 34: 3, 35: 4, 36: 5, 30: 6, 31: 7, 32: 8, 9: 9, 37: 10, 38: 11}}.get(diag, {})
    st = lambda i: S(a, smap[i]) if i in smap else None
    S.nowait = diag == 'Z'
    S.start(a)
    e(f"""s_cmp_ge_u32 s2, 256
s_cbranch_scc1 kf_exit
{"s_add_u32 s2, s2, %d" % O["idrot"] if O["idrot"] else ""}
{"s_and_b32 s2, s2, 255" if O["idrot"] else ""}
s_load_dwordx4 s[4:7], s[0:1], 0
s_load_dwordx2 s[8:9], s[0:1], 16
s_load_dwordx8 s[52:59], s[0:1], 32
s_load_dwordx4 s[60:63], s[0:1], 64
s_load_dwordx2 s[14:15], s[0:1], 80
s_memrealtime s[12:13]
v_lshrrev_b32 v2, 6, v0
v_and_b32 v{vL}, 63, v0
v_readfirstlane_b32 s28, v2
s_and_b32 s29, s2, 7
s_lshl_b32 s29, s29, 2
s_bfe_u32 s32, s2, 0x20003
s_add_u32 s29, s29, s32
s_lshr_b32 s30, s2, 5
s_mov_b32 s50, {spin}""")
    if O["pf"]:
        e(f"""s_getpc_b64 s[32:33]
kf_pc:
s_lshr_b32 s34, s2, 3
s_lshl_b32 s34, s34, 11
v_and_b32 v2, 127, v0
v_lshl_add_u32 v2, v2, 4, s34
s_mov_b32 s35, kf_last-kf_pc-16
v_min_u32 v2, s35, v2
v_and_b32 v2, -16, v2
v_mov_b32 v3, s33
v_add_co_u32 v2, vcc, s32, v2
v_addc_co_u32 v3, vcc, 0, v3, vcc""")
        a("global_load_dwordx4 v[240:243], v[2:3], off")
    e("s_cmp_ge_u32 s2, 160\ns_cbranch_scc1 kf_notx")
    pos_split = len(a.items)
    PH, AC, GR, BF, SG = 20, 120, 168, 172, 204
    ph = lambda ki, dt: PH + 20*ki + 4*dt
    DN = [0, 252, 253, 254, 255]
    PHS = [f"v_bfe_u32 v2, v{vL}, 2, 2", f"v_and_b32 v3, 3, v{vL}", "v_lshl_add_u32 v2, v2, 3, v3", "s_mul_i32 s32, s30, 80",
          "v_add_u32 v2, s32, v2", f"v_and_b32 v3, 15, v{vL}", "v_add_u32 v3, s32, v3", "s_movk_i32 s9, 320"]
    for dt in range(5):
        off = 32*(dt//2) + 4*(dt%2) if dt < 4 else 64
        PHS += [f"v_add_u32 v4, {off}, v{2 if dt < 4 else 3}", "v_subrev_u32 v5, 640, v4", "v_cmp_le_u32 vcc, s9, v4", "s_nop 0",
              "v_cndmask_b32 v4, v4, v5, vcc", "v_cvt_f32_i32 v4, v4", f"v_mul_f32 v{DN[dt]}, {f2h(1/640)}, v4"]
    PHS += [f"v_lshrrev_b32 v2, 4, v{vL}", "s_cmp_eq_u32 s28, 3", "s_cselect_b32 s9, 3, 4", "v_cmp_eq_u32 s[48:49], s9, v2", "s_mul_i32 s31, s28, 5"]
    phk = lambda PT: [x for dt in range(5) for x in (f"v_mul_f32 v{4+dt%2}, 4.0, v{DN[dt]}", f"v_cos_f32 v{PT+2*dt}, v{4+dt%2}", f"v_sin_f32_e64 v{PT+2*dt+1}, -v{4+dt%2}")]
    PHK = phk(196)
    def phx(ki, dst=None, PT=196):
        ph_ = dst or ph
        Z = lambda dt, j: PT + 10 + 8*dt + 2*j
        X = [f"s_add_u32 s9, s31, {ki}", "s_lshr_b32 s51, s9, 2", "s_lshl_b32 s51, s51, 6", "s_and_b32 s9, s9, 3", "s_add_u32 s9, s9, s51", "s_add_u32 s9, s9, 1",
             f"v_and_b32 v3, 48, v{vL}", "v_add_u32 v3, s9, v3", "v_cvt_f32_u32 v3, v3"]
        for dt in range(5): X += [f"v_mul_f32 v{4+dt%2}, v3, v{DN[dt]}", f"v_cos_f32 v{Z(dt,0)}, v{4+dt%2}", f"v_sin_f32_e64 v{Z(dt,0)+1}, -v{4+dt%2}"]
        X += [f"s_mov_b32 s8, {f2h(2/640)}"] + [f"v_pk_mul_f32 v[{Z(dt,0)}:{Z(dt,0)+1}], v[{Z(dt,0)}:{Z(dt,0)+1}], s[8:9] op_sel_hi:[1,0]" for dt in range(5)]
        for j in range(1, 4):
            R = [rot(Z(dt,j), Z(dt,j-1), PT+2*dt) for dt in range(5)]
            X += [r[0] for r in R] + [r[1] for r in R]
        for dt in range(5):
            if ki == 4: X += [f"v_mul_f32 v4, {f2h(math.sqrt(0.5))}, v{Z(dt,3)}", f"v_cndmask_b32 v{Z(dt,3)}, v{Z(dt,3)}, v4, s[48:49]"]
            for q in range(2):
                X += [f"v_cvt_pk_bf16_f32 v{ph_(ki,dt)+q}, v{Z(dt,2*q)}, v{Z(dt,2*q+1)}", f"v_cvt_pk_bf16_f32 v{ph_(ki,dt)+2+q}, v{Z(dt,2*q)+1}, v{Z(dt,2*q+1)+1}"]
            if dst: X += [f"ds_write_b128 v19, {rng(ph_(ki,dt))} offset:{(5*ki+dt)*1024}"]
        return X
    gemm_role = ["s_bfe_u32 s29, s2, 0x20001", "s_lshl_b32 s29, s29, 3", "s_lshr_b32 s32, s2, 5", "s_add_u32 s29, s29, s32",
               "s_and_b32 s30, s2, 1", "s_lshl_b32 s30, s30, 2", "s_bfe_u32 s32, s2, 0x20003", "s_add_u32 s30, s30, s32"]
    if not O['mapB']: gemm_role = ["s_and_b32 s29, s2, 7", "s_lshl_b32 s29, s29, 2", "s_bfe_u32 s32, s2, 0x20003", "s_add_u32 s29, s29, s32", "s_lshr_b32 s30, s2, 5"]
    retries = []
    def retry_block(tag, loads, check):
        retries.append((tag, loads, check)); return [f"s_cbranch_vccnz kf_rt_{tag}\nkf_ok_{tag}:"]
    def warm_pages(R):
        if not O["tlb"]: return
        st_, n = O["tlb"], -(-WSEND // O["tlb"])
        for k in range(-(-n // 64)):
            e(f"v_add_u32 v{R}, {64*k}, v{vL}\nv_min_u32 v{R}, {n-1}, v{R}\nv_mul_u32_u24 v{R}, {st_}, v{R}")
            a(f"buffer_load_dword v{R}, v{R}, s[20:23], 0 offen")
        e(f"v_min_u32 v{R+1}, {2621440//st_}, v{vL}\nv_mul_u32_u24 v{R+1}, {st_}, v{R+1}\nv_min_u32 v{R+1}, 2621436, v{R+1}\nv_mov_b32 v{R+2}, 0\nv_mov_b32 v{R+3}, 0")
        a(f"global_load_dword v{R+1}, v{R+1}, s[60:61]\nglobal_load_dword v{R+2}, v{R+2}, s[54:55]\nglobal_load_dword v{R+3}, v{R+3}, s[58:59]")
    GH, GL = phi_gen()
    e(f"""s_lshr_b32 s32, s29, 2
s_lshl_b32 s32, s32, 8
s_and_b32 s33, s29, 3
s_lshl_b32 s33, s33, 3
s_add_u32 s32, s32, s33
s_lshl_b32 s33, s28, 5
s_add_u32 s32, s32, s33
v_lshrrev_b32 v2, 3, v{vL}
v_add_u32 v5, s32, v2
v_mul_u32_u24 v5, 1280, v5
v_bfe_u32 v3, v{vL}, 4, 1
s_lshl_b32 s33, s28, 1
v_or_b32 v3, s33, v3
v_and_b32 v4, 7, v{vL}
v_xor_b32 v3, v3, v4
v_lshl_add_u32 v17, v3, 4, v5
v_add_u32 v19, 163840, v17
s_lshl_b32 s41, s28, 10
s_lshl_b32 s43, s30, 7
s_mov_b32 s42, s43
s_add_u32 s44, s43, 640""")
    if O["xtouch"]:
        e(f"""s_lshl_b32 s33, s30, 2
s_add_u32 s33, s33, s28
s_lshl_b32 s33, s33, 5
v_and_b32 v6, 31, v{vL}
v_add_u32 v6, s33, v6
v_mul_u32_u24 v7, 6554, v6
v_lshrrev_b32 v7, 16, v7
v_mul_u32_u24 v8, 10, v7
v_sub_u32 v6, v6, v8
v_lshrrev_b32 v8, 3, v7
v_and_b32 v7, 7, v7
v_lshl_add_u32 v7, v8, 5, v7
s_lshl_b32 s33, s28, 5
s_sub_u32 s33, s32, s33
v_add_u32 v7, s33, v7
v_mul_u32_u24 v7, 1280, v7
v_lshl_add_u32 v6, v6, 7, v7""")
    if not O["lean"]: e(GH)
    e("s_waitcnt lgkmcnt(0)")
    st(1)
    srd(e, 16, 4, 2621440)
    if O["xtouch"]: a("buffer_load_dword v6, v6, s[16:19], 0 offen")
    XD = []
    for c in range(5):
        for k, u in enumerate((c, c+5)):
            sr = (42, 44)[k]
            adv = [f"s_add_u32 s{sr}, s{sr}, 128"] + ([f"s_cmp_eq_u32 s{sr}, 1280", f"s_cselect_b32 s{sr}, 0, s{sr}"] if k else [])
            XD.append([f"s_add_u32 m0, s41, {8*u*1024}"] + (adv if c else []) + [f"buffer_load_dwordx4 v17, s[16:19], s{sr} offen {ld} lds"])
            XD.append([f"s_add_u32 m0, s41, {(8*u+4)*1024}", f"buffer_load_dwordx4 v19, s[16:19], s{sr} offen {ld} lds" + (f" #c{c}" if k else "")])
    for d in XD[:4]: e(d)
    st(40)
    if O["lean"]: e(GH)
    srd(e, 20, 14, WSEND + (0x2000000 if O.get('dummy') else 0)); srd(e, 24, 6, 1314816); srd(e, 4, 8, 1314816)
    warm_pages(244)
    e("""s_or_b32 s32, s2, s28
s_cmp_lg_u32 s32, 0
s_cbranch_scc1 kf_nononce
s_or_b32 s12, s12, 1
v_mov_b32 v2, s12
v_mov_b32 v3, s13
v_mov_b32 v4, 0""")
    a("global_store_dwordx2 v4, v[2:3], s[62:63] sc1\nkf_nononce:")
    XA0 = f"""s_and_b32 s36, s2, 3
s_lshl_b32 s36, s36, 4
s_bfe_u32 s37, s2, 0x30002
s_lshl_b32 s37, s37, 2
s_add_u32 s37, s37, s28
s_lshl_b32 s37, s37, 6
s_add_u32 s36, s36, s37
s_mul_i32 s36, s36, 642
s_add_u32 s36, s36, s43
s_add_u32 s36, s36, 2
s_lshl_b32 s39, s28, 11
s_add_u32 s39, s39, {SIDE}
v_lshrrev_b32 v2, 3, v{vL}
v_mul_u32_u24 v2, 642, v2
v_lshrrev_b32 v3, 4, v{vL}
v_and_b32 v4, 7, v{vL}
v_xor_b32 v3, v3, v4
v_lshl_add_u32 v15, v3, 4, v2
v_xor_b32 v3, 4, v3
v_lshl_add_u32 v16, v3, 4, v2
v_add_u32 v16, {8*642}, v16""".split("\n")
    if not O['wt_late']: e(XA0)
    WD = [[f"s_add_u32 m0, s39, {arr*8192 + nh*1024}", f"buffer_load_dwordx4 v{15+nh}, s[{24 if arr == 0 else 4}:{27 if arr == 0 else 7}], s36 offen {ld} lds"] for arr in range(2) for nh in range(2)]
    BQ = XD[4:O['x_n']] if O['wt_late'] else XD[4:6] + WD + XD[6:O['x_n']]
    e(sprinkle(GL, BQ, O['x_gap'], first=0))
    st(2)
    phi_fix(e, "kx")
    for d in BQ: e(d)
    BQ = XD[O['x_n']:]
    if O['wt_late']: BQ = XD[O['x_n']:14] + [XA0] + WD + [['@mark wd']] + XD[14:]
    if O['wt_post']: WD[-1][-1] += " #wd"; BQ = XD[O['x_n']:] + [XA0] + WD + [['@mark wd']]
    e(f"""v_and_b32 v2, 15, v{vL}
v_lshrrev_b32 v3, 2, v2
v_and_b32 v4, 3, v2
v_lshlrev_b32 v5, 10, v3
v_lshl_add_u32 v5, v4, 7, v5
v_lshrrev_b32 v4, 1, v4
v_lshl_or_b32 v3, v3, 1, v4
v_lshrrev_b32 v4, 4, v{vL}
v_xor_b32 v3, v3, v4
v_lshl_add_u32 v10, v3, 4, v5
v_xor_b32 v11, 64, v10
v_add_u32 v12, 40960, v10
v_add_u32 v13, 40960, v11""")
    XA1 = f"""v_and_b32 v2, 15, v0
v_lshrrev_b32 v3, 4, v0
v_lshrrev_b32 v4, 1, v3
v_lshrrev_b32 v5, 1, v2
v_xor_b32 v4, v4, v5
v_lshlrev_b32 v4, 4, v4
v_and_b32 v5, 1, v3
v_lshl_or_b32 v4, v5, 3, v4
v_lshl_add_u32 v4, v2, 7, v4
v_add_u32 v15, {SIDE}, v4
@mark xa1
v_lshlrev_b32 v3, 13, v3
v_lshl_add_u32 v16, v2, 4, v3
s_lshl_b32 s36, s30, 19
s_and_b32 s37, s2, 3
s_lshl_b32 s37, s37, 11
s_add_u32 s36, s36, s37
s_bfe_u32 s37, s2, 0x10002
s_lshl_b32 s37, s37, 10
s_add_u32 s36, s36, s37
s_bfe_u32 s37, s2, 0x20003
s_lshl_b32 s37, s37, 8
s_add_u32 s36, s36, s37
s_add_u32 s36, s36, {WT}
s_mov_b32 s48, 0x05040100
s_mov_b32 s49, 0x07060302""".split("\n")
    XA2 = f"""s_mul_i32 s12, s29, 81920
s_lshl_b32 s37, s30, 2
s_add_u32 s37, s37, s28
s_lshl_b32 s37, s37, 12
s_add_u32 s12, s12, s37
s_lshl_b32 s37, s28, 12
s_add_u32 s37, s37, {SIDE + 16384}
v_and_b32 v2, 7, v{vL}
v_lshrrev_b32 v3, 4, v{vL}
v_xor_b32 v3, v3, v2
v_and_b32 v4, 15, v{vL}
v_lshlrev_b32 v4, 7, v4
v_lshl_add_u32 v4, v3, 4, v4
v_add_u32 v248, s37, v4
v_xor_b32 v249, 64, v248
v_lshrrev_b32 v3, 3, v{vL}
v_xor_b32 v2, v2, v3
v_lshlrev_b32 v3, 7, v3
v_lshl_add_u32 v3, v2, 4, v3
v_add_u32 v18, s37, v3
v_lshlrev_b32 v14, 4, v{vL}""".split("\n")
    st(3)
    def xreads(s_, buf):
        u = s_ // 2
        return [f"ds_read_b128 {rng(FR+16*buf+4*t)}, v{10 + (s_ % 2) + (2 if u >= 5 else 0)} offset:{(u%5)*8192 + (t//2)*4096 + (t%2)*512}" for t in range(4)]
    xacc = lambda s_, t, p: ACC + 32*s_ + 8*t + 4*p
    def xm(s_, buf, first):
        return [f"{MF} {rng(xacc(s_//10,t,p))}, {rng(FR+16*buf+4*t)}, {rng(P(s_%10) if p == 0 else Q(s_%10))}, {'0' if first else rng(xacc(s_//10,t,p))}" for t in range(4) for p in range(2)]
    WDt, WO = WG_, WG_ + 16
    def wave_flag(base, R):
        return [f"s_lshl_b32 s32, s2, 4\ns_add_u32 s32, s32, s28\ns_lshl_b32 s32, s32, 3\ns_add_u32 s32, s32, {base}", f"v_mov_b32 v{R}, s10", f"v_mov_b32 v{R+1}, s11", f"v_mov_b32 v{R+2}, 0",
                f"buffer_store_dwordx2 v[{R}:{R+1}], v{R+2}, s[20:23], s32 offen sc1"]
    nA, nR, nP = ((8, 9), 11, 14) if O["wt_late"] else ((0, 2), 3, 6)
    if O["wt_post"]: nA, nR, nP = (13, 14), 99, 99
    def xextra(n):
        L = []
        for _ in range(2 if O["wt_late"] and n < 6 else 1):
            if BQ: L += BQ.pop(0)
        if n == nA[0]: L += (["@need wd"] if O["wt_late"] else []) + XA1[:11]
        if n == nA[1]: L += XA1[11:]
        if n == (12 if O["wt_late"] else 11): L += XA2
        if n == nR: e("@need xa1")
        if n in (nR, nR+1): L += [f"ds_read_b64 v[{WDt+8*(n-nR)+2*r}:{WDt+8*(n-nR)+2*r+1}], v15 offset:{(4*(n-nR)+r)*2048}" for r in range(4)]
        if nP <= n < nP + 4:
            q = n - nP
            L += [f"v_perm_b32 v{WO+4*q+2*arr+rp}, v{WDt+8*arr+4*rp+2+q//2}, v{WDt+8*arr+4*rp+q//2}, s{48+q%2}" for arr in range(2) for rp in range(2)]
            L += [f"buffer_store_dwordx4 {rng(WO+4*q)}, v16, s[20:23], s36 offen sc1 #wts", f"s_add_u32 s36, s36, {16*8192}"]
        if n == (4 if O["wt_post"] else 10): L += nonce_load(250)
        if n == O["f0_n"]:
            chk = ["v_readfirstlane_b32 s10, v250", "v_readfirstlane_b32 s11, v251", "v_cmp_eq_u32 vcc, 0, v250"]
            L += ["@vm nonce"] + chk + retry_block("nx", ["v_mov_b32 v250, 0", "global_load_dwordx2 v[250:251], v250, s[62:63] sc1"], chk) + ([] if O["wt_late"] else wave_flag(FL0, 252))
        return L
    kloop(e, xreads, xm, xextra, st, 0)
    st(4)
    for p in range(2):
        for h in range(2):
            o = FR + 8*p + 4*h
            for t in (2*h, 2*h+1):
                for rp in range(2):
                    d = xacc(0,t,p) + 2*rp; s_ = xacc(1,t,p) + 2*rp
                    e(f"v_pk_fma_f32 v[{d}:{d+1}], v[{s_}:{s_+1}], s[46:47], v[{d}:{d+1}]\nv_cvt_pk_bf16_f32 v{o+2*(t%2)+rp}, v{d}, v{d+1}")
            if p == 1 and h == 0:
                e("s_waitcnt lgkmcnt(0)")
                for i in range(2): e(f"buffer_store_dwordx4 {rng(FR+16+4*i)}, v14, s[20:23], s12 offen offset:{i*1024} sc1")
            e(f"v_and_b32 v{o}, -2, v{o}\nds_write_b128 v{248+h}, {rng(o)} offset:{p*2048}")
        e(f"s_waitcnt lgkmcnt(0)\nds_read_b128 {rng(FR+16+8*p)}, v18 offset:{p*2048}\nds_read_b128 {rng(FR+20+8*p)}, v18 offset:{p*2048+1024}")
    for i in (2, 3): e(f"s_waitcnt lgkmcnt({3-i})\nbuffer_store_dwordx4 {rng(FR+16+4*i)}, v14, s[20:23], s12 offen offset:{i*1024} sc1")
    st(45)
    F = wave_flag(FL1, 2)
    if O["wt_post"]:
        e("@vm wd\ns_barrier")
        e([f"ds_read_b64 v[{WDt+2*k}:{WDt+2*k+1}], v15 offset:{k*2048}" for k in range(8)])
        e(F[:-1]); e("s_waitcnt lgkmcnt(0)\ns_barrier")
        e([f"v_perm_b32 v{WO+4*q+2*arr+rp}, v{WDt+8*arr+4*rp+2+q//2}, v{WDt+8*arr+4*rp+q//2}, s{48+q%2}" for q in range(4) for arr in range(2) for rp in range(2)])
        e("@drain"); e(F[-1:])
        for q in range(4): e(f"buffer_store_dwordx4 {rng(WO+4*q)}, v16, s[20:23], s36 offen sc1 #wts\ns_add_u32 s36, s36, {16*8192}")
    else:
        e(F[:-1]); e("@drain"); e(F[-1:])
    st(6)
    e(f"""s_and_b32 s32, s2, 0xe0
s_add_u32 s32, s32, s28
s_lshl_b32 s32, s32, 7
s_bfe_u32 s33, s2, 0x20001
s_lshl_b32 s33, s33, 3
s_add_u32 s32, s32, s33
s_add_u32 s32, s32, {FL1 if O["wt_late"] and not O["wt_post"] else FL0}
v_and_b32 v146, 7, v{vL}
v_lshl_add_u32 v146, v146, 9, s32
s_lshl_b32 s32, s28, 8
s_add_u32 s32, s32, {FL1 + 240*128}
v_and_b32 v144, 1, v{vL}
v_lshl_add_u32 v144, v144, 7, s32
v_bfe_u32 v145, v{vL}, 1, 1
v_lshl_add_u32 v144, v145, 10, v144
""")
    if O["wt_late"]: e("v_mov_b32 v143, v146\nv_mov_b32 v146, v144")
    else: e(f"v_cmp_gt_u32 vcc, 8, v{vL}\ns_nop 0\nv_cndmask_b32 v146, v144, v146, vcc")
    if O["ctab"]: e(f"""s_lshl_b32 s32, s28, 3
s_add_u32 s32, s32, {FL0 + 228*128}
v_min_u32 v144, 14, v{vL}
v_lshl_add_u32 v144, v144, 7, s32
v_cmp_gt_u32 vcc, 12, v{vL}
s_nop 0
v_cndmask_b32 v146, v144, v146, vcc""")
    e("buffer_load_dwordx2 v[144:145], v146, s[20:23], 0 offen sc1 #f0")
    e(gemm_role)
    if not O['ctab']: e(p2_consts_rot())
    if O["wt_post"]: e("@vm wts"); e(wave_flag(FL0, 2))
    e(f"""v_bfe_u32 v2, v{vL}, 1, 1
v_bfe_u32 v3, v{vL}, 3, 1
v_lshl_or_b32 v2, v3, 1, v2
v_lshrrev_b32 v3, 4, v{vL}
v_xor_b32 v2, v2, v3
v_lshlrev_b32 v2, 4, v2
v_bfe_u32 v3, v{vL}, 2, 1
v_lshl_or_b32 v2, v3, 3, v2
v_and_b32 v3, 15, v{vL}
v_lshl_add_u32 v2, v3, 6, v2
s_lshl_b32 s32, s28, 10
s_add_u32 s32, s32, {RG}
v_add_u32 v16, s32, v2
v_xor_b32 v17, 8, v16
v_bfe_u32 v2, v{vL}, 3, 1
v_bfe_u32 v3, v{vL}, 5, 1
v_lshl_or_b32 v2, v3, 1, v2
v_and_b32 v3, 3, v{vL}
v_xor_b32 v2, v2, v3
v_lshlrev_b32 v2, 4, v2
v_bfe_u32 v3, v{vL}, 4, 1
v_lshl_or_b32 v2, v3, 3, v2
v_lshrrev_b32 v3, 2, v{vL}
v_lshl_add_u32 v2, v3, 6, v2
v_add_u32 v14, {RG}, v2
v_xor_b32 v15, 8, v14
v_bfe_u32 v2, v{vL}, 3, 1
s_lshl_b32 s32, s28, 1
v_add_u32 v2, s32, v2
v_lshrrev_b32 v3, 4, v{vL}
v_lshl_add_u32 v2, v2, 2, v3
v_and_b32 v4, 7, v{vL}
v_lshlrev_b32 v4, 4, v4
v_lshl_add_u32 v147, v2, 7, v4
s_mov_b32 s32, 81920
v_mad_u32_u24 v13, v2, s32, v4
s_lshr_b32 s33, s2, 3
s_lshl_b32 s33, s33, 12
s_and_b32 s34, s2, 7
s_lshl_b32 s34, s34, 8
s_add_u32 s33, s33, s34
s_mov_b32 s34, {RB}
s_add_u32 s35, s34, 4096
s_lshl_b32 s36, s2, 14
s_lshl_b32 s37, s28, 11
s_add_u32 s36, s36, s37
s_add_u32 s36, s36, {WT}
s_add_u32 s37, s36, 8192
s_and_b32 s32, s2, 0xe0
s_lshl_b32 s38, s28, 1
s_add_u32 s32, s32, s38
s_lshl_b32 s32, s32, 7
s_bfe_u32 s38, s2, 0x20003
s_lshl_b32 s38, s38, 3
s_add_u32 s32, s32, s38
s_add_u32 s32, s32, {FL1}
v_and_b32 v6, 3, v{vL}
v_lshl_add_u32 v6, v6, 10, s32
v_bfe_u32 v7, v{vL}, 2, 1
v_lshl_add_u32 v149, v7, 7, v6""")
    if O["wt_late"]: e(f"v_cmp_gt_u32 vcc, 8, v{vL}\ns_nop 0\nv_cndmask_b32 v149, v143, v149, vcc")
    wflag = [f"s_lshr_b32 s32, s28, 1\ns_lshl_b32 s32, s32, 3\ns_add_u32 s32, s32, s30\ns_lshl_b32 s32, s32, 7\ns_add_u32 s32, s32, {FL1 + 160*128}",
             f"v_min_u32 v18, 19, v{vL}", "v_and_b32 v7, 3, v18", "v_lshrrev_b32 v18, 2, v18", "v_lshl_add_u32 v18, v18, 11, s32", "v_lshl_add_u32 v18, v7, 3, v18"]
    tileflag = lambda R: [f"s_and_b32 s32, s29, 3\ns_lshl_b32 s32, s32, 3\ns_lshr_b32 s38, s29, 2\ns_add_u32 s32, s32, s38\ns_lshl_b32 s32, s32, 7\ns_add_u32 s32, s32, {FL1}\ns_lshl_b32 s38, s38, 7\ns_add_u32 s38, s38, {FL1 + 240*128}",
                          f"v_lshrrev_b32 v{R}, 2, v{vL}", f"v_lshl_add_u32 v{R}, v{R}, 12, s32", f"v_and_b32 v{R+1}, 3, v{vL}", f"v_lshl_add_u32 v{R}, v{R+1}, 3, v{R}",
                          f"v_and_b32 v{R+1}, 1, v{vL}", f"v_lshl_add_u32 v{R+1}, v{R+1}, 10, s38", f"v_cmp_gt_u32 vcc, 20, v{vL}", "s_nop 0", f"v_cndmask_b32 v{R}, v{R+1}, v{R}, vcc"]
    biasld = ["s_mul_i32 s32, s30, 384\ns_mul_i32 s38, s28, 96\ns_add_u32 s32, s32, s38", f"v_lshrrev_b32 v2, 4, v{vL}", "v_lshl_add_u32 v3, v2, 3, s32"]
    biasld += [f"global_load_dwordx2 a[{240+2*i}:{241+2*i}], v3, s[54:55] offset:{32*i}" for i in range(3)]
    biasld += ["s_mul_i32 s32, s30, 160", "v_lshl_add_u32 v3, v2, 4, s32", "v_lshl_add_u32 v4, v2, 3, s32",
               "global_load_dwordx4 a[246:249], v3, s[58:59]", "global_load_dwordx4 a[250:253], v3, s[58:59] offset:64", "global_load_dwordx2 a[254:255], v4, s[58:59] offset:128"]
    def outpre(R, fl):
        return [f"s_mov_b32 s16, s60\ns_and_b32 s17, s61, 0xffff\ns_mov_b32 s18, 2621440\ns_mov_b32 s19, 0x20000",
                "s_lshr_b32 s32, s29, 2\ns_lshl_b32 s32, s32, 8\ns_and_b32 s3, s29, 3\ns_lshl_b32 s3, s3, 3\ns_add_u32 s32, s32, s3\ns_lshl_b32 s3, s28, 6\ns_add_u32 s32, s32, s3",
                f"v_lshrrev_b32 v{R}, 5, v{vL}", f"v_bfe_u32 v{R+1}, v{vL}, 2, 3", f"v_lshl_add_u32 v{R}, v{R}, 5, v{R+1}", f"v_add_u32 v{R}, s32, v{R}", f"v_mul_u32_u24 v{R}, 1280, v{R}",
                f"v_and_b32 v{R+1}, 3, v{vL}", f"v_lshl_add_u32 v{R+2}, v{R+1}, 4, v{R}", f"v_lshl_add_u32 v{R+1}, v{R+1}, 3, v{R}", "s_mul_i32 s3, s30, 160",
                f"buffer_store_dwordx4 {rng(R)}, v{R+2}, s[16:19], s3 offen {fl}", f"buffer_store_dwordx4 {rng(R)}, v{R+2}, s[16:19], s3 offen offset:64 {fl}",
                f"buffer_store_dwordx2 v[{R}:{R+1}], v{R+1}, s[16:19], s3 offen offset:128 {fl}"]
    def share(base, R):
        return [f"s_lshr_b32 s32, s2, 5\ns_lshl_b32 s32, s32, 2\ns_add_u32 s32, s32, s28\ns_mul_i32 s32, s32, 7680\ns_mul_i32 s38, s30, 245760\ns_add_u32 s38, s38, s32\ns_add_u32 s38, s38, {base}",
                f"v_min_u32 v{R}, 59, v{vL}", f"v_lshlrev_b32 v{R}, 7, v{R}", f"buffer_load_dword v{R}, v{R}, s[20:23], s38 offen sc1"]
    w1set = [f"v_lshlrev_b32 v10, 4, v{vL}", "v_add_u32 v11, 20480, v10", "v_add_u32 v12, 40960, v10", "s_mul_i32 s44, s30, 12", "s_mul_i32 s32, s28, 3",
             "s_add_u32 s44, s44, s32", "s_mul_i32 s44, s44, 20480", f"s_add_u32 s44, s44, {W1F}",
             ]
    for c in range(0):
        w1set += [f"s_add_u32 s{4+c}, s51, {c}", f"s_mul_i32 s32, s{4+c}, 52", "s_lshr_b32 s32, s32, 8", "s_mul_i32 s32, s32, 5", f"s_sub_u32 s{4+c}, s{4+c}, s32", f"s_lshl_b32 s{4+c}, s{4+c}, 12"]
    e(wflag); e(w1set)
    if O["opre_kp"] == -1: e(outpre(140, O["opre_fl"]))
    if O["biasa"]: e(biasld)
    RAW, RR, SC = ZF, ZF + 40, ZF + 24
    e(PHS); e(f"s_mul_i32 s32, s28, 10240\ns_add_u32 s32, s32, {RG + 32768}\nv_add_u32 v19, s32, v10\ns_lshl_b32 s38, s28, 14\ns_add_u32 s38, s38, {CT}")
    chk = ["v_cmp_ne_u64 vcc, s[10:11], v[144:145]"]
    e("@vm f0")
    e(chk); e(retry_block("f0", ["buffer_load_dwordx2 v[144:145], v146, s[20:23], 0 offen sc1"], chk))
    EQ = [[f"buffer_load_dwordx4 {rng(RR+4*h)}, v147, s[20:23], s{34+h} offen sc1"] for h in range(2)]
    for k in range(16 if O["ctab"] else 0): EQ.append(([f"s_add_u32 s38, s38, 4096"] if k and k % 4 == 0 else []) + [f"buffer_load_dwordx4 {rng(FAc+4*k)}, v10, s[20:23], s38 offen offset:{(k%4)*1024} sc1"])
    WQ = [[f"buffer_load_dwordx4 {rng(wt(c,1,t))}, v10, s[20:23], s{36+c} offen offset:{t*1024} sc1 #wt{c}"] for c in range(2) for t in range(2)]
    if not O["wt_late"]: EQ += WQ
    X = (PHK if O["nst"] + O["nst2"] else []) + [x for ki in range(O["nst"]) for x in phx(ki, lambda k, dt: 152 + 4*dt)]
    cut = int(len(X) * O["f1_at"])
    e(sprinkle(X[:cut], EQ, O["eq_gap"], first=0))
    for n in EQ: e(n)
    e("buffer_load_dwordx2 v[150:151], v149, s[20:23], 0 offen sc1 #f1")
    e(X[cut:])
    st(7)
    chk = ["v_cmp_ne_u64 vcc, s[10:11], v[150:151]"]
    e("@vm f1"); e(chk); e(retry_block("f1", ["buffer_load_dwordx2 v[150:151], v149, s[20:23], 0 offen sc1"], chk))
    st(8)
    for c in range(2):
        for p in range(2):
            e(f"buffer_load_dwordx4 {rng(RAW+8*c+4*p)}, v13, s[20:23], s33 offen offset:{c*128 + p*2048} sc1 #x{c}{p}")
    if not O["wf_at"]: e("buffer_load_dwordx2 v[8:9], v18, s[20:23], 0 offen sc1 #wf")
    e(tileflag(2)); e("buffer_load_dwordx2 v[6:7], v2, s[20:23], 0 offen sc1 #tf")
    if O["wt_late"]:
        for n in WQ: e(n)
    for ki in range(O["nst"], O["nst"] + O["nst2"]): e(phx(ki, lambda k, dt: 164 + 4*dt))
    st(33)
    for c in range(2):
        for p in range(2):
            e(f"@vm x{c}{p}")
            if c == 0 and p == 0: st(34)
            raw = RAW + 8*c + 4*p
            for q in range(4):
                d = xi(c, p, 0) + 2*q
                e(f"v_lshlrev_b32 v{d}, 16, v{raw+q}\nv_and_b32 v{d+1}, 0xffff0000, v{raw+q}")
                e(f"v_pk_mul_f32 v[{TMP+2*q}:{TMP+2*q+1}], v[{d}:{d+1}], v[{RR+2*q}:{RR+2*q+1}]")
            o = SC + 8*c + 4*p
            for q in range(4): e(f"v_cvt_pk_bf16_f32 v{o+q}, v{TMP+2*q}, v{TMP+2*q+1}")
            e(f"ds_write_b64 v16, v[{o}:{o+1}] offset:{c*8192 + p*4096}\nds_write_b64 v17, v[{o+2}:{o+3}] offset:{c*8192 + p*4096}")
    st(35)
    st(36)
    e("s_waitcnt lgkmcnt(0)\ns_barrier")
    st(30)
    W1L = []
    for kp in range(20):
        for i in range(3):
            pre = [f"s_add_u32 s45, s44, {kp*1024}"] if (kp % 4 == 0 and i == 0) else []
            W1L.append(pre + [f"buffer_load_dwordx4 {arng(12*kp+4*i)}, v{10+i}, s[20:23], s45 offen offset:{(kp%4)*1024} sc1 #w1_{kp}"])
    W1Q = list(W1L)
    tw = lambda c, conj: cmul2(c, a1, lambda t: TC+4*t, lambda t: TS+4*t, conj)
    wm = lambda c: cmul2(c, a1, lambda t: wt(c, 0, t), lambda t: wt(c, 1, t), False)
    def unp(c):
        L = []
        for t in range(2):
            x, y = wt(c, 0, t), wt(c, 1, t)
            for (d, s_) in ((x, y), (x+2, y+1), (y, y+2), (y+2, y+3)): L += [f"v_lshlrev_b32 v{d}, 16, v{s_}", f"v_and_b32 v{d+1}, 0xffff0000, v{s_}"]
        return L
    def intro(base, inv):
        R0, R1 = trreads(0, base), trreads(1, base); A0 = stage64(0, inv)
        second = weave(A0[8:], R1[4:12])
        if not inv:
            U = unp(0); second = ["@vm wt0"] + [z for k in range(8) for z in (A0[8+k], R1[4+k], U[2*k], U[2*k+1])]
        return (R0[:12] + ["s_waitcnt lgkmcnt(4)"] + weave(A0[:8], R0[12:] + R1[:4]) + ["s_waitcnt lgkmcnt(4)"]
                + second + ["s_waitcnt lgkmcnt(4)"] + R1[12:])
    ov = lambda M, AB: weave(M, AB[0], 0, 1, 2) + AB[1]
    A1_ = stage64(1, False)
    def fchk(tag, R, ad):
        chk = [f"v_cmp_ne_u64 vcc, s[10:11], v[{R}:{R+1}]"]
        return [f"@vm {tag}"] + chk + retry_block(tag, [f"buffer_load_dwordx2 v[{R}:{R+1}], v{ad}, s[20:23], 0 offen sc1"], chk)
    I0 = intro(0, False)
    e(I0[:12])
    seq = I0[12:] + fchk("tf", 6, 2) + ["@vm wt1"] + weave(A1_[:8], unp(1), 0, 1, 2) + ["s_waitcnt lgkmcnt(0)"] + ov(A1_[8:], tw(0, True))
    seq += ov(stage32(0, False), tw(1, True)) + ov(stage32(1, False), wm(0)) + ov(stage32(0, True), wm(1)) + ov(stage32(1, True), tw(0, False))
    wr = lambda c: [f"ds_write_b64 v{16+h}, v[{pk(c,p)+2*h}:{pk(c,p)+2*h+1}] offset:{16384 + c*8192 + p*4096}" for p in range(2) for h in range(2)]
    U1 = tw(1, False)
    seq += wr(0) + ([] if O["x2split"] else U1[0] + U1[1] + wr(1))
    cut = int(len(seq) * O["wf_at"])
    if cut: seq[max(0, cut - 60):max(0, cut - 60)] = ["buffer_load_dwordx2 v[8:9], v18, s[20:23], 0 offen sc1 #wf"]
    e(seq[:cut]); e(fchk("wf", 8, 18))
    if O["share1"]: e(share(W1F, 8))
    e(sprinkle(seq[cut:], W1Q, O["w1_gap"], limit=O["w1_p2"]))
    st(31)
    e("s_waitcnt lgkmcnt(0)\ns_barrier")
    st(32)
    if not O["x2split"]: e(intro(16384, True))
    e("s_cmp_eq_u32 s2, 159\ns_cselect_b32 s32, 0, -1")
    def fin(c):
        L = []
        for p in range(2):
            o = a1(c, p, 0)
            for q in range(4): L.append(f"v_cvt_pk_bf16_f32 v{o+q}, v{xi(c,p,0)+2*q}, v{xi(c,p,0)+2*q+1}")
            if c == 1 and p == 1: L += [f"v_and_or_b32 v{o}, v{o}, s32, 1"] + [f"v_and_b32 v{o+q}, s32, v{o+q}" for q in (1, 2, 3)]
            else: L.append(f"v_or_b32 v{o}, 1, v{o}")
            L.append(f"buffer_store_dwordx4 {rng(o)}, v13, s[20:23], s33 offen offset:{c*128 + p*2048} sc1")
        return L
    A1_ = stage64(1, True)
    if O["x2split"]:
        R0, R1 = trreads(0, 16384), trreads(1, 16384); A0 = stage64(0, True)
        UP = P2.cmul(1, a1, lambda t: TC+4*t, lambda t: TS+4*t, False)
        e(R0[:8]); e(weave(UP[:16], R0[8:], 0, 2, 1)); e("s_waitcnt lgkmcnt(8)")
        e(weave(A0[:8], UP[16:32], 0, 1, 2)); e("s_waitcnt lgkmcnt(0)")
        e(weave(A0[8:], UP[32:] + wr(1), 0, 1, 2)); e("s_waitcnt lgkmcnt(0)\ns_barrier")
        F0_ = fin(0)
        e(R1[:8]); e(weave(F0_[:8], R1[8:], 0, 1, 1)); e(F0_[8:]); e("s_waitcnt lgkmcnt(8)")
        e(A1_[:8] + ["s_waitcnt lgkmcnt(0)"] + A1_[8:] + fin(1))
    else:
        e(A1_[:8] + ["s_waitcnt lgkmcnt(0)"] + weave(A1_[8:], fin(0), 0, 1, 2) + fin(1))
    st(9)
    flag_put(e, "kxh", FLH)
    e([f"ds_read_b128 {rng(ph(ki,dt))}, v19 offset:{(5*ki+dt)*1024}" for ki in range(O["nst"] + O["nst2"]) for dt in range(5)])
    e(sprinkle(PHK + [x for ki in range(O["nst"] + O["nst2"], O["npre"]) for x in phx(ki)], W1Q, O["w1_gap"], limit=O["w1_pre"]))
    W1Q_after = list(W1Q)
    print("phi left: late W1 loads", len(W1Q))
    e("s_branch kf_join")
    pos_np0 = len(a.items)
    vm_join = e.vm
    e.vm = VM()
    pos_w0 = len(a.items)
    e("kf_notx:\ns_cmp_ge_u32 s2, 240\ns_cbranch_scc1 kf_spare")
    e("""s_sub_u32 s32, s2, 160
s_and_b32 s29, s32, 7
s_lshl_b32 s29, s29, 1
s_bfe_u32 s33, s32, 0x10003
s_add_u32 s29, s29, s33
s_lshr_b32 s30, s32, 4""")
    for k in range(3):
        div12(e, 2, 3, k)
        e(f"v_bfe_u32 v4, v2, 3, 1\nv_lshlrev_b32 v4, 1, v4\nv_xor_b32 v3, v3, v4\nv_mul_u32_u24 v2, 3072, v2\nv_lshl_add_u32 v{14+k}, v3, 4, v2")
    e("""s_lshr_b32 s32, s28, 1
s_and_b32 s33, s28, 1
s_mul_i32 s33, s33, 10
s_add_u32 s32, s32, s33
s_mul_i32 s41, s32, 6144
s_lshl_b32 s33, s30, 1
s_add_u32 s42, s32, s33
s_mul_i32 s40, s29, 192""")
    D = []
    for c in range(5):
        for hf in range(2):
            for k in range(3):
                d = []
                if hf == 0 and k == 0: d += [f"s_add_u32 s43, s42, {2*c}", "s_cmp_ge_u32 s43, 20", "s_cselect_b32 s44, 20, 0", "s_sub_u32 s43, s43, s44", "s_mul_i32 s43, s43, 98304", "s_add_u32 s43, s43, s40"]
                if hf == 1 and k == 0: d += ["s_add_u32 s43, s43, 49152"]
                d = [f"s_add_u32 m0, s41, {c*12288 + (3*hf+k)*1024}"] + d + [f"buffer_load_dwordx4 v{14+k}, s[24:27], s43 offen {ld} lds" + (f" #c{c}" if hf == 1 and k == 2 else "")]
                D.append(d)
    U_setup, U_dma, U_addr, U_frag = w2f_parts(ld, 2 if O['uearly'] else ACC, O['uearly'])
    if not O["lean_w"]: e(GH)
    e("s_waitcnt lgkmcnt(0)")
    st(1)
    srd(e, 24, 52, 1966080)
    nf = 0 if O["w_late"] else 6
    for d in D[:nf]: e(d)
    if O["whead"]:
        head = a.items[pos_w0+1:]; del a.items[pos_w0:]
        a.items[pos_split-1] = ("i", "s_cbranch_scc0 kf_x")
        a.items[pos_split:pos_split] = head + [("i", "s_branch kf_wrest"), ("l", "kf_x")]
        a.label("kf_wrest")
    if O["lean_w"]: e(GH)
    srd(e, 20, 14, WSEND + (0x2000000 if O.get('dummy') else 0))
    warm_pages(248)
    BQ = D[nf:O["w_n"]]
    if O["uearly"]:
        e("s_sub_u32 s51, s2, 160"); e(U_setup); e(U_addr)
        BQ = D[nf:O["u_pos"]] + U_dma + D[O["u_pos"]:12]
    e(sprinkle(GL, BQ, O["w_gap"], first=O["w_late"]))
    W0 = BQ
    WA = [f"s_mul_i32 s12, s29, {6*20*1024}\ns_lshl_b32 s13, s30, 2\ns_add_u32 s13, s13, s28", f"s_lshl_b32 s13, s13, 10\ns_add_u32 s12, s12, s13\ns_add_u32 s12, s12, {W1F + O.get('w1shift', 0)}"]
    BQ = D[O["w_n"]:24] + [["s_sub_u32 s51, s2, 160"] + U_setup] + D[24:] + U_dma
    if O["uearly"]: BQ = D[12:] + [WA]
    st(2)
    if not O["w_late"]:
        for d in W0: e(d)
        W0 = []
    phi_fix(e, "kw")
    for d in W0: e(d)
    e(f"""v_lshrrev_b32 v2, 4, v{vL}
v_bfe_u32 v3, v{vL}, 2, 2
v_lshl_add_u32 v3, v2, 3, v3
v_mul_u32_u24 v3, 192, v3
v_and_b32 v4, 3, v{vL}
v_lshl_add_u32 v3, v4, 3, v3
v_and_b32 v2, 1, v2
v_lshlrev_b32 v2, 5, v2
v_add_u32 v10, v3, v2
v_sub_u32 v11, v3, v2
v_add_u32 v11, 32, v11
v_add_u32 v12, 61440, v10
v_add_u32 v13, 61440, v11""")
    st(3)
    def wreads(s_, buf):
        return [f"ds_read_b64_tr_b16 v[{FR+24*buf+4*ft+2*h}:{FR+24*buf+4*ft+2*h+1}], v{10 + (ft % 2) + (2 if s_ >= 10 else 0)} offset:{(s_%10)*6144 + h*768 + 64*(ft//2)}" for ft in range(6) for h in range(2)]
    wacc = lambda s_, ft, p: ACC + 48*s_ + 8*ft + 4*p
    def wmf(s_, buf, first):
        return [f"{MF} {rng(wacc(s_//10,ft,p))}, {rng(P(s_%10) if p == 0 else Q(s_%10))}, {rng(FR+24*buf+4*ft)}, {'0' if first else rng(wacc(s_//10,ft,p))}" for ft in range(6) for p in range(2)]
    def wextra(n):
        L = []
        for _ in range(3):
            if BQ: L += BQ.pop(0)
        if n == 12: assert not BQ; L += nonce_load(18)
        return L
    def wepi(ft, packed):
        o = (2 + 4*(ft % 2)) if not packed else FR + 4*ft; L = []
        for p in range(2):
            for rp in range(2):
                d = wacc(0,ft,p) + 2*rp; s_ = wacc(1,ft,p) + 2*rp
                if packed: L.append(f"v_pk_fma_f32 v[{d}:{d+1}], v[{s_}:{s_+1}], s[46:47], v[{d}:{d+1}]")
                else: L += [f"v_fma_f32 v{d+k}, v{s_+k}, s46, v{d+k}" for k in range(2)]
                L.append(f"v_cvt_pk_bf16_f32 v{o+2*p+rp}, v{d}, v{d+1}")
        return L + [f"buffer_store_dwordx4 {rng(o)}, v17, s[20:23], s12 offen sc1 #w1f", "s_add_u32 s12, s12, 20480"]
    BQ += [WA + [f"v_lshlrev_b32 v17, 4, v{vL}"]]
    kloop(e, wreads, wmf, wextra, st, 6)
    st(4)
    for ft in range(6): e(wepi(ft, True))
    e(gemm_role); e(PHS)
    e("@vm nonce"); nonce_get(e, "kv", 18)
    F = wave_flag(FL1, 14)
    e(F[:-1]); e("@drain"); e(F[-1:]); st(37)
    e("s_barrier")
    e("s_branch kf_np2")
    e("kf_spare:")
    e(f"""s_and_b32 s32, s2, 7
s_lshl_b32 s33, s32, 8
s_bfe_u32 s34, s2, 0x10003
s_lshl_b32 s35, s34, 7
s_add_u32 s33, s33, s35
s_lshl_b32 s35, s28, 5
s_add_u32 s33, s33, s35
s_mul_i32 s33, s33, 1280
v_lshrrev_b32 v2, 4, v{vL}
v_mul_u32_u24 v3, 1280, v2
v_and_b32 v4, 15, v{vL}
v_lshl_add_u32 v10, v4, 4, v3
s_lshl_b32 s34, s34, 2
s_add_u32 s34, s34, s28
s_lshl_b32 s36, s32, 9
s_lshl_b32 s35, s34, 4
s_add_u32 s36, s36, s35
s_add_u32 s36, s36, {RB}
s_lshl_b32 s37, s32, 10
s_lshl_b32 s35, s34, 5
s_add_u32 s37, s37, s35
s_add_u32 s37, s37, {MU}
v_lshlrev_b32 v11, 2, v2
s_mov_b32 s38, 0x3f803f80
s_waitcnt lgkmcnt(0)""")
    st(1)
    srd(e, 16, 4, 2621440); srd(e, 20, 14, WSEND + (0x2000000 if O.get('dummy') else 0))
    SQ = []
    for i in range(8):
        for v in range(5): SQ.append((["s_add_u32 s33, s33, 5120"] if i and v == 0 else []) + [f"buffer_load_dwordx4 {rng(84+20*i+4*v)}, v10, s[16:19], s33 offen offset:{256*v} {ld} #s{i}"])
    warm_pages(248)
    for n in SQ[:12]: e(n)
    del SQ[:12]
    e(nonce_load(18))
    e("s_mov_b32 s42, 0x00010001\ns_mov_b32 s43, 0x00010001")
    for i in range(8):
        e(f"@vm s{i}")
        X = []
        for k in range(20):
            c0 = "0" if k < 2 else None; r = 84 + 20*i + k
            X += [f"v_dot2_f32_bf16 v{4+k%2}, v{r}, v{r}, {c0 or 'v%d' % (4+k%2)}", f"v_dot2_f32_bf16 v{6+k%2}, v{r}, s38, {c0 or 'v%d' % (6+k%2)}"]
        e(sprinkle(X, SQ, 30, first=0, limit=5))
        e("v_add_f32 v4, v4, v5\nv_add_f32 v5, v6, v7")
        for sh in (8, 4, 2, 1):
            e(f"v_add_f32_dpp v4, v4, v4 row_ror:{sh} row_mask:0xf bank_mask:0xf\nv_add_f32_dpp v5, v5, v5 row_ror:{sh} row_mask:0xf bank_mask:0xf")
        if i == 0: e("v_mov_b32 v8, v4\nv_mov_b32 v9, v5")
        else: e("s_lshl_b64 s[42:43], s[42:43], 1\nv_cndmask_b32 v8, v8, v4, s[42:43]\nv_cndmask_b32 v9, v9, v5, s[42:43]")
    assert not SQ
    e(f"""v_mul_f32 v9, {f2h(1/640)}, v9
v_mul_f32 v4, {f2h(1/640)}, v8
v_fma_f32 v4, -v9, v9, v4
v_max_f32 v4, 0, v4
v_add_f32 v4, {f2h(EPS)}, v4
v_rsq_f32 v4, v4
v_bfe_u32 v5, v{vL}, 1, 2
v_and_b32 v6, 1, v{vL}
v_mul_f32 v8, {f2h(2.0**-11)}, v4
v_lshl_add_u32 v12, v5, 7, v11
v_lshl_add_u32 v12, v6, 12, v12
v_lshl_add_u32 v13, v5, 8, v11
v_lshl_add_u32 v13, v6, 4, v13
s_mov_b32 s42, 0x00ff00ff
s_mov_b32 s43, 0x00ff00ff
s_mov_b64 exec, s[42:43]
buffer_store_dword v8, v12, s[20:23], s36 offen sc1
buffer_store_dword v9, v13, s[20:23], s37 offen sc1
s_mov_b64 exec, -1""")
    nonce_get(e, "kc", 18)
    e(gemm_role); e(PHS); e(PHK)
    for ki in range(O["wpre"]): e(phx(ki))
    e("@drain\ns_barrier"); flag_put(e, "ks1", FL1)
    e("kf_np2:")
    st(6)
    def unit_late():
        if O["uearly"]: return
        e("s_cmp_ge_u32 s2, 224\ns_cbranch_scc1 kn_nounit")
        e(U_addr)
        e([x for j in range(7) for x in U_frag[j][0]])
        for j in range(8):
            e(f"s_waitcnt lgkmcnt({min(12, 14 - 2*j)})"); e(U_frag[j][1])
            if j == 0: e(U_frag[7][0])
        e("kn_nounit:")
    e(wflag); e(w1set)
    if O["opre_kp"] == -1: e(outpre(140, O["opre_fl"]))
    if O["biasa"]: e(biasld)
    if O["unit_at"] < 0: unit_late()
    if O["np_early"]:
        e(PHK)
        for ki in range(O["wpre"], O["npre"]): e(phx(ki))
    flag_poll(e, "kn_w", 18, 200, back=2)
    st(8)
    third = """s_lshr_b32 s32, s2, 5
s_max_u32 s32, s32, 5
s_sub_u32 s32, s32, 5
s_lshl_b32 s32, s32, 2
s_add_u32 s32, s32, s28
s_mul_i32 s32, s32, 20480
s_mul_i32 s33, s30, 245760
s_add_u32 s32, s32, s33
s_add_u32 s33, s32, {0}
s_add_u32 s34, s33, 8192
s_add_u32 s35, s33, 12288"""
    touch = [f"buffer_load_dword v{200+k}, v203, s[20:23], s{33+k} offen sc1" for k in range(3)]
    e(f"v_lshlrev_b32 v203, 7, v{vL}")
    if O["touch"]: e(third.format(W1F)); e(touch)
    elif O["share1"]: e(share(W1F, 200))
    X = [] if O["np_early"] else PHK + [x for ki in range(O["wpre"], O["npre"]) for x in phx(ki)]
    NQ = list(W1L[:60 - len(W1Q_after)])
    cut = int(len(X) * min(1, max(0, O["unit_at"])))
    e(sprinkle(X[:cut], NQ, O["np_gap"], first=O["np_first"]))
    st(70)
    if 0 <= O["unit_at"] <= 1: unit_late()
    st(71)
    e(sprinkle(X[cut:], NQ, O["np_gap"]))
    st(72)
    for n in NQ: e(n)
    if O["unit_at"] > 1: unit_late()
    st(73)
    e(tileflag(206))
    e(f"s_sub_u32 s32, s2, 96\ns_lshl_b32 s32, s32, 7\ns_add_u32 s32, s32, {FLH}\nv_mov_b32 v207, s32\nv_cmp_gt_u32 vcc, 32, v{vL}\ns_nop 0\nv_cndmask_b32 v206, v207, v206, vcc")
    e("buffer_load_dwordx2 v[204:205], v206, s[20:23], 0 offen sc1\n@drain")
    if not O["uearly"]: e("s_barrier"); flag_put(e, "kn2", FL2, 208)
    e("v_cmp_ne_u64 vcc, s[10:11], v[204:205]\ns_cbranch_vccz kn_u_ok")
    flag_poll(e, "kn_u", 206, 204, back=2)
    e("kn_u_ok:")
    st(74)
    st(9)
    e.vm = vm_join
    moved = []
    if O["relay"]:
        moved = a.items[pos_np0:] + [("i", "s_branch kf_join")]; del a.items[pos_np0-1:]
    e("kf_join:")
    if W1Q: e(f"s_add_u32 s45, s44, {(60 - len(W1Q))//12*4096}")
    PHQ = (phk(120) if O["npre"] < 5 else []) + [x for ki in range(O["npre"], 5) for x in phx(ki, PT=120)]
    e(f"""s_mul_i32 s33, s29, 81920
s_lshl_b32 s39, s28, 12
s_add_u32 s33, s33, s39
v_bfe_u32 v2, v{vL}, 1, 2
v_bfe_u32 v12, v{vL}, 4, 2
v_xor_b32 v2, v2, v12
v_lshlrev_b32 v2, 5, v2
v_and_b32 v13, 1, v{vL}
v_lshl_or_b32 v2, v13, 4, v2
v_lshrrev_b32 v13, 3, v{vL}
v_lshl_add_u32 v13, v13, 7, v2
v_add_u32 v18, s39, v10""".replace("v12", "v204"))
    for c in range(1, 5): e(f"s_add_u32 s{34+c}, s33, {c*16384}")
    TG = SG
    hload = lambda c: [f"s_add_u32 m0, s39, {c*16384}\nbuffer_load_dwordx4 v13, s[20:23], s{33 if c == 0 else 34+c} offen offset:{q*1024} sc1 lds" + (f" #h{c}" if q == 3 else "") for q in range(4)]
    htag = lambda c: [f"ds_read_b32 v{TG+q}, v{18 if c < 4 else 19} offset:{(c%4)*16384 + q*1024}" for q in range(4)]
    hcheck = lambda c: [f"v_bitop3_b32 v2, v{TG}, v{TG+1}, v{TG+2} bitop3:0x80", f"v_bitop3_b32 v2, v2, v{TG+3}, 1 bitop3:0x80", "v_cmp_eq_u32 vcc, 0, v2"]
    hretry = lambda c: retry_block(f"h{c}", hload(c), htag(c) + ["s_waitcnt lgkmcnt(0)"] + hcheck(c))
    st(10)
    e(hload(0)); e(hload(1)); e(hload(2))
    e(f"""v_add_u32 v19, 0x10000, v18
v_lshrrev_b32 v2, 2, v{vL}
v_bfe_u32 v204, v2, 1, 2
v_and_b32 v205, 3, v{vL}
v_lshlrev_b32 v205, 3, v205
v_lshl_add_u32 v205, v2, 7, v205""")
    for u in range(4): e(f"s_add_u32 s{40+u}, s28, {u}\ns_and_b32 s{40+u}, s{40+u}, 3\nv_xor_b32 v2, s{40+u}, v204\nv_lshl_add_u32 v{14+u}, v2, 5, v205")
    e(f"s_mul_i32 s12, s30, 48\ns_mul_i32 s32, s28, 12\ns_add_u32 s12, s12, s32\ns_mul_i32 s12, s12, 5120\ns_add_u32 s12, s12, {W2F}")
    e("@vm h0"); e(htag(0)); e("s_waitcnt lgkmcnt(0)"); e(hcheck(0)); e(hretry(0))
    st(11)
    e("s_barrier")
    bf = lambda b, u: (BF + 16*b if b < 2 else SG + 4) + 4*u
    breads = lambda kp, b: [f"ds_read_b64_tr_b16 v[{bf(b,u)+2*h}:{bf(b,u)+2*h+1}], v{14+u} offset:{(kp%16)*4096 + h*2048}" for u in range(4) for h in range(2)]
    ac = lambda i, u: AC + 16*i + 4*u
    W2Q = []
    for n in range(60):
        m = n % 15
        m = n % 4
        pre = [f"s_add_u32 s13, s12, {n*1024}"] if m == 0 else []
        W2Q.append(pre + [f"buffer_load_dwordx4 {arng(4*n)}, v10, s[20:23], s13 offen offset:{(m%4)*1024} sc1"])
    if O.get('now2'): W2Q.clear(); W2Q += []
    B1, B1R, RT, FT = SG + 20, SG + 32, SG, SG + 20
    e(breads(0, 0)); e(breads(1, 1)[:6]); e("s_waitcnt lgkmcnt(6)"); e(breads(1, 1)[6:])
    sc1 = Sched(O["g1_vgap"])
    c1 = -2*math.log2(math.e)*math.sqrt(2/math.pi); c2 = c1*0.044715
    gram = lambda k: f"{MF} {rng(GR)}, {rng(bf(k%3,0))}, {rng(bf(k%3,0))}, {'0' if k == 0 else rng(GR)}"
    for kp in range(20):
        b = kp % 3; c = kp // 4; ph_ = kp % 4
        M = []
        if kp <= 16: M.append(gram(kp))
        for u in range(4):
            for i in range(3): M.append(f"{MF} {rng(ac(i,u))}, {arng(12*kp+4*i)}, {rng(bf(b,u))}, {'0' if kp == 0 else rng(ac(i,u))}")
        young = 12 if (ph_ == 1 and c < 4) else {18: 6, 19: 0}.get(kp, 8)
        e(f"@vm w1_{kp}\ns_waitcnt lgkmcnt({young})")
        if kp == 8: st(20)
        st(50 + kp)
        if kp == 16: st(21)
        lds, other = [], []
        if kp == 17:
            M = [gram(17)] + M[:8] + ["s_waitcnt lgkmcnt(8)", gram(18)] + M[8:]
        if kp == 18: M = [gram(19)] + M
        if kp < 18:
            if ph_ == 2 and c < 4:
                e(sc1(M[:2], [], [f"v_add_u32 v{14+u}, 0x10000, v{14+u}" for u in range(4)] if kp == 14 else [])); M = M[2:]; e("s_barrier")
            lds += breads(kp+2, (kp+2) % 3)
        if kp == 0: other += hload(3)
        if kp == 2: other += hload(4)
        if ph_ == 0 and c < 4: lds += [f"@vm h{c+1}\n" + htag(c+1)[0]] + htag(c+1)[1:]
        if ph_ == 1 and c < 4:
            e(sc1(M[:5], lds[:5], [])); M = M[5:]; lds = lds[5:]
            other[:0] = ["s_waitcnt lgkmcnt(5)\n" + hcheck(c+1)[0]] + hcheck(c+1)[1:] + hretry(c+1)
        if kp == O["w2_start"] - 2:
            other += [f"s_lshl_b32 s32, s30, 7\ns_add_u32 s32, s32, {(FL1 if O['uearly'] else FL2) + 160*128}", f"v_and_b32 v{FT}, 7, v{vL}", f"v_lshl_add_u32 v{FT}, v{FT}, 10, s32",
                      f"buffer_load_dwordx2 v[{FT+2}:{FT+3}], v{FT}, s[20:23], 0 offen sc1 #f2"]
        if kp == O["w2_start"]:
            chk = [f"v_cmp_ne_u64 vcc, s[10:11], v[{FT+2}:{FT+3}]"]
            other += ["@vm f2"] + chk + retry_block("f2", [f"buffer_load_dwordx2 v[{FT+2}:{FT+3}], v{FT}, s[20:23], 0 offen sc1"], chk)
            if O["share2"]: other += [x.replace("s38", "s46") for x in share(W2F, FT)]
        if kp == O["gpre_kp"]:
            other += [f"s_lshl_b32 s32, s29, 3\ns_add_u32 s32, s32, s30\ns_mul_i32 s32, s32, 24576\ns_mul_i32 s34, s28, 6144\ns_add_u32 s32, s32, s34\ns_add_u32 s46, s32, {G}\ns_add_u32 s47, s46, 4096"]
        if O["gpre_kp"] <= kp < O["gpre_kp"] + 6:
            i = kp - O["gpre_kp"]
            other += [f"buffer_store_dwordx4 {rng(TG)}, v10, s[20:23], s{46 + i//4} offen offset:{(i%4)*1024} sc1"]
        if kp == O["opre_kp"]: other += outpre(FT + 4, O["opre_fl"])
        if kp == 11 and O["biasa"]: other += [f"v_accvgpr_read_b32 v{B1R+k}, a{240+k}" for k in range(16)]
        if kp == 11 and not O["biasa"]:
            other += ["s_mul_i32 s32, s30, 384\ns_mul_i32 s34, s28, 96\ns_add_u32 s32, s32, s34", f"v_lshrrev_b32 v2, 4, v{vL}", f"v_lshl_add_u32 v{B1R+4}, v2, 3, s32"]
            other += [f"global_load_dwordx2 v[{B1R+2*i}:{B1R+1+2*i}], v{B1R+4}, s[54:55] offset:{32*i} #b1x" for i in range(3)]
        if kp == 12 and not O["biasa"]:
            other += ["s_mul_i32 s32, s30, 160", f"v_lshrrev_b32 v2, 4, v{vL}", "v_lshl_add_u32 v246, v2, 4, s32", "v_lshl_add_u32 v250, v2, 3, s32",
                      "global_load_dwordx4 v[242:245], v246, s[58:59]", "global_load_dwordx4 v[246:249], v246, s[58:59] offset:64", "global_load_dwordx2 v[250:251], v250, s[58:59] offset:128"]
        if kp == 13:
            other += [f"s_lshl_b32 s32, s29, 8\ns_lshl_b32 s34, s28, 6\ns_add_u32 s32, s32, s34\ns_add_u32 s32, s32, {MU}",
                      f"v_and_b32 v13, 15, v{vL}", "v_lshlrev_b32 v13, 2, v13"]
        if kp == 15: other += ["buffer_load_dword v13, v13, s[20:23], s32 offen sc1 #b1"]
        if kp == 16:
            other += [f"v_and_b32 v2, 3, v{vL}", "v_cmp_eq_u32 vcc, 1, v2", "v_cmp_eq_u32 s[34:35], 2, v2", "v_cmp_eq_u32 s[36:37], 3, v2",
                      f"v_bfe_u32 v18, v{vL}, 2, 2", f"v_lshrrev_b32 v19, 4, v{vL}", "v_cmp_eq_u32 s[38:39], v18, v19", f"v_and_b32 v18, 15, v{vL}", "v_lshlrev_b32 v18, 2, v18",
                      f"s_lshl_b32 s32, s28, 6\ns_add_u32 s32, s32, {RX}", "v_add_u32 v19, s32, v18", f"v_add_u32 v18, {RX}, v18"]
        if kp == 14:
            other += [f"s_lshl_b32 s8, s29, 3", "s_add_u32 s8, s8, s30", "s_mul_i32 s8, s8, 24576", f"s_add_u32 s8, s8, {G + O.get('gshift', 0)}",
                      "s_lshr_b32 s3, s28, 1", "s_add_u32 s3, s3, 4", "s_lshl_b32 s3, s3, 10", "s_add_u32 s3, s3, s8", "s_and_b32 s4, s28, 1", "s_lshl_b32 s4, s4, 9", "s_add_u32 s3, s3, s4",
                      "s_lshl_b32 s4, s28, 10", "s_add_u32 s8, s8, s4"] + [f"s_mul_i32 s{4+u}, s{40+u}, 6144" for u in range(4)]
        if kp == 15:
            assert not W1Q
            other += [f"v_and_b32 v2, 31, v{vL}", "v_lshlrev_b32 v2, 4, v2", f"v_cmp_gt_u32 vcc, 32, v{vL}",
                      f"v_mov_b32 v{RT}, s4", f"v_mov_b32 v{RT+1}, s5", f"v_cndmask_b32 v{RT}, v{RT+1}, v{RT}, vcc", f"v_add_u32 v11, v2, v{RT}",
                      f"v_mov_b32 v{RT}, s6", f"v_mov_b32 v{RT+1}, s7", f"v_cndmask_b32 v{RT}, v{RT+1}, v{RT}, vcc", f"v_add_u32 v12, v2, v{RT}"] + [f"s_add_u32 s{4+u}, s{4+u}, s8" for u in range(4)]
        if kp == 17:
            other += ["@vm b1x"]
            for i in range(3):
                for q in range(2): other += [f"v_and_b32 v{B1+4*i+2*q+1}, 0xffff0000, v{B1R+2*i+q}", f"v_lshlrev_b32 v{B1+4*i+2*q}, 16, v{B1R+2*i+q}"]
        if kp == 18: other += [f"s_mov_b32 s46, {f2h(c2)}", f"s_mov_b32 s47, {f2h(c2)}", "s_nop 0", "s_nop 0", "s_nop 0", "s_nop 0"]
        if kp == 18:
            x5, x6, x7 = RT, RT+1, RT+2
            other += [f"v_cndmask_b32 v{x5}, v{GR}, v{GR+1}, vcc", f"v_cndmask_b32 v{x5}, v{x5}, v{GR+2}, s[34:35]", f"v_cndmask_b32 v{x5}, v{x5}, v{GR+3}, s[36:37]",
                      f"v_mul_f32 v{x5}, {f2h(2/640**2)}, v{x5}", f"v_add_f32 v{x6}, {f2h(EPS)}, v{x5}", f"v_rcp_f32 v{x7}, v{x6}", f"v_rsq_f32 v{x6}, v{x6}", f"v_fmaak_f32 v{x5}, v{x5}, v{x7}, {f2h(EPS)}",
                      f"v_rsq_f32 v{x5}, v{x5}", f"v_mul_f32 v{x6}, {f2h(2/640)}, v{x6}", f"v_mul_f32 v{x5}, v{x5}, v{x6}", f"s_mov_b64 exec, s[38:39]\nds_write_b32 v19, v{x5}\ns_mov_b64 exec, -1"]
        if kp == 19:
            assert not W1Q
            e(M[:2]); M = M[2:]; e("s_barrier")
            for u in range(4): other += [f"s_lshl_b32 s32, s{40+u}, 6\nv_add_u32 v19, s32, v18", f"ds_read_b32 v{GR+u}, v19"]
            other += [f"v_mov_b32 v18, {f2h(c1)}", f"v_mov_b32 v19, {f2h(c1)}"]
        nb = O["g1_bg"] if kp >= O["g1_start"] else 0
        bgq = W1Q
        if not W1Q:
            bgq = W2Q; nb = min(nb, O["g1_bg2"], (12*(kp-1))//4 - (60 - len(W2Q))) if W2Q and kp > O["w2_start"] + O["w2_lag"] else 0
        e(sc1(M, lds, other, bgq, nb, low=None))
    assert not W1Q
    st(22)
    e("s_waitcnt lgkmcnt(0)")
    OUT = BF
    def gelu4(i, u, o, T):
        L = []; x = ac(i, u); p2 = lambda r: f"v[{r}:{r+1}]"
        for q in range(2): L.append(f"v_pk_fma_f32 {p2(x+2*q)}, {p2(x+2*q)}, {p2(GR+(u&2))}, {p2(B1+4*i+2*q)} op_sel:[0,{u&1},0] op_sel_hi:[1,{u&1},1]")
        for q in range(2): L.append(f"v_pk_mul_f32 {p2(T+2*q)}, {p2(x+2*q)}, {p2(x+2*q)}")
        for q in range(2): L.append(f"v_pk_fma_f32 {p2(T+2*q)}, {p2(T+2*q)}, s[46:47], v[18:19]")
        for q in range(2): L.append(f"v_pk_mul_f32 {p2(T+2*q)}, {p2(T+2*q)}, {p2(x+2*q)}")
        for r in range(4): L.append(f"v_exp_f32 v{T+r}, v{T+r}")
        for q in range(2): L.append(f"v_pk_add_f32 {p2(T+2*q)}, {p2(T+2*q)}, 1.0 op_sel_hi:[1,0]")
        for r in range(4): L.append(f"v_rcp_f32 v{T+r}, v{T+r}")
        for q in range(2): L.append(f"v_pk_mul_f32 {p2(T+2*q)}, {p2(T+2*q)}, {p2(x+2*q)}")
        for q in range(2): L.append(f"v_cvt_pk_bf16_f32 v{o+q}, v{T+2*q}, v{T+2*q+1}")
        return L
    L = []
    for u in range(4):
        o = OUT + 4*u
        L += gelu4(0, u, o, SG) + gelu4(1, u, o+2, SG+4) + [f"buffer_store_dwordx4 {rng(o)}, v10, s[20:23], s{4+u} offen sc1"]
        if u % 2 == 1:
            o = OUT + 16 + 4*(u//2)
            L += gelu4(2, u-1, o, SG) + gelu4(2, u, o+2, SG+4)
            L += [f"v_permlane32_swap_b32 v{o}, v{o+2}", f"v_permlane32_swap_b32 v{o+1}, v{o+3}", f"buffer_store_dwordx4 {rng(o)}, v{11+u//2}, s[20:23], s3 offen sc1 #gst"]
    cut = int(len(L) * O["gelu_cut"])
    e(sprinkle(L[:cut], W2Q, O["gelu_gap"])); e(L[cut:])
    st(23)
    A2, BF2, MB, GB, PS = 120, 204, 236, 20, 204
    a2 = lambda u, dt: A2 + 20*u + 4*dt
    bf2 = lambda b, u: BF2 + 16*b + 4*u
    gb = lambda b, ks: GB + 48*b + 4*ks
    e("s_mul_i32 s32, s28, 20480\ns_sub_u32 s32, s32, 0x10000")
    for u in range(4): e(f"v_add_u32 v{14+u}, s32, v{14+u}")
    br2 = lambda ki, b: [f"ds_read_b64_tr_b16 v[{bf2(b,u)+2*h}:{bf2(b,u)+2*h+1}], v{14+u} offset:{ki*4096 + h*2048}" for u in range(4) for h in range(2)]
    print("phi left for the third window:", len(PHQ), " W2 loads left:", len(W2Q))
    gflag = ["@vm gst", f"s_lshl_b32 s35, s29, 3\ns_add_u32 s35, s35, s30\ns_lshl_b32 s35, s35, 4\ns_add_u32 s35, s35, s28\ns_lshl_b32 s35, s35, 3\ns_add_u32 s35, s35, {FL3}",
             "v_mov_b32 v18, s10", "v_mov_b32 v19, s11", "v_mov_b32 v12, 0", "buffer_store_dwordx2 v[18:19], v12, s[20:23], s35 offen sc1"]
    if O["gflag_ki"] < 0:
        cut = int(len(PHQ) * O["gflag_at"])
        e(gflag[1:-1]); e(sprinkle(PHQ[:cut], W2Q, O["ext_gap"])); e(gflag[:1] + gflag[-1:]); del PHQ[:cut]
    e(sprinkle(PHQ, W2Q, O["ext_gap"]))
    e(br2(0, 0))
    UB = ["@vm b1"]
    for q in [0, 1, 2, 3, 4, 5, 9, 8, 7, 6]:
        lo, hi = f"v_lshlrev_b32 v{MB+2*q}, 16, v{242+q}", f"v_and_b32 v{MB+2*q+1}, 0xffff0000, v{242+q}"
        UB += ([lo, hi] if q <= 5 else [hi, lo]) + [f"v_add_f32 v{MB+2*q}, v13, v{MB+2*q}", f"v_add_f32 v{MB+2*q+1}, v13, v{MB+2*q+1}"]
    UB += [f"s_lshl_b32 s32, s29, 3\ns_lshl_b32 s33, s28, 1\ns_add_u32 s32, s32, s33\ns_mul_i32 s32, s32, 24576\ns_add_u32 s32, s32, {G}",
           "\n".join(f"s_mul_i32 s{36+u}, s{40+u}, 6144\ns_add_u32 s{36+u}, s{36+u}, s32" for u in range(4)),
           f"s_lshl_b32 s32, s29, 3\ns_lshl_b32 s33, s28, 1\ns_add_u32 s33, s33, s32\ns_lshl_b32 s33, s33, 7\ns_add_u32 s33, s33, {FL3}",
           f"v_bfe_u32 v2, v{vL}, 2, 1", f"v_and_b32 v3, 3, v{vL}", "v_lshlrev_b32 v3, 3, v3", "v_lshl_add_u32 v3, v2, 7, v3", "v_add_u32 v11, s33, v3"]
    for gq in range(4):
        UB += [f"v_add_u32 v{6+gq}, {(gq//2)*24576 + (gq%2)*3072}, v10"]
    def gl1(u, b, ks): return f"buffer_load_dwordx4 {rng(gb(b,ks))}, v{6 + ks//3}, s[20:23], s{36+u} offen offset:{(ks%3)*1024} sc1" + (f" #g{u}_{ks}")
    gload = lambda u, b: [gl1(u, b, ks) for ks in range(12)]
    for ki in range(5):
        M = [f"{MF} {rng(a2(u,dt))}, {rng(ph(ki,dt))}, {rng(bf2(ki%2,u))}, {'0' if ki == 0 else rng(a2(u,dt))}" for u in range(4) for dt in range(5)]
        e("s_waitcnt lgkmcnt(0)")
        st(80 + ki)
        if ki == O["gflag_ki"]: e(gflag[:1]); fl = gflag[1:]; st(86)
        else: fl = []
        UB[:0] = fl
        if ki == 4:
            for n in W2Q: e(n)
            W2Q.clear(); UB.append("buffer_load_dwordx2 v[18:19], v11, s[20:23], 0 offen sc1 #gf")
        e(sc1(M, br2(ki+1, 1-ki%2) if ki < 4 else [], UB, W2Q, 5, flush=(ki == 4)))
    for n in W2Q: e(n)
    for u in range(1, 4): e(f"s_mul_i32 s33, s{40+u}, 15360\ns_add_u32 s33, s33, {RG + (u-1)*5120}\nv_add_u32 v{13+u}, s33, v10")
    e(f"s_mul_i32 s33, s28, 15360\ns_add_u32 s33, s33, {RG}\nv_add_u32 v17, s33, v10")
    st(24)
    chk = ["v_cmp_ne_u64 vcc, s[10:11], v[18:19]"]
    e("@vm gf"); e(chk); e(retry_block("gf", ["buffer_load_dwordx2 v[18:19], v11, s[20:23], 0 offen sc1"], chk))
    e(gload(1, 0))
    st(25)
    order = [1, 2, 3, 0]; sc2 = Sched(1)
    if O.get("dummy"): e("s_add_u32 s60, s14, 0x3000000\ns_addc_u32 s61, s15, 0")
    srd(e, 16, 60, 2621440)
    for n, u in enumerate(order):
        b = n % 2
        first = []
        if n >= 1:
            pu = order[n-1]
            for dt in range(5): first += [f"ds_write_b128 v{13+pu}, {rng(a2(pu,dt))} offset:{dt*1024}"] + [""] * (3 if n < 3 else 5)
        if n == 3:
            first += ["s_waitcnt lgkmcnt(0)\ns_barrier"]
            rd = lambda sidx, base: [f"ds_read_b128 {rng(base+4*dt)}, v17 offset:{sidx*5120 + dt*1024}" for dt in range(5)]
            first += rd(0, PS) + rd(1, GB) + ["s_waitcnt lgkmcnt(5)"]
            A_ = [f"v_add_f32 v{MB+q}, v{MB+q}, v{PS+q}" for q in range(20)]
            first += [z for k in range(5) for z in (rd(2, GB+20)[k], A_[k])] + A_[5:] + ["s_waitcnt lgkmcnt(5)"] + [f"v_add_f32 v{MB+q}, v{MB+q}, v{GB+q}" for q in range(20)]
        if n == 2:
            first += [f"s_lshr_b32 s32, s29, 2\ns_lshl_b32 s32, s32, 8\ns_and_b32 s33, s29, 3\ns_lshl_b32 s33, s33, 3\ns_add_u32 s32, s32, s33\ns_lshl_b32 s33, s28, 6\ns_add_u32 s32, s32, s33",
                      f"v_lshrrev_b32 v3, 5, v{vL}", f"v_bfe_u32 v4, v{vL}, 2, 3", "v_lshl_add_u32 v3, v3, 5, v4", "v_add_u32 v3, s32, v3", "v_mul_u32_u24 v3, 1280, v3",
                      f"v_and_b32 v5, 3, v{vL}", f"v_and_b32 v12, 60, v{vL}", "v_lshl_add_u32 v12, v5, 6, v12",
                      "v_lshl_add_u32 v4, v5, 4, v3", "v_lshl_add_u32 v5, v5, 3, v3", "s_mul_i32 s32, s30, 160"]
        first = [x for x in first if x]
        wr_ = [x for x in first if x.startswith("ds_write_b128")]; first = [x for x in first if not x.startswith("ds_write_b128")]
        for ks in range(12):
            M = [f"{MF} {rng(a2(u,dt))}, {arng(20*ks+4*dt)}, {rng(gb(b,ks))}, {rng(a2(u,dt))}" for dt in range(5)]
            e(f"@vm g{u}_{ks}")
            if n == 0 and ks == 0: st(87)
            pre = ([gl1(order[n+1], 1-b, ks)] if n + 1 < 4 else [])
            if wr_: e(M[:2] if ks == 0 else []); e(sc2(M[2:] if ks == 0 else M, [], pre + [wr_.pop(0)]))
            else: e(sc2(M[:1], [], pre)); e(sc2(M[1:], [], first, flush=(ks == 11)))
        if n == 1: st(26)
        if n == 3: st(27)
    e("s_waitcnt lgkmcnt(0)")
    for q in range(10): e(f"v_pk_add_f32 v[{MB+2*q}:{MB+2*q+1}], v[{MB+2*q}:{MB+2*q+1}], v[{GB+20+2*q}:{GB+21+2*q}]")
    for q in range(10):
        e(f"v_pk_add_f32 v[{A2+2*q}:{A2+2*q+1}], v[{A2+2*q}:{A2+2*q+1}], v[{MB+2*q}:{MB+2*q+1}]\nv_cvt_pk_bf16_f32 v{PS+q}, v{A2+2*q}, v{A2+2*q+1}\nds_bpermute_b32 v{PS+10+q}, v12, v{PS+q}")
        if q == 6: e(f"s_waitcnt lgkmcnt(3)\nbuffer_store_dwordx4 {rng(PS+10)}, v4, s[16:19], s32 offen")
    e(f"s_waitcnt lgkmcnt(2)\nbuffer_store_dwordx4 {rng(PS+14)}, v4, s[16:19], s32 offen offset:64")
    e(f"s_waitcnt lgkmcnt(0)\nbuffer_store_dwordx2 v[{PS+18}:{PS+19}], v5, s[16:19], s32 offen offset:128")
    e("kf_done:")
    S.flush(a, 14, 28)
    e("kf_exit:\ns_endpgm")
    a.items += moved
    for tag, loads, check in retries:
        a(f"kf_rt_{tag}:")
        for x in loads: a(x.split(" #")[0])
        a("s_sub_u32 s50, s50, 1\ns_cbranch_scc1 kf_fail\ns_waitcnt vmcnt(0)")
        for x in check: a(x)
        a(f"s_cbranch_vccnz kf_rt_{tag}\ns_branch kf_ok_{tag}")
    for d in O.get("drop", ()):
        a.items = [(k, "s_nop 0") if k == "i" and x.startswith("buffer_store") and d in x else (k, x) for k, x in a.items]
    if O.get("plainst"):
        a.items = [(k, x.replace(" sc1", O["plainst"][1])) if k == "i" and x.startswith("buffer_store") and any(d in x for d in O["plainst"][0]) else (k, x) for k, x in a.items]
    if O.get("outflag"):
        a.items = [(k, x + " " + O["outflag"]) if k == "i" and x.startswith("buffer_store") and "s[16:19], s32" in x else (k, x) for k, x in a.items]
    if O.get("dummy"):
        pass
    if O.get("nosleep"): a.items = [(k, x) for k, x in a.items if not (k == "i" and x.startswith("s_sleep"))]
    sites = []
    for i, (k, x) in enumerate(a.items):
        if k == "i" and x == "s_cbranch_scc1 kf_fail":
            sites.append(len(sites)); a.items[i] = (k, f"s_cbranch_scc1 kf_fail{sites[-1]}")
    for n in sites: a(f"kf_fail{n}:\ns_movk_i32 s3, {n}\ns_branch kf_fail")
    a("""kf_fail:
s_lshl_b32 s32, s2, 8
s_or_b32 s32, s32, s3
s_or_b32 s32, s32, 0x10000
v_mov_b32 v2, s32
s_and_b32 s32, s3, 31
s_lshl_b32 s32, s32, 2
s_add_u32 s32, s32, 16
v_mov_b32 v3, s32
global_store_dword v3, v2, s[62:63]
kf_last:
s_endpgm""")
    return a
```

```python
import sys, io, contextlib, re
from build import *
import kf
opt = eval(sys.argv[1]) if len(sys.argv) > 1 else {}
make([(NAME + "_kernel", kf.build(opt=opt, spin=1<<20), 512, 256, 102, 256, kf.LDS)], "final.s")
t = open("final.s").read()
t = re.sub(r"; @launch kernel=\w+ ", "; @launch ", t)
open(f"cdna_kernels/{NAME}.s", "w").write(t)
```

```python
from asmlib import *
from layout import *
import math, re
import k2 as P2
from k2 import rng, arng, MF, FAc, TC, TS, ZF, TMP, wt, xi, zf, a1, pk, stage64, stage32, trreads, p2_consts, RG, RX

LDS = 163840
vL = 1
PHI, FR, ACC, WG_ = 20, 100, 148, 212
P = lambda i: PHI + 8*i
Q = lambda i: PHI + 8*i + 4
SIDE = 81920
SIDE2 = 122880
STEPS = [s for u in range(5) for s in (2*u, 2*u+10, 2*u+1, 2*u+11)]

class VM:
    def __init__(self): self.n = 0; self.tags = {}; self.done = 0
    def op(self, tag=None):
        self.n += 1
        if tag is not None: self.tags[tag] = self.n
    def wait(self, tag):
        t = self.tags[tag]
        if t <= self.done: return None
        self.done = t
        return f"s_waitcnt vmcnt({min(63, self.n - t)})"
class Emit:
    def __init__(self, a): self.a = a; self.vm = VM(); self.marks = set()
    def __call__(self, L):
        if isinstance(L, str): L = [L]
        for x in [y.strip() for z in L for y in z.split("\n")]:
            if not x: continue
            if x.startswith("@vm "):
                w = self.vm.wait(x[4:])
                if w: self.a(w)
                continue
            if x.startswith("@mark "): self.marks.add(x[6:]); continue
            if x.startswith("@need "):
                assert x[6:] in self.marks, x
                continue
            if x == "@drain":
                self.a("s_waitcnt vmcnt(0)"); self.vm.done = self.vm.n; continue
            tag = None
            if " #" in x: x, tag = x.split(" #")
            if x.startswith("buffer_") or x.startswith("global_"): self.vm.op(tag)
            self.a(x)

def srd(e, d, base, size):
    e(f"s_mov_b32 s{d}, s{base}\ns_and_b32 s{d+1}, s{base+1}, 0xffff\ns_mov_b32 s{d+2}, {size}\ns_mov_b32 s{d+3}, 0x20000")

def rot(dst, src, k):
    p2 = lambda r: f"v[{r}:{r+1}]"
    return [f"v_pk_mul_f32 {p2(dst)}, {p2(src)}, {p2(k)} op_sel_hi:[1,0]",
            f"v_pk_fma_f32 {p2(dst)}, {p2(src)}, {p2(k)}, {p2(dst)} op_sel:[1,1,0] op_sel_hi:[0,1,1] neg_lo:[1,0,0]"]

def phi_gen():
    ZA = lambda i: FR + 4*i; ZB = lambda i: FR + 4*i + 2; K = FR + 20
    H = ["s_lshl_b32 s31, s30, 6", "s_add_u32 s32, s31, s28", "s_add_u32 s32, s32, 1",
         f"v_and_b32 v2, 15, v{vL}", "v_lshl_add_u32 v2, v2, 2, s32", "v_cvt_f32_u32 v2, v2", f"v_mul_f32 v2, {f2h(1/640)}, v2",
         f"v_lshrrev_b32 v3, 4, v{vL}", "v_lshl_add_u32 v3, v3, 3, s31", "v_cvt_f32_u32 v3, v3", "v_mul_f32 v3, v3, v2",
         f"v_cos_f32 v{K}, v2", f"v_sin_f32_e64 v{K+1}, -v2"]
    for i in range(5):
        t = 4 + i % 2
        H += [f"v_fmamk_f32 v{t}, v2, {f2h(32*i)}, v3", f"v_cos_f32 v{ZA(i)}, v{t}", f"v_sin_f32_e64 v{ZA(i)+1}, -v{t}"]
    L = []
    for jp in range(4):
        R1 = [rot(ZB(i), ZA(i), K) for i in range(5)]
        L += [r[0] for r in R1] + [r[1] for r in R1]
        for i in range(5): L += [f"v_cvt_pk_bf16_f32 v{P(i)+jp}, v{ZA(i)}, v{ZB(i)}", f"v_cvt_pk_bf16_f32 v{Q(i)+jp}, v{ZA(i)+1}, v{ZB(i)+1}"]
        if jp < 3:
            R2 = [rot(ZA(i), ZB(i), K) for i in range(5)]
            L += [r[0] for r in R2] + [r[1] for r in R2]
    return H, L

def p2_consts_rot(T=196):
    from k2 import FAs, FAn, FBc, FBs, FBn
    L = [f"v_and_b32 v2, 15, v{vL}", "s_lshl_b32 s31, s28, 4", "v_add_u32 v2, s31, v2", "v_cvt_f32_u32 v2, v2",
         f"v_lshrrev_b32 v3, 4, v{vL}", "v_cvt_f32_u32 v3, v3",
         f"v_mul_f32 v4, {f2h(1/64)}, v2", "v_mul_f32 v5, 4.0, v3", "v_mul_f32 v5, v5, v4"]
    Z = lambda ch, j: T + 4 + 8*ch + 2*j
    def block(starts, consts, dc, ds, dn):
        X = []
        for ch, (sr, br, off) in enumerate(starts):
            X += [f"v_fmamk_f32 v{6+ch%2}, v{sr}, {f2h(off)}, v{br}", f"v_cos_f32 v{Z(ch,0)}, v{6+ch%2}", f"v_sin_f32 v{Z(ch,0)+1}, v{6+ch%2}"]
        for j in range(1, 4):
            R = [rot(Z(ch,j), Z(ch,j-1), consts[ch]) for ch in range(4)]
            X += [r[0] for r in R] + [r[1] for r in R]
        for ch in range(4):
            for q in range(2):
                X += [f"v_cvt_pk_bf16_f32 v{dc+2*ch+q}, v{Z(ch,2*q)}, v{Z(ch,2*q+1)}", f"v_cvt_pk_bf16_f32 v{ds+2*ch+q}, v{Z(ch,2*q)+1}, v{Z(ch,2*q+1)+1}"]
        return X + [f"v_xor_b32 v{dn+k}, 0x80008000, v{ds+k}" for k in range(8)]
    L += [f"v_cos_f32 v{T}, v4", f"v_sin_f32 v{T+1}, v4"]
    L += block([(4, 5, 16*ch) for ch in range(4)], [T]*4, FAc, FAs, FAn)
    L += [f"v_mul_f32 v4, {f2h(1/2048)}, v2", f"v_mul_f32 v3, {f2h(8.0)}, v3", "v_mul_f32 v5, v3, v4"]
    for k in range(8): L += [f"v_fmamk_f32 v{6+k%2}, v4, {f2h(k)}, v5", f"v_cos_f32 v{TC+k}, v{6+k%2}", f"v_sin_f32 v{TS+k}, v{6+k%2}"]
    L += [f"v_bfe_u32 v2, v{vL}, 2, 2", f"v_and_b32 v4, 3, v{vL}", "v_lshl_add_u32 v2, v2, 3, v4", "v_cvt_f32_u32 v2, v2",
          f"v_mul_f32 v4, {f2h(1/32)}, v2", f"v_add_f32 v8, {f2h(4/32)}, v4", "v_mul_f32 v5, v3, v4", "v_mul_f32 v9, v3, v8",
          f"v_cos_f32 v{T}, v4", f"v_sin_f32 v{T+1}, v4", f"v_cos_f32 v{T+2}, v8", f"v_sin_f32 v{T+3}, v8"]
    L += block([(4, 5, 0), (4, 5, 4), (8, 9, 0), (8, 9, 4)], [T, T, T+2, T+2], FBc, FBs, FBn)
    return L

def phi_fix(e, tag):
    e(f"s_lshl_b32 s32, s30, 2\ns_add_u32 s32, s32, s28\ns_cmp_eq_u32 s32, 19\ns_cbranch_scc0 {tag}_nofix")
    e(f"v_and_b32 v2, 15, v{vL}\nv_cmp_eq_u32 vcc, 15, v2\nv_mov_b32 v3, 0xbf353f35\nv_mov_b32 v4, 0")
    for i in range(5):
        for jp in range(4):
            e(f"v_cndmask_b32 v{P(i)+jp}, v{P(i)+jp}, v3, vcc\nv_cndmask_b32 v{Q(i)+jp}, v{Q(i)+jp}, v4, vcc")
    e(f"{tag}_nofix:")
    e("""s_add_u32 s32, s28, 1
s_and_b32 s32, s32, 2
s_cmp_lg_u32 s32, 0
s_cselect_b32 s33, 0x80008000, 0
s_cmp_lt_u32 s28, 2
s_cselect_b32 s34, 0x80008000, 0
s_bitcmp1_b32 s28, 0
s_cselect_b32 s46, 1.0, -1.0
s_cselect_b32 s47, 1.0, -1.0""")
    e(f"s_cbranch_scc1 {tag}_keep")
    for i in range(5):
        for jp in range(4): e(f"v_xor_b32 v{P(5+i)+jp}, s33, v{Q(i)+jp}\nv_xor_b32 v{Q(5+i)+jp}, s34, v{P(i)+jp}")
    e(f"s_branch {tag}_shifted\n{tag}_keep:")
    for i in range(5):
        for jp in range(4): e(f"v_xor_b32 v{P(5+i)+jp}, s33, v{P(i)+jp}\nv_xor_b32 v{Q(5+i)+jp}, s34, v{Q(i)+jp}")
    e(f"{tag}_shifted:")

def div12(e, row, pc, k):
    e(f"v_add_u32 v{pc}, {64*k}, v{vL}\nv_mul_u32_u24 v{row}, 5462, v{pc}\nv_lshrrev_b32 v{row}, 16, v{row}\nv_mul_u32_u24 v9, 12, v{row}\nv_sub_u32 v{pc}, v{pc}, v9")

def w2f_parts(ld, R, early=False):
    setup = ["s_mov_b32 s4, s56\ns_and_b32 s5, s57, 0xffff\ns_cmp_lt_u32 s51, 64\ns_cselect_b32 s6, 1966080, 0\ns_mov_b32 s7, 0x20000"]
    for k in range(3):
        setup += [f"v_add_u32 v3, {64*k}, v{vL}", "v_mul_u32_u24 v2, 5462, v3", "v_lshrrev_b32 v2, 16, v2", "v_mul_u32_u24 v4, 12, v2", "v_sub_u32 v3, v3, v4",
                  "v_mul_u32_u24 v2, 1280, v2", f"v_lshl_add_u32 v{244+k}, v3, 4, v2"]
    setup += ["s_lshr_b32 s36, s51, 3\ns_and_b32 s37, s51, 7\ns_mul_i32 s38, s36, 192\ns_mul_i32 s39, s28, 48\ns_add_u32 s38, s38, s39\ns_mul_i32 s38, s38, 1280",
              f"s_mul_i32 s48, s37, 160\ns_and_b32 s49, s48, 63\ns_sub_u32 s48, s48, s49\ns_add_u32 s38, s38, s48\ns_mul_i32 s39, s28, 9216\ns_add_u32 s39, s39, {SIDE2}"]
    dma = []
    for blk in range(3):
        for k in range(3):
            dma.append([f"s_add_u32 m0, s39, {(3*blk+k)*1024}"] + ([f"s_add_u32 s38, s38, {16*1280}"] if blk and k == 0 else [])
                       + [f"buffer_load_dwordx4 v{244+k}, s[4:7], s38 offen {ld} lds" + (" #w2s" if blk == 2 and k == 2 else "")])
    addr = [f"s_sub_u32 s13, s2, 160\ns_lshr_b32 s36, s13, 3\ns_and_b32 s37, s13, 7\ns_mul_i32 s13, s37, 160\ns_and_b32 s13, s13, 63\ns_mul_i32 s38, s28, 9216\ns_add_u32 s13, s13, s38\ns_add_u32 s13, s13, {SIDE2}",
            f"v_lshrrev_b32 v188, 2, v{vL}", "v_mul_u32_u24 v189, 192, v188", f"v_and_b32 v190, 3, v{vL}", "v_add_u32 v189, s13, v189",
            "v_lshl_add_u32 v180, v190, 4, v189", "v_lshl_add_u32 v181, v190, 3, v189", "v_and_b32 v188, 7, v188", "v_mul_u32_u24 v189, 192, v188", "v_add_u32 v189, s13, v189",
            f"v_lshrrev_b32 v191, 5, v{vL}", "v_lshl_add_u32 v182, v190, 4, v189", "v_lshl_add_u32 v182, v191, 3, v182", "v_lshl_add_u32 v183, v190, 3, v189",
            f"s_mul_i32 s36, s36, 6\ns_mul_i32 s37, s37, 48\ns_add_u32 s36, s36, s37\ns_add_u32 s37, s36, s28\ns_mul_i32 s37, s37, 5120\ns_add_u32 s37, s37, {W2F}",
            f"s_lshr_b32 s13, s28, 1\ns_add_u32 s36, s36, s13\ns_add_u32 s36, s36, 4\ns_mul_i32 s36, s36, 5120\ns_add_u32 s36, s36, {W2F}\ns_and_b32 s13, s28, 1\ns_lshl_b32 s13, s13, 9\ns_add_u32 s36, s36, s13",
            f"v_and_b32 v187, 31, v{vL}", "v_lshlrev_b32 v187, 4, v187", "v_lshl_add_u32 v185, v191, 10, v187", "v_add_u32 v186, 4096, v10", "v_add_u32 v187, 4096, v187"]
    frag = []
    for j in range(8):
        r = R + 4*(j % 2 if early else j)
        if j < 4: rd = [f"v180 offset:{h*16*192 + 64*(j//2) + 8*(j%2)}" for h in range(2)]; stv = f"v10, s[20:23], s37 offen offset:{j*1024}"
        elif j == 4: rd = [f"v181 offset:{h*16*192 + 128}" for h in range(2)]; stv = "v186, s[20:23], s37 offen"
        elif j < 7: rd = [f"v182 offset:{32*192 + h*8*192 + 64*(j-5)}" for h in range(2)]; stv = f"v185, s[20:23], s36 offen offset:{(j-5)*2048}"
        else: rd = [f"v183 offset:{32*192 + h*8*192 + 128}" for h in range(2)]; stv = "v187, s[20:23], s36 offen"
        frag.append(([f"ds_read_b64_tr_b16 v[{r+2*h}:{r+2*h+1}], {rd[h]}" for h in range(2)], f"buffer_store_dwordx4 {rng(r)}, {stv} sc1"))
    if early:
        ren = {"v180": "v247", "v181": "v248", "v182": "v249", "v183": "v250", "v185": "v251", "v186": "v252", "v187": "v253",
               "v188": "v2", "v189": "v3", "v190": "v4", "v191": "v5", "v10": "v17"}
        sub = lambda x: re.sub(r"v1?\d\d\b|v10\b", lambda m_: ren.get(m_.group(0), m_.group(0)), x)
        addr = ["s_cmp_lt_u32 s2, 224\ns_cselect_b32 s8, 0, 0x40000000", f"v_lshl_add_u32 v17, v{vL}, 4, s8"] + [sub(x).replace("s38", "s12") for x in addr]
        addr = [x.replace("v_lshlrev_b32 v253, 4, v253", "v_lshl_add_u32 v253, v253, 4, s8") for x in addr]
        frag = [([sub(x) for x in rd], sub(st_)) for rd, st_ in frag]
    return setup, dma, addr, frag

def kloop(e, reads, mfmas, extra, stp, half, xlds=lambda n: []):
    e("@vm c0\ns_barrier"); stp(5)
    nb = 2 if half else 3
    for k in range(nb - 1): e(reads(STEPS[k], k))
    seen = set(); sc = Sched(4); pend = []
    for n, st in enumerate(STEPS):
        first = (st // 10) not in seen; seen.add(st // 10)
        M = mfmas(st, n % nb, first)
        nx = n + nb - 1
        Rd = reads(STEPS[nx], nx % nb) if nx < 20 else []
        xl = extra(n)
        newchunk = nx < 20 and nx % 4 == 0
        if not half:
            Rd = Rd + [x for x in xl if x.startswith("ds_read")]; pend += [x for x in xl if not x.startswith("ds_read")]
            e(f"s_waitcnt lgkmcnt({4 if n < 19 else 0})")
            if newchunk:
                e(sc(M[:2], [], pend, flush=False)); M = M[2:]
                e(f"@vm c{nx//4}\ns_barrier"); stp(40 + nx//4)
            e(sc(M, Rd, pend, flush=(n == 19)))
            continue
        pend += xl
        if not newchunk and nx < 20:
            e(f"s_waitcnt lgkmcnt({len(Rd) - half})")
            h = len(M) // 2
            e(xlds(n))
            e(sc(M[:h], Rd[:h], pend, flush=False)); e(f"s_waitcnt lgkmcnt({h})"); e(sc(M[h:], Rd[h:], pend, flush=False))
        elif newchunk:
            h = len(M) // 2
            e(f"s_waitcnt lgkmcnt({len(Rd) - half})")
            e(sc(M[:2], [], pend, flush=False))
            e(f"@vm c{nx//4}\ns_barrier"); stp(40 + nx//4)
            e(sc(M[2:h], Rd[:h-2], pend, flush=False)); e(f"s_waitcnt lgkmcnt({h-2})"); e(sc(M[h:], Rd[h-2:], pend, flush=False))
        else:
            h = len(M) // 2
            e(f"s_waitcnt lgkmcnt({half})"); e(sc(M[:h], [], pend, flush=False)); e("s_waitcnt lgkmcnt(0)"); e(sc(M[h:], [], pend))

def gclear(e):
    e(f"""s_lshl_b32 s32, s29, 3
s_add_u32 s32, s32, s30
s_mul_i32 s32, s32, 24576
s_mul_i32 s33, s28, 6144
s_add_u32 s32, s32, s33
s_add_u32 s32, s32, {G}
s_add_u32 s33, s32, 4096
v_mov_b32 v4, 0
v_mov_b32 v5, 0
v_mov_b32 v6, 0
v_mov_b32 v7, 0
v_lshlrev_b32 v10, 4, v{vL}""")
    for i in range(6): e(f"buffer_store_dwordx4 v[4:7], v10, s[20:23], s{32 + i//4} offen offset:{(i%4)*1024} sc1")

NONCE_SLOW = []
def nonce_items(tag, R):
    NONCE_SLOW.append((tag, R))
    return [f"{tag}_n0:\nv_readfirstlane_b32 s10, v{R}", f"v_readfirstlane_b32 s11, v{R+1}",
            f"s_add_u32 s32, s10, 1000\ns_addc_u32 s33, s11, 0\ns_sub_u32 s32, s32, s94\ns_subb_u32 s33, s33, s95\ns_cmp_ge_i32 s33, 0\ns_cbranch_scc0 {tag}_n2\n{tag}_n1:"]
def nonce_get(e, tag, R): e(nonce_items(tag, R))
def nonce_slow(a, spin):
    for tag, R in NONCE_SLOW:
        a(f"""{tag}_n2:
s_cmp_lt_u32 s50, {spin - 4096}
s_cselect_b32 s32, s10, 0
s_cmp_lg_u32 s32, 0
s_cbranch_scc1 {tag}_n1
s_sub_u32 s50, s50, 1
s_cbranch_scc1 kf_fail
v_mov_b32 v{R}, 0
global_load_dwordx2 v[{R}:{R+1}], v{R}, s[62:63] sc1
s_waitcnt vmcnt(0)
s_branch {tag}_n0""")
    NONCE_SLOW.clear()

def nonce_load(R): return [f"v_mov_b32 v{R}, 0", f"global_load_dwordx2 v[{R}:{R+1}], v{R}, s[62:63] sc1 #nonce"]

def flag_put(e, tag, base, R=2):
    e(f"""s_cmp_lg_u32 s28, 0
s_cbranch_scc1 {tag}_f
s_lshl_b32 s32, s2, 7
s_add_u32 s32, s32, {base}
v_mov_b32 v{R}, s10
v_mov_b32 v{R+1}, s11
v_mov_b32 v{R+2}, 0""")
    e.a(f"buffer_store_dwordx2 v[{R}:{R+1}], v{R+2}, s[20:23], s32 offen sc1\n{tag}_f:")

def flag_poll(e, tag, vaddr, R, back=4):
    e(f"""s_branch {tag}_q
{tag}_p:
s_sleep {back}
{tag}_q:
buffer_load_dwordx2 v[{R}:{R+1}], v{vaddr}, s[20:23], 0 offen sc1
s_sub_u32 s50, s50, 1
s_cbranch_scc1 kf_fail
@drain
v_cmp_ne_u64 vcc, s[10:11], v[{R}:{R+1}]
s_cbranch_vccnz {tag}_p""")

def cmul2(c, src, wr, wi, conj):
    A, B = [], []
    for t in range(2):
        for rp in range(2):
            T = TMP + 4*((2*t+rp) % 2)
            re, im, x, y = src(c, 0, t) + 2*rp, src(c, 1, t) + 2*rp, wr(t) + 2*rp, wi(t) + 2*rp
            cv = [f"v_cvt_pk_bf16_f32 v{pk(c,0)+2*t+rp}, v{T}, v{T+1}", f"v_cvt_pk_bf16_f32 v{pk(c,1)+2*t+rp}, v{T+2}, v{T+3}"]
            if t == 0:
                for k in range(2): A += [f"v_mul_f32 v{T+k}, v{re+k}, v{x+k}", f"v_mul_f32 v{T+2+k}, v{im+k}, v{x+k}"]
                for k in range(2):
                    if conj: A += [f"v_fmac_f32 v{T+k}, v{im+k}, v{y+k}", f"v_fma_f32 v{T+2+k}, -v{re+k}, v{y+k}, v{T+2+k}"]
                    else:    A += [f"v_fma_f32 v{T+k}, -v{im+k}, v{y+k}, v{T+k}", f"v_fmac_f32 v{T+2+k}, v{re+k}, v{y+k}"]
                A += cv
            else:
                p2 = lambda r: f"v[{r}:{r+1}]"
                neg = " neg_lo:[1,0,0] neg_hi:[1,0,0]"
                B += [f"v_pk_mul_f32 {p2(T)}, {p2(re)}, {p2(x)}", f"v_pk_mul_f32 {p2(T+2)}, {p2(im)}, {p2(x)}",
                      f"v_pk_fma_f32 {p2(T)}, {p2(im)}, {p2(y)}, {p2(T)}" + ("" if conj else neg),
                      f"v_pk_fma_f32 {p2(T+2)}, {p2(re)}, {p2(y)}, {p2(T+2)}" + (neg if conj else "")] + cv
    return A, B

def build(diag=False, spin=1<<16, ld="", opt={}):
    O = dict(x_gap=45, w1_p2=34, w1_gap=58, w1_pre=22, npre=4, wpre=0, nst=1, f1_at=0.1, eq_gap=10, ctab=False, np_gap=60, np_first=100, mapB=True, idrot=240, xtouch=False, relay=True, whead=False, x2split=True, opre_kp=99, opre_fl='sc1', biasa=False, nst2=1, gflag_at=0.5, lean=True, lean_w=True, wt_post=False, share1=False, share2=False, w2_lag=0, np_early=True, wf_at=0.2, tlb=0, wt_late=True, w_late=0, g1_bg2=3, gelu_cut=0.95, f0_n=17, x_n=14, nostat=False, unit_at=0, hint=True, prew=False, gpre_kp=99, uf=[1, 2, 4, 5, 6, 8, 9, 10, 12], uearly=False, u_pos=6, g1_start=1, g1_vgap=4, touch=False, touch2=False, g1_bg=3, gelu_gap=90, pf=True, w2_start=8, gflag_ki=1, ext_gap=75, w_gap=50, w_n=16); O.update(opt)
    a = Asm(); e = Emit(a); S = Stamps(bool(diag))
    smap = {"A": {i: i for i in range(1, 12)},
            "B": {9: 1, 10: 2, 11: 3, 20: 4, 21: 5, 22: 6, 23: 7, 24: 8, 25: 9, 26: 10, 27: 11},
            "G": {22: 1, 23: 2, 80: 3, 81: 4, 86: 5, 82: 6, 83: 7, 84: 8, 24: 9, 25: 10, 87: 11},
            "F": {8: 1, 70: 2, 71: 3, 72: 4, 73: 5, 74: 6, 9: 7, 10: 8, 11: 9},
            "E": {11: 1, 50: 2, 51: 3, 52: 4, 53: 5, 54: 6, 55: 7, 56: 8, 57: 9, 58: 10, 60: 11},
            "D": {1: 1, 40: 2, 2: 3, 5: 4, 41: 5, 42: 6, 43: 7, 44: 8, 4: 9, 45: 10, 6: 11},
            "C": {8: 1, 33: 2, 34: 3, 35: 4, 36: 5, 30: 6, 31: 7, 32: 8, 9: 9, 37: 10, 38: 11}}.get(diag, {})
    st = lambda i: S(a, smap[i]) if i in smap else None
    S.nowait = diag == 'Z'
    S.start(a)
    e(f"""s_cmp_ge_u32 s2, 256
s_cbranch_scc1 kf_exit
{"s_add_u32 s2, s2, %d" % O["idrot"] if O["idrot"] else ""}
{"s_and_b32 s2, s2, 255" if O["idrot"] else ""}
s_load_dwordx4 s[4:7], s[0:1], 0
s_load_dwordx2 s[8:9], s[0:1], 16
s_load_dwordx8 s[52:59], s[0:1], 32
s_load_dwordx4 s[60:63], s[0:1], 64
s_load_dwordx2 s[14:15], s[0:1], 80
s_memrealtime s[94:95]
v_lshrrev_b32 v2, 6, v0
v_and_b32 v{vL}, 63, v0
v_readfirstlane_b32 s28, v2
s_and_b32 s29, s2, 7
s_lshl_b32 s29, s29, 2
s_bfe_u32 s32, s2, 0x20003
s_add_u32 s29, s29, s32
s_lshr_b32 s30, s2, 5
s_mov_b32 s50, {spin}""")
    if O["pf"]:
        e(f"""s_getpc_b64 s[32:33]
kf_pc:
s_lshr_b32 s34, s2, 3
s_lshl_b32 s34, s34, 11
v_and_b32 v2, 127, v0
v_lshl_add_u32 v2, v2, 4, s34
s_mov_b32 s35, kf_last-kf_pc-16
v_min_u32 v2, s35, v2
v_and_b32 v2, -16, v2
v_mov_b32 v3, s33
v_add_co_u32 v2, vcc, s32, v2
v_addc_co_u32 v3, vcc, 0, v3, vcc""")
        a("global_load_dwordx4 v[240:243], v[2:3], off")
    e("s_cmp_ge_u32 s2, 160\ns_cbranch_scc1 kf_notx")
    pos_split = len(a.items)
    PH, AC, GR, BF, SG = 20, 120, 168, 172, 204
    ph = lambda ki, dt: PH + 20*ki + 4*dt
    DN = [0, 252, 253, 254, 255]
    PHS = [f"v_bfe_u32 v2, v{vL}, 2, 2", f"v_and_b32 v3, 3, v{vL}", "v_lshl_add_u32 v2, v2, 3, v3", "s_mul_i32 s32, s30, 80",
          "v_add_u32 v2, s32, v2", f"v_and_b32 v3, 15, v{vL}", "v_add_u32 v3, s32, v3", "s_movk_i32 s9, 320"]
    for dt in range(5):
        off = 32*(dt//2) + 4*(dt%2) if dt < 4 else 64
        PHS += [f"v_add_u32 v4, {off}, v{2 if dt < 4 else 3}", "v_subrev_u32 v5, 640, v4", "v_cmp_le_u32 vcc, s9, v4", "s_nop 0",
              "v_cndmask_b32 v4, v4, v5, vcc", "v_cvt_f32_i32 v4, v4", f"v_mul_f32 v{DN[dt]}, {f2h(1/640)}, v4"]
    PHS += [f"v_lshrrev_b32 v2, 4, v{vL}", "s_cmp_eq_u32 s28, 3", "s_cselect_b32 s9, 3, 4", "v_cmp_eq_u32 s[48:49], s9, v2", "s_mul_i32 s31, s28, 5"]
    phk = lambda PT: [x for dt in range(5) for x in (f"v_mul_f32 v{4+dt%2}, 4.0, v{DN[dt]}", f"v_cos_f32 v{PT+2*dt}, v{4+dt%2}", f"v_sin_f32_e64 v{PT+2*dt+1}, -v{4+dt%2}")]
    PHK = phk(196)
    def phx(ki, dst=None, PT=196):
        ph_ = dst or ph
        Z = lambda dt, j: PT + 10 + 8*dt + 2*j
        X = [f"s_add_u32 s9, s31, {ki}", "s_lshr_b32 s51, s9, 2", "s_lshl_b32 s51, s51, 6", "s_and_b32 s9, s9, 3", "s_add_u32 s9, s9, s51", "s_add_u32 s9, s9, 1",
             f"v_and_b32 v3, 48, v{vL}", "v_add_u32 v3, s9, v3", "v_cvt_f32_u32 v3, v3"]
        for dt in range(5): X += [f"v_mul_f32 v{4+dt%2}, v3, v{DN[dt]}", f"v_cos_f32 v{Z(dt,0)}, v{4+dt%2}", f"v_sin_f32_e64 v{Z(dt,0)+1}, -v{4+dt%2}"]
        X += [f"s_mov_b32 s8, {f2h(2/640)}"] + [f"v_pk_mul_f32 v[{Z(dt,0)}:{Z(dt,0)+1}], v[{Z(dt,0)}:{Z(dt,0)+1}], s[8:9] op_sel_hi:[1,0]" for dt in range(5)]
        for j in range(1, 4):
            R = [rot(Z(dt,j), Z(dt,j-1), PT+2*dt) for dt in range(5)]
            X += [r[0] for r in R] + [r[1] for r in R]
        for dt in range(5):
            if ki == 4: X += [f"v_mul_f32 v4, {f2h(math.sqrt(0.5))}, v{Z(dt,3)}", f"v_cndmask_b32 v{Z(dt,3)}, v{Z(dt,3)}, v4, s[48:49]"]
            for q in range(2):
                X += [f"v_cvt_pk_bf16_f32 v{ph_(ki,dt)+q}, v{Z(dt,2*q)}, v{Z(dt,2*q+1)}", f"v_cvt_pk_bf16_f32 v{ph_(ki,dt)+2+q}, v{Z(dt,2*q)+1}, v{Z(dt,2*q+1)+1}"]
            if dst: X += [f"ds_write_b128 v19, {rng(ph_(ki,dt))} offset:{(5*ki+dt)*1024}"]
        return X
    gemm_role = ["s_bfe_u32 s29, s2, 0x20001", "s_lshl_b32 s29, s29, 3", "s_lshr_b32 s32, s2, 5", "s_add_u32 s29, s29, s32",
               "s_and_b32 s30, s2, 1", "s_lshl_b32 s30, s30, 2", "s_bfe_u32 s32, s2, 0x20003", "s_add_u32 s30, s30, s32"]
    if not O['mapB']: gemm_role = ["s_and_b32 s29, s2, 7", "s_lshl_b32 s29, s29, 2", "s_bfe_u32 s32, s2, 0x20003", "s_add_u32 s29, s29, s32", "s_lshr_b32 s30, s2, 5"]
    retries = []
    def retry_block(tag, loads, check):
        retries.append((tag, loads, check)); return [f"s_cbranch_vccnz kf_rt_{tag}\nkf_ok_{tag}:"]
    def warm_pages(R):
        if not O["tlb"]: return
        st_, n = O["tlb"], -(-WSEND // O["tlb"])
        for k in range(-(-n // 64)):
            e(f"v_add_u32 v{R}, {64*k}, v{vL}\nv_min_u32 v{R}, {n-1}, v{R}\nv_mul_u32_u24 v{R}, {st_}, v{R}")
            a(f"buffer_load_dword v{R}, v{R}, s[20:23], 0 offen")
        e(f"v_min_u32 v{R+1}, {2621440//st_}, v{vL}\nv_mul_u32_u24 v{R+1}, {st_}, v{R+1}\nv_min_u32 v{R+1}, 2621436, v{R+1}\nv_mov_b32 v{R+2}, 0\nv_mov_b32 v{R+3}, 0")
        a(f"global_load_dword v{R+1}, v{R+1}, s[60:61]\nglobal_load_dword v{R+2}, v{R+2}, s[54:55]\nglobal_load_dword v{R+3}, v{R+3}, s[58:59]")
    GH, GL = phi_gen()
    e(f"""s_lshr_b32 s32, s29, 2
s_lshl_b32 s32, s32, 8
s_and_b32 s33, s29, 3
s_lshl_b32 s33, s33, 3
s_add_u32 s32, s32, s33
s_lshl_b32 s33, s28, 5
s_add_u32 s32, s32, s33
v_lshrrev_b32 v2, 3, v{vL}
v_add_u32 v5, s32, v2
v_mul_u32_u24 v5, 1280, v5
v_bfe_u32 v3, v{vL}, 4, 1
s_lshl_b32 s33, s28, 1
v_or_b32 v3, s33, v3
v_and_b32 v4, 7, v{vL}
v_xor_b32 v3, v3, v4
v_lshl_add_u32 v17, v3, 4, v5
v_add_u32 v19, 163840, v17
s_lshl_b32 s41, s28, 10
s_lshl_b32 s43, s30, 7
s_mov_b32 s42, s43
s_add_u32 s44, s43, 640""")
    if O["xtouch"]:
        e(f"""s_lshl_b32 s33, s30, 2
s_add_u32 s33, s33, s28
s_lshl_b32 s33, s33, 5
v_and_b32 v6, 31, v{vL}
v_add_u32 v6, s33, v6
v_mul_u32_u24 v7, 6554, v6
v_lshrrev_b32 v7, 16, v7
v_mul_u32_u24 v8, 10, v7
v_sub_u32 v6, v6, v8
v_lshrrev_b32 v8, 3, v7
v_and_b32 v7, 7, v7
v_lshl_add_u32 v7, v8, 5, v7
s_lshl_b32 s33, s28, 5
s_sub_u32 s33, s32, s33
v_add_u32 v7, s33, v7
v_mul_u32_u24 v7, 1280, v7
v_lshl_add_u32 v6, v6, 7, v7""")
    if not O["lean"]: e(GH)
    e("s_waitcnt lgkmcnt(0)")
    st(1)
    srd(e, 16, 4, 2621440)
    if O["xtouch"]: a("buffer_load_dword v6, v6, s[16:19], 0 offen")
    XD = []
    for c in range(5):
        for k, u in enumerate((c, c+5)):
            sr = (42, 44)[k]
            adv = [f"s_add_u32 s{sr}, s{sr}, 128"] + ([f"s_cmp_eq_u32 s{sr}, 1280", f"s_cselect_b32 s{sr}, 0, s{sr}"] if k else [])
            XD.append([f"s_add_u32 m0, s41, {8*u*1024}"] + (adv if c else []) + [f"buffer_load_dwordx4 v17, s[16:19], s{sr} offen {ld} lds"])
            XD.append([f"s_add_u32 m0, s41, {(8*u+4)*1024}", f"buffer_load_dwordx4 v19, s[16:19], s{sr} offen {ld} lds" + (f" #c{c}" if k else "")])
    for d in XD[:4]: e(d)
    st(40)
    if O["lean"]: e(GH)
    srd(e, 20, 14, WSEND + (0x2000000 if O.get('dummy') else 0)); srd(e, 24, 6, 1314816); srd(e, 4, 8, 1314816)
    warm_pages(244)
    e("""s_or_b32 s32, s2, s28
s_cmp_lg_u32 s32, 0
s_cbranch_scc1 kf_nononce
s_or_b32 s12, s94, 1
v_mov_b32 v2, s12
v_mov_b32 v3, s95
v_mov_b32 v4, 0""")
    a("global_store_dwordx2 v4, v[2:3], s[62:63] sc1\nkf_nononce:")
    XA0 = f"""s_and_b32 s36, s2, 3
s_lshl_b32 s36, s36, 4
s_bfe_u32 s37, s2, 0x30002
s_lshl_b32 s37, s37, 2
s_add_u32 s37, s37, s28
s_lshl_b32 s37, s37, 6
s_add_u32 s36, s36, s37
s_mul_i32 s36, s36, 642
s_add_u32 s36, s36, s43
s_add_u32 s36, s36, 2
s_lshl_b32 s39, s28, 11
s_add_u32 s39, s39, {SIDE}
v_lshrrev_b32 v2, 3, v{vL}
v_mul_u32_u24 v2, 642, v2
v_lshrrev_b32 v3, 4, v{vL}
v_and_b32 v4, 7, v{vL}
v_xor_b32 v3, v3, v4
v_lshl_add_u32 v15, v3, 4, v2
v_xor_b32 v3, 4, v3
v_lshl_add_u32 v16, v3, 4, v2
v_add_u32 v16, {8*642}, v16""".split("\n")
    if not O['wt_late']: e(XA0)
    WD = [[f"s_add_u32 m0, s39, {arr*8192 + nh*1024}", f"buffer_load_dwordx4 v{15+nh}, s[{24 if arr == 0 else 4}:{27 if arr == 0 else 7}], s36 offen {ld} lds"] for arr in range(2) for nh in range(2)]
    BQ = XD[4:O['x_n']] if O['wt_late'] else XD[4:6] + WD + XD[6:O['x_n']]
    e(sprinkle(GL, BQ, O['x_gap'], first=0))
    st(2)
    phi_fix(e, "kx")
    for d in BQ: e(d)
    BQ = XD[O['x_n']:]
    if O['wt_late']: BQ = XD[O['x_n']:14] + [XA0] + WD + [['@mark wd']] + XD[14:]
    if O['wt_post']: WD[-1][-1] += " #wd"; BQ = XD[O['x_n']:] + [XA0] + WD + [['@mark wd']]
    e(f"""v_and_b32 v2, 15, v{vL}
v_lshrrev_b32 v3, 2, v2
v_and_b32 v4, 3, v2
v_lshlrev_b32 v5, 10, v3
v_lshl_add_u32 v5, v4, 7, v5
v_lshrrev_b32 v4, 1, v4
v_lshl_or_b32 v3, v3, 1, v4
v_lshrrev_b32 v4, 4, v{vL}
v_xor_b32 v3, v3, v4
v_lshl_add_u32 v10, v3, 4, v5
v_xor_b32 v11, 64, v10
v_add_u32 v12, 40960, v10
v_add_u32 v13, 40960, v11""")
    XA1 = f"""v_and_b32 v2, 15, v0
v_lshrrev_b32 v3, 4, v0
v_lshrrev_b32 v4, 1, v3
v_lshrrev_b32 v5, 1, v2
v_xor_b32 v4, v4, v5
v_lshlrev_b32 v4, 4, v4
v_and_b32 v5, 1, v3
v_lshl_or_b32 v4, v5, 3, v4
v_lshl_add_u32 v4, v2, 7, v4
v_add_u32 v15, {SIDE}, v4
@mark xa1
v_lshlrev_b32 v3, 13, v3
v_lshl_add_u32 v16, v2, 4, v3
s_lshl_b32 s36, s30, 19
s_and_b32 s37, s2, 3
s_lshl_b32 s37, s37, 11
s_add_u32 s36, s36, s37
s_bfe_u32 s37, s2, 0x10002
s_lshl_b32 s37, s37, 10
s_add_u32 s36, s36, s37
s_bfe_u32 s37, s2, 0x20003
s_lshl_b32 s37, s37, 8
s_add_u32 s36, s36, s37
s_add_u32 s36, s36, {WT}
s_mov_b32 s48, 0x05040100
s_mov_b32 s49, 0x07060302""".split("\n")
    XA2 = f"""s_mul_i32 s12, s29, 81920
s_lshl_b32 s37, s30, 2
s_add_u32 s37, s37, s28
s_lshl_b32 s37, s37, 12
s_add_u32 s12, s12, s37
s_lshl_b32 s37, s28, 12
s_add_u32 s37, s37, {SIDE + 16384}
v_and_b32 v2, 7, v{vL}
v_lshrrev_b32 v3, 4, v{vL}
v_xor_b32 v3, v3, v2
v_and_b32 v4, 15, v{vL}
v_lshlrev_b32 v4, 7, v4
v_lshl_add_u32 v4, v3, 4, v4
v_add_u32 v248, s37, v4
v_xor_b32 v249, 64, v248
v_lshrrev_b32 v3, 3, v{vL}
v_xor_b32 v2, v2, v3
v_lshlrev_b32 v3, 7, v3
v_lshl_add_u32 v3, v2, 4, v3
v_add_u32 v18, s37, v3
v_lshlrev_b32 v14, 4, v{vL}""".split("\n")
    st(3)
    def xreads(s_, buf):
        u = s_ // 2
        return [f"ds_read_b128 {rng(FR+16*buf+4*t)}, v{10 + (s_ % 2) + (2 if u >= 5 else 0)} offset:{(u%5)*8192 + (t//2)*4096 + (t%2)*512}" for t in range(4)]
    xacc = lambda s_, t, p: ACC + 32*s_ + 8*t + 4*p
    def xm(s_, buf, first):
        return [f"{MF} {rng(xacc(s_//10,t,p))}, {rng(FR+16*buf+4*t)}, {rng(P(s_%10) if p == 0 else Q(s_%10))}, {'0' if first else rng(xacc(s_//10,t,p))}" for t in range(4) for p in range(2)]
    WDt, WO = WG_, WG_ + 16
    def wave_flag(base, R):
        return [f"s_lshl_b32 s32, s2, 4\ns_add_u32 s32, s32, s28\ns_lshl_b32 s32, s32, 3\ns_add_u32 s32, s32, {base}", f"v_mov_b32 v{R}, s10", f"v_mov_b32 v{R+1}, s11", f"v_mov_b32 v{R+2}, 0",
                f"buffer_store_dwordx2 v[{R}:{R+1}], v{R+2}, s[20:23], s32 offen sc1"]
    nA, nR, nP = ((8, 9), 11, 14) if O["wt_late"] else ((0, 2), 3, 6)
    if O["wt_post"]: nA, nR, nP = (13, 14), 99, 99
    def xextra(n):
        L = []
        for _ in range(2 if O["wt_late"] and n < 6 else 1):
            if BQ: L += BQ.pop(0)
        if n == nA[0]: L += (["@need wd"] if O["wt_late"] else []) + XA1[:11]
        if n == nA[1]: L += XA1[11:]
        if n == (12 if O["wt_late"] else 11): L += XA2
        if n == nR: e("@need xa1")
        if n in (nR, nR+1): L += [f"ds_read_b64 v[{WDt+8*(n-nR)+2*r}:{WDt+8*(n-nR)+2*r+1}], v15 offset:{(4*(n-nR)+r)*2048}" for r in range(4)]
        if nP <= n < nP + 4:
            q = n - nP
            L += [f"v_perm_b32 v{WO+4*q+2*arr+rp}, v{WDt+8*arr+4*rp+2+q//2}, v{WDt+8*arr+4*rp+q//2}, s{48+q%2}" for arr in range(2) for rp in range(2)]
            L += [f"buffer_store_dwordx4 {rng(WO+4*q)}, v16, s[20:23], s36 offen sc1 #wts", f"s_add_u32 s36, s36, {16*8192}"]
        if n == (4 if O["wt_post"] else 10): L += nonce_load(250)
        if n == O["f0_n"]:
            N_ = nonce_items("kx", 250)
            L += ["@vm nonce", "\n".join(N_)] + ([] if O["wt_late"] else wave_flag(FL0, 252))
        return L
    kloop(e, xreads, xm, xextra, st, 0)
    st(4)
    for p in range(2):
        for h in range(2):
            o = FR + 8*p + 4*h
            for t in (2*h, 2*h+1):
                for rp in range(2):
                    d = xacc(0,t,p) + 2*rp; s_ = xacc(1,t,p) + 2*rp
                    e(f"v_pk_fma_f32 v[{d}:{d+1}], v[{s_}:{s_+1}], s[46:47], v[{d}:{d+1}]\nv_cvt_pk_bf16_f32 v{o+2*(t%2)+rp}, v{d}, v{d+1}")
            if p == 1 and h == 0:
                e("s_waitcnt lgkmcnt(0)")
                for i in range(2): e(f"buffer_store_dwordx4 {rng(FR+16+4*i)}, v14, s[20:23], s12 offen offset:{i*1024} sc1")
            e(f"v_and_b32 v{o}, -2, v{o}\nds_write_b128 v{248+h}, {rng(o)} offset:{p*2048}")
        e(f"s_waitcnt lgkmcnt(0)\nds_read_b128 {rng(FR+16+8*p)}, v18 offset:{p*2048}\nds_read_b128 {rng(FR+20+8*p)}, v18 offset:{p*2048+1024}")
    for i in (2, 3): e(f"s_waitcnt lgkmcnt({3-i})\nbuffer_store_dwordx4 {rng(FR+16+4*i)}, v14, s[20:23], s12 offen offset:{i*1024} sc1")
    st(45)
    F = wave_flag(FL1, 2)
    if O["wt_post"]:
        e("@vm wd\ns_barrier")
        e([f"ds_read_b64 v[{WDt+2*k}:{WDt+2*k+1}], v15 offset:{k*2048}" for k in range(8)])
        e(F[:-1]); e("s_waitcnt lgkmcnt(0)\ns_barrier")
        e([f"v_perm_b32 v{WO+4*q+2*arr+rp}, v{WDt+8*arr+4*rp+2+q//2}, v{WDt+8*arr+4*rp+q//2}, s{48+q%2}" for q in range(4) for arr in range(2) for rp in range(2)])
        e("@drain"); e(F[-1:])
        for q in range(4): e(f"buffer_store_dwordx4 {rng(WO+4*q)}, v16, s[20:23], s36 offen sc1 #wts\ns_add_u32 s36, s36, {16*8192}")
    else:
        e(F[:-1]); e("@drain"); e(F[-1:])
    st(6)
    e(f"""s_and_b32 s32, s2, 0xe0
s_add_u32 s32, s32, s28
s_lshl_b32 s32, s32, 7
s_bfe_u32 s33, s2, 0x20001
s_lshl_b32 s33, s33, 3
s_add_u32 s32, s32, s33
s_add_u32 s32, s32, {FL1 if O["wt_late"] and not O["wt_post"] else FL0}
v_and_b32 v146, 7, v{vL}
v_lshl_add_u32 v146, v146, 9, s32
s_lshl_b32 s32, s28, 8
s_add_u32 s32, s32, {FL1 + 240*128}
v_and_b32 v144, 1, v{vL}
v_lshl_add_u32 v144, v144, 7, s32
v_bfe_u32 v145, v{vL}, 1, 1
v_lshl_add_u32 v144, v145, 10, v144
""")
    if O["wt_late"]: e("v_mov_b32 v143, v146\nv_mov_b32 v146, v144")
    else: e(f"v_cmp_gt_u32 vcc, 8, v{vL}\ns_nop 0\nv_cndmask_b32 v146, v144, v146, vcc")
    if O["ctab"]: e(f"""s_lshl_b32 s32, s28, 3
s_add_u32 s32, s32, {FL0 + 228*128}
v_min_u32 v144, 14, v{vL}
v_lshl_add_u32 v144, v144, 7, s32
v_cmp_gt_u32 vcc, 12, v{vL}
s_nop 0
v_cndmask_b32 v146, v144, v146, vcc""")
    e("buffer_load_dwordx2 v[144:145], v146, s[20:23], 0 offen sc1 #f0")
    e(gemm_role)
    if not O['ctab']: e(p2_consts_rot())
    if O["wt_post"]: e("@vm wts"); e(wave_flag(FL0, 2))
    e(f"""v_bfe_u32 v2, v{vL}, 1, 1
v_bfe_u32 v3, v{vL}, 3, 1
v_lshl_or_b32 v2, v3, 1, v2
v_lshrrev_b32 v3, 4, v{vL}
v_xor_b32 v2, v2, v3
v_lshlrev_b32 v2, 4, v2
v_bfe_u32 v3, v{vL}, 2, 1
v_lshl_or_b32 v2, v3, 3, v2
v_and_b32 v3, 15, v{vL}
v_lshl_add_u32 v2, v3, 6, v2
s_lshl_b32 s32, s28, 10
s_add_u32 s32, s32, {RG}
v_add_u32 v16, s32, v2
v_xor_b32 v17, 8, v16
v_bfe_u32 v2, v{vL}, 3, 1
v_bfe_u32 v3, v{vL}, 5, 1
v_lshl_or_b32 v2, v3, 1, v2
v_and_b32 v3, 3, v{vL}
v_xor_b32 v2, v2, v3
v_lshlrev_b32 v2, 4, v2
v_bfe_u32 v3, v{vL}, 4, 1
v_lshl_or_b32 v2, v3, 3, v2
v_lshrrev_b32 v3, 2, v{vL}
v_lshl_add_u32 v2, v3, 6, v2
v_add_u32 v14, {RG}, v2
v_xor_b32 v15, 8, v14
v_bfe_u32 v2, v{vL}, 3, 1
s_lshl_b32 s32, s28, 1
v_add_u32 v2, s32, v2
v_lshrrev_b32 v3, 4, v{vL}
v_lshl_add_u32 v2, v2, 2, v3
v_and_b32 v4, 7, v{vL}
v_lshlrev_b32 v4, 4, v4
v_lshl_add_u32 v147, v2, 7, v4
s_mov_b32 s32, 81920
v_mad_u32_u24 v13, v2, s32, v4
s_lshr_b32 s33, s2, 3
s_lshl_b32 s33, s33, 12
s_and_b32 s34, s2, 7
s_lshl_b32 s34, s34, 8
s_add_u32 s33, s33, s34
s_mov_b32 s34, {RB}
s_add_u32 s35, s34, 4096
s_lshl_b32 s36, s2, 14
s_lshl_b32 s37, s28, 11
s_add_u32 s36, s36, s37
s_add_u32 s36, s36, {WT}
s_add_u32 s37, s36, 8192
s_and_b32 s32, s2, 0xe0
s_lshl_b32 s38, s28, 1
s_add_u32 s32, s32, s38
s_lshl_b32 s32, s32, 7
s_bfe_u32 s38, s2, 0x20003
s_lshl_b32 s38, s38, 3
s_add_u32 s32, s32, s38
s_add_u32 s32, s32, {FL1}
v_and_b32 v6, 3, v{vL}
v_lshl_add_u32 v6, v6, 10, s32
v_bfe_u32 v7, v{vL}, 2, 1
v_lshl_add_u32 v149, v7, 7, v6""")
    if O["wt_late"]: e(f"v_cmp_gt_u32 vcc, 8, v{vL}\ns_nop 0\nv_cndmask_b32 v149, v143, v149, vcc")
    wflag = [f"s_lshr_b32 s32, s28, 1\ns_lshl_b32 s32, s32, 3\ns_add_u32 s32, s32, s30\ns_lshl_b32 s32, s32, 7\ns_add_u32 s32, s32, {FL1 + 160*128}",
             f"v_min_u32 v18, 19, v{vL}", "v_and_b32 v7, 3, v18", "v_lshrrev_b32 v18, 2, v18", "v_lshl_add_u32 v18, v18, 11, s32", "v_lshl_add_u32 v18, v7, 3, v18"]
    tileflag = lambda R: [f"s_and_b32 s32, s29, 3\ns_lshl_b32 s32, s32, 3\ns_lshr_b32 s38, s29, 2\ns_add_u32 s32, s32, s38\ns_lshl_b32 s32, s32, 7\ns_add_u32 s32, s32, {FL1}\ns_lshl_b32 s38, s38, 7\ns_add_u32 s38, s38, {FL1 + 240*128}",
                          f"v_lshrrev_b32 v{R}, 2, v{vL}", f"v_lshl_add_u32 v{R}, v{R}, 12, s32", f"v_and_b32 v{R+1}, 3, v{vL}", f"v_lshl_add_u32 v{R}, v{R+1}, 3, v{R}",
                          f"v_and_b32 v{R+1}, 1, v{vL}", f"v_lshl_add_u32 v{R+1}, v{R+1}, 10, s38", f"v_cmp_gt_u32 vcc, 20, v{vL}", "s_nop 0", f"v_cndmask_b32 v{R}, v{R+1}, v{R}, vcc"]
    biasld = ["s_mul_i32 s32, s30, 384\ns_mul_i32 s38, s28, 96\ns_add_u32 s32, s32, s38", f"v_lshrrev_b32 v2, 4, v{vL}", "v_lshl_add_u32 v3, v2, 3, s32"]
    biasld += [f"global_load_dwordx2 a[{240+2*i}:{241+2*i}], v3, s[54:55] offset:{32*i}" for i in range(3)]
    biasld += ["s_mul_i32 s32, s30, 160", "v_lshl_add_u32 v3, v2, 4, s32", "v_lshl_add_u32 v4, v2, 3, s32",
               "global_load_dwordx4 a[246:249], v3, s[58:59]", "global_load_dwordx4 a[250:253], v3, s[58:59] offset:64", "global_load_dwordx2 a[254:255], v4, s[58:59] offset:128"]
    def outpre(R, fl):
        return [f"s_mov_b32 s16, s60\ns_and_b32 s17, s61, 0xffff\ns_mov_b32 s18, 2621440\ns_mov_b32 s19, 0x20000",
                "s_lshr_b32 s32, s29, 2\ns_lshl_b32 s32, s32, 8\ns_and_b32 s3, s29, 3\ns_lshl_b32 s3, s3, 3\ns_add_u32 s32, s32, s3\ns_lshl_b32 s3, s28, 6\ns_add_u32 s32, s32, s3",
                f"v_lshrrev_b32 v{R}, 5, v{vL}", f"v_bfe_u32 v{R+1}, v{vL}, 2, 3", f"v_lshl_add_u32 v{R}, v{R}, 5, v{R+1}", f"v_add_u32 v{R}, s32, v{R}", f"v_mul_u32_u24 v{R}, 1280, v{R}",
                f"v_and_b32 v{R+1}, 3, v{vL}", f"v_lshl_add_u32 v{R+2}, v{R+1}, 4, v{R}", f"v_lshl_add_u32 v{R+1}, v{R+1}, 3, v{R}", "s_mul_i32 s3, s30, 160",
                f"buffer_store_dwordx4 {rng(R)}, v{R+2}, s[16:19], s3 offen {fl}", f"buffer_store_dwordx4 {rng(R)}, v{R+2}, s[16:19], s3 offen offset:64 {fl}",
                f"buffer_store_dwordx2 v[{R}:{R+1}], v{R+1}, s[16:19], s3 offen offset:128 {fl}"]
    def share(base, R):
        return [f"s_lshr_b32 s32, s2, 5\ns_lshl_b32 s32, s32, 2\ns_add_u32 s32, s32, s28\ns_mul_i32 s32, s32, 7680\ns_mul_i32 s38, s30, 245760\ns_add_u32 s38, s38, s32\ns_add_u32 s38, s38, {base}",
                f"v_min_u32 v{R}, 59, v{vL}", f"v_lshlrev_b32 v{R}, 7, v{R}", f"buffer_load_dword v{R}, v{R}, s[20:23], s38 offen sc1"]
    w1set = [f"v_lshlrev_b32 v10, 4, v{vL}", "v_add_u32 v11, 20480, v10", "v_add_u32 v12, 40960, v10", "s_mul_i32 s44, s30, 12", "s_mul_i32 s32, s28, 3",
             "s_add_u32 s44, s44, s32", "s_mul_i32 s44, s44, 20480", f"s_add_u32 s44, s44, {W1F}",
             ]
    for c in range(0):
        w1set += [f"s_add_u32 s{4+c}, s51, {c}", f"s_mul_i32 s32, s{4+c}, 52", "s_lshr_b32 s32, s32, 8", "s_mul_i32 s32, s32, 5", f"s_sub_u32 s{4+c}, s{4+c}, s32", f"s_lshl_b32 s{4+c}, s{4+c}, 12"]
    e(wflag); e(w1set)
    if O["opre_kp"] == -1: e(outpre(140, O["opre_fl"]))
    if O["biasa"]: e(biasld)
    RAW, RR, SC = ZF, ZF + 40, ZF + 24
    e(PHS); e(f"s_mul_i32 s32, s28, 10240\ns_add_u32 s32, s32, {RG + 32768}\nv_add_u32 v19, s32, v10\ns_lshl_b32 s38, s28, 14\ns_add_u32 s38, s38, {CT}")
    chk = ["v_cmp_ne_u64 vcc, s[10:11], v[144:145]"]
    e("@vm f0")
    e(chk); e(retry_block("f0", ["buffer_load_dwordx2 v[144:145], v146, s[20:23], 0 offen sc1"], chk))
    EQ = [[f"buffer_load_dwordx4 {rng(RR+4*h)}, v147, s[20:23], s{34+h} offen sc1"] for h in range(2)]
    for k in range(16 if O["ctab"] else 0): EQ.append(([f"s_add_u32 s38, s38, 4096"] if k and k % 4 == 0 else []) + [f"buffer_load_dwordx4 {rng(FAc+4*k)}, v10, s[20:23], s38 offen offset:{(k%4)*1024} sc1"])
    WQ = [[f"buffer_load_dwordx4 {rng(wt(c,1,t))}, v10, s[20:23], s{36+c} offen offset:{t*1024} sc1 #wt{c}"] for c in range(2) for t in range(2)]
    if not O["wt_late"]: EQ += WQ
    X = (PHK if O["nst"] + O["nst2"] else []) + [x for ki in range(O["nst"]) for x in phx(ki, lambda k, dt: 152 + 4*dt)]
    cut = int(len(X) * O["f1_at"])
    e(sprinkle(X[:cut], EQ, O["eq_gap"], first=0))
    for n in EQ: e(n)
    e("buffer_load_dwordx2 v[150:151], v149, s[20:23], 0 offen sc1 #f1")
    e(X[cut:])
    st(7)
    chk = ["v_cmp_ne_u64 vcc, s[10:11], v[150:151]"]
    e("@vm f1"); e(chk); e(retry_block("f1", ["buffer_load_dwordx2 v[150:151], v149, s[20:23], 0 offen sc1"], chk))
    st(8)
    for c in range(2):
        for p in range(2):
            e(f"buffer_load_dwordx4 {rng(RAW+8*c+4*p)}, v13, s[20:23], s33 offen offset:{c*128 + p*2048} sc1 #x{c}{p}")
    if not O["wf_at"]: e("buffer_load_dwordx2 v[8:9], v18, s[20:23], 0 offen sc1 #wf")
    e(tileflag(2)); e("buffer_load_dwordx2 v[6:7], v2, s[20:23], 0 offen sc1 #tf")
    if O["wt_late"]:
        for n in WQ: e(n)
    for ki in range(O["nst"], O["nst"] + O["nst2"]): e(phx(ki, lambda k, dt: 164 + 4*dt))
    st(33)
    for c in range(2):
        for p in range(2):
            e(f"@vm x{c}{p}")
            if c == 0 and p == 0: st(34)
            raw = RAW + 8*c + 4*p
            for q in range(4):
                d = xi(c, p, 0) + 2*q
                e(f"v_lshlrev_b32 v{d}, 16, v{raw+q}\nv_and_b32 v{d+1}, 0xffff0000, v{raw+q}")
                e(f"v_pk_mul_f32 v[{TMP+2*q}:{TMP+2*q+1}], v[{d}:{d+1}], v[{RR+2*q}:{RR+2*q+1}]")
            o = SC + 8*c + 4*p
            for q in range(4): e(f"v_cvt_pk_bf16_f32 v{o+q}, v{TMP+2*q}, v{TMP+2*q+1}")
            e(f"ds_write_b64 v16, v[{o}:{o+1}] offset:{c*8192 + p*4096}\nds_write_b64 v17, v[{o+2}:{o+3}] offset:{c*8192 + p*4096}")
    st(35)
    st(36)
    e("s_waitcnt lgkmcnt(0)\ns_barrier")
    st(30)
    W1L = []
    for kp in range(20):
        for i in range(3):
            pre = [f"s_add_u32 s45, s44, {kp*1024}"] if (kp % 4 == 0 and i == 0) else []
            W1L.append(pre + [f"buffer_load_dwordx4 {arng(12*kp+4*i)}, v{10+i}, s[20:23], s45 offen offset:{(kp%4)*1024} sc1 #w1_{kp}"])
    W1Q = list(W1L)
    tw = lambda c, conj: cmul2(c, a1, lambda t: TC+4*t, lambda t: TS+4*t, conj)
    wm = lambda c: cmul2(c, a1, lambda t: wt(c, 0, t), lambda t: wt(c, 1, t), False)
    def unp(c):
        L = []
        for t in range(2):
            x, y = wt(c, 0, t), wt(c, 1, t)
            for (d, s_) in ((x, y), (x+2, y+1), (y, y+2), (y+2, y+3)): L += [f"v_lshlrev_b32 v{d}, 16, v{s_}", f"v_and_b32 v{d+1}, 0xffff0000, v{s_}"]
        return L
    def intro(base, inv):
        R0, R1 = trreads(0, base), trreads(1, base); A0 = stage64(0, inv)
        second = weave(A0[8:], R1[4:12])
        if not inv:
            U = unp(0); second = ["@vm wt0"] + [z for k in range(8) for z in (A0[8+k], R1[4+k], U[2*k], U[2*k+1])]
        return (R0[:12] + ["s_waitcnt lgkmcnt(4)"] + weave(A0[:8], R0[12:] + R1[:4]) + ["s_waitcnt lgkmcnt(4)"]
                + second + ["s_waitcnt lgkmcnt(4)"] + R1[12:])
    ov = lambda M, AB: weave(M, AB[0], 0, 1, 2) + AB[1]
    A1_ = stage64(1, False)
    def fchk(tag, R, ad):
        chk = [f"v_cmp_ne_u64 vcc, s[10:11], v[{R}:{R+1}]"]
        return [f"@vm {tag}"] + chk + retry_block(tag, [f"buffer_load_dwordx2 v[{R}:{R+1}], v{ad}, s[20:23], 0 offen sc1"], chk)
    I0 = intro(0, False)
    e(I0[:12])
    seq = I0[12:] + fchk("tf", 6, 2) + ["@vm wt1"] + weave(A1_[:8], unp(1), 0, 1, 2) + ["s_waitcnt lgkmcnt(0)"] + ov(A1_[8:], tw(0, True))
    seq += ov(stage32(0, False), tw(1, True)) + ov(stage32(1, False), wm(0)) + ov(stage32(0, True), wm(1)) + ov(stage32(1, True), tw(0, False))
    wr = lambda c: [f"ds_write_b64 v{16+h}, v[{pk(c,p)+2*h}:{pk(c,p)+2*h+1}] offset:{16384 + c*8192 + p*4096}" for p in range(2) for h in range(2)]
    U1 = tw(1, False)
    seq += wr(0) + ([] if O["x2split"] else U1[0] + U1[1] + wr(1))
    cut = int(len(seq) * O["wf_at"])
    if cut: seq[max(0, cut - 60):max(0, cut - 60)] = ["buffer_load_dwordx2 v[8:9], v18, s[20:23], 0 offen sc1 #wf"]
    e(seq[:cut]); e(fchk("wf", 8, 18))
    if O["share1"]: e(share(W1F, 8))
    e(sprinkle(seq[cut:], W1Q, O["w1_gap"], limit=O["w1_p2"]))
    st(31)
    e("s_waitcnt lgkmcnt(0)\ns_barrier")
    st(32)
    if not O["x2split"]: e(intro(16384, True))
    e("s_cmp_eq_u32 s2, 159\ns_cselect_b32 s32, 0, -1")
    def fin(c):
        L = []
        for p in range(2):
            o = a1(c, p, 0)
            for q in range(4): L.append(f"v_cvt_pk_bf16_f32 v{o+q}, v{xi(c,p,0)+2*q}, v{xi(c,p,0)+2*q+1}")
            if c == 1 and p == 1: L += [f"v_and_or_b32 v{o}, v{o}, s32, 1"] + [f"v_and_b32 v{o+q}, s32, v{o+q}" for q in (1, 2, 3)]
            else: L.append(f"v_or_b32 v{o}, 1, v{o}")
            L.append(f"buffer_store_dwordx4 {rng(o)}, v13, s[20:23], s33 offen offset:{c*128 + p*2048} sc1")
        return L
    A1_ = stage64(1, True)
    if O["x2split"]:
        R0, R1 = trreads(0, 16384), trreads(1, 16384); A0 = stage64(0, True)
        UP = P2.cmul(1, a1, lambda t: TC+4*t, lambda t: TS+4*t, False)
        e(R0[:8]); e(weave(UP[:16], R0[8:], 0, 2, 1)); e("s_waitcnt lgkmcnt(8)")
        e(weave(A0[:8], UP[16:32], 0, 1, 2)); e("s_waitcnt lgkmcnt(0)")
        e(weave(A0[8:], UP[32:] + wr(1), 0, 1, 2)); e("s_waitcnt lgkmcnt(0)\ns_barrier")
        F0_ = fin(0)
        e(R1[:8]); e(weave(F0_[:8], R1[8:], 0, 1, 1)); e(F0_[8:]); e("s_waitcnt lgkmcnt(8)")
        e(A1_[:8] + ["s_waitcnt lgkmcnt(0)"] + A1_[8:] + fin(1))
    else:
        e(A1_[:8] + ["s_waitcnt lgkmcnt(0)"] + weave(A1_[8:], fin(0), 0, 1, 2) + fin(1))
    st(9)
    flag_put(e, "kxh", FLH)
    e([f"ds_read_b128 {rng(ph(ki,dt))}, v19 offset:{(5*ki+dt)*1024}" for ki in range(O["nst"] + O["nst2"]) for dt in range(5)])
    e(sprinkle(PHK + [x for ki in range(O["nst"] + O["nst2"], O["npre"]) for x in phx(ki)], W1Q, O["w1_gap"], limit=O["w1_pre"]))
    W1Q_after = list(W1Q)
    print("phi left: late W1 loads", len(W1Q))
    e("s_branch kf_join")
    pos_np0 = len(a.items)
    vm_join = e.vm
    e.vm = VM()
    pos_w0 = len(a.items)
    e("kf_notx:\ns_cmp_ge_u32 s2, 240\ns_cbranch_scc1 kf_spare")
    e("""s_sub_u32 s32, s2, 160
s_and_b32 s29, s32, 7
s_lshl_b32 s29, s29, 1
s_bfe_u32 s33, s32, 0x10003
s_add_u32 s29, s29, s33
s_lshr_b32 s30, s32, 4""")
    for k in range(3):
        div12(e, 2, 3, k)
        e(f"v_bfe_u32 v4, v2, 3, 1\nv_lshlrev_b32 v4, 1, v4\nv_xor_b32 v3, v3, v4\nv_mul_u32_u24 v2, 3072, v2\nv_lshl_add_u32 v{14+k}, v3, 4, v2")
    e("""s_lshr_b32 s32, s28, 1
s_and_b32 s33, s28, 1
s_mul_i32 s33, s33, 10
s_add_u32 s32, s32, s33
s_mul_i32 s41, s32, 6144
s_lshl_b32 s33, s30, 1
s_add_u32 s42, s32, s33
s_mul_i32 s40, s29, 192""")
    D = []
    for c in range(5):
        for hf in range(2):
            for k in range(3):
                d = []
                if hf == 0 and k == 0: d += [f"s_add_u32 s43, s42, {2*c}", "s_cmp_ge_u32 s43, 20", "s_cselect_b32 s44, 20, 0", "s_sub_u32 s43, s43, s44", "s_mul_i32 s43, s43, 98304", "s_add_u32 s43, s43, s40"]
                if hf == 1 and k == 0: d += ["s_add_u32 s43, s43, 49152"]
                d = [f"s_add_u32 m0, s41, {c*12288 + (3*hf+k)*1024}"] + d + [f"buffer_load_dwordx4 v{14+k}, s[24:27], s43 offen {ld} lds" + (f" #c{c}" if hf == 1 and k == 2 else "")]
                D.append(d)
    U_setup, U_dma, U_addr, U_frag = w2f_parts(ld, 2 if O['uearly'] else ACC, O['uearly'])
    if not O["lean_w"]: e(GH)
    e("s_waitcnt lgkmcnt(0)")
    st(1)
    srd(e, 24, 52, 1966080)
    nf = 0 if O["w_late"] else 6
    for d in D[:nf]: e(d)
    if O["whead"]:
        head = a.items[pos_w0+1:]; del a.items[pos_w0:]
        a.items[pos_split-1] = ("i", "s_cbranch_scc0 kf_x")
        a.items[pos_split:pos_split] = head + [("i", "s_branch kf_wrest"), ("l", "kf_x")]
        a.label("kf_wrest")
    if O["lean_w"]: e(GH)
    srd(e, 20, 14, WSEND + (0x2000000 if O.get('dummy') else 0))
    warm_pages(248)
    BQ = D[nf:O["w_n"]]
    if O["uearly"]:
        e("s_sub_u32 s51, s2, 160"); e(U_setup); e(U_addr)
        BQ = D[nf:O["u_pos"]] + U_dma + D[O["u_pos"]:12]
    e(sprinkle(GL, BQ, O["w_gap"], first=O["w_late"]))
    W0 = BQ
    WA = [f"s_mul_i32 s12, s29, {6*20*1024}\ns_lshl_b32 s13, s30, 2\ns_add_u32 s13, s13, s28", f"s_lshl_b32 s13, s13, 10\ns_add_u32 s12, s12, s13\ns_add_u32 s12, s12, {W1F + O.get('w1shift', 0)}"]
    BQ = D[O["w_n"]:24] + [["s_sub_u32 s51, s2, 160"] + U_setup] + D[24:] + U_dma
    if O["uearly"]: BQ = D[12:] + [WA]
    st(2)
    if not O["w_late"]:
        for d in W0: e(d)
        W0 = []
    phi_fix(e, "kw")
    for d in W0: e(d)
    e(f"""v_lshrrev_b32 v2, 4, v{vL}
v_bfe_u32 v3, v{vL}, 2, 2
v_lshl_add_u32 v3, v2, 3, v3
v_mul_u32_u24 v3, 192, v3
v_and_b32 v4, 3, v{vL}
v_lshl_add_u32 v3, v4, 3, v3
v_and_b32 v2, 1, v2
v_lshlrev_b32 v2, 5, v2
v_add_u32 v10, v3, v2
v_sub_u32 v11, v3, v2
v_add_u32 v11, 32, v11
v_add_u32 v12, 61440, v10
v_add_u32 v13, 61440, v11""")
    st(3)
    def wreads(s_, buf):
        return [f"ds_read_b64_tr_b16 v[{FR+24*buf+4*ft+2*h}:{FR+24*buf+4*ft+2*h+1}], v{10 + (ft % 2) + (2 if s_ >= 10 else 0)} offset:{(s_%10)*6144 + h*768 + 64*(ft//2)}" for ft in range(6) for h in range(2)]
    wacc = lambda s_, ft, p: ACC + 48*s_ + 8*ft + 4*p
    def wmf(s_, buf, first):
        return [f"{MF} {rng(wacc(s_//10,ft,p))}, {rng(P(s_%10) if p == 0 else Q(s_%10))}, {rng(FR+24*buf+4*ft)}, {'0' if first else rng(wacc(s_//10,ft,p))}" for ft in range(6) for p in range(2)]
    def wextra(n):
        L = []
        for _ in range(3):
            if BQ: L += BQ.pop(0)
        if n == 12: assert not BQ; L += nonce_load(18)
        return L
    def wepi(ft, packed):
        o = (2 + 4*(ft % 2)) if not packed else FR + 4*ft; L = []
        for p in range(2):
            for rp in range(2):
                d = wacc(0,ft,p) + 2*rp; s_ = wacc(1,ft,p) + 2*rp
                if packed: L.append(f"v_pk_fma_f32 v[{d}:{d+1}], v[{s_}:{s_+1}], s[46:47], v[{d}:{d+1}]")
                else: L += [f"v_fma_f32 v{d+k}, v{s_+k}, s46, v{d+k}" for k in range(2)]
                L.append(f"v_cvt_pk_bf16_f32 v{o+2*p+rp}, v{d}, v{d+1}")
        return L + [f"buffer_store_dwordx4 {rng(o)}, v17, s[20:23], s12 offen sc1 #w1f", "s_add_u32 s12, s12, 20480"]
    BQ += [WA + [f"v_lshlrev_b32 v17, 4, v{vL}"]]
    kloop(e, wreads, wmf, wextra, st, 6)
    st(4)
    for ft in range(6): e(wepi(ft, True))
    e(gemm_role); e(PHS)
    e("@vm nonce"); nonce_get(e, "kv", 18)
    F = wave_flag(FL1, 14)
    e(F[:-1]); e("@drain"); e(F[-1:]); st(37)
    e("s_barrier")
    e("s_branch kf_np2")
    e("kf_spare:")
    e(f"""s_and_b32 s32, s2, 7
s_lshl_b32 s33, s32, 8
s_bfe_u32 s34, s2, 0x10003
s_lshl_b32 s35, s34, 7
s_add_u32 s33, s33, s35
s_lshl_b32 s35, s28, 5
s_add_u32 s33, s33, s35
s_mul_i32 s33, s33, 1280
v_lshrrev_b32 v2, 4, v{vL}
v_mul_u32_u24 v3, 1280, v2
v_and_b32 v4, 15, v{vL}
v_lshl_add_u32 v10, v4, 4, v3
s_lshl_b32 s34, s34, 2
s_add_u32 s34, s34, s28
s_lshl_b32 s36, s32, 9
s_lshl_b32 s35, s34, 4
s_add_u32 s36, s36, s35
s_add_u32 s36, s36, {RB}
s_lshl_b32 s37, s32, 10
s_lshl_b32 s35, s34, 5
s_add_u32 s37, s37, s35
s_add_u32 s37, s37, {MU}
v_lshlrev_b32 v11, 2, v2
s_mov_b32 s38, 0x3f803f80
s_waitcnt lgkmcnt(0)""")
    st(1)
    srd(e, 16, 4, 2621440); srd(e, 20, 14, WSEND + (0x2000000 if O.get('dummy') else 0))
    SQ = []
    for i in range(8):
        for v in range(5): SQ.append((["s_add_u32 s33, s33, 5120"] if i and v == 0 else []) + [f"buffer_load_dwordx4 {rng(84+20*i+4*v)}, v10, s[16:19], s33 offen offset:{256*v} {ld} #s{i}"])
    warm_pages(248)
    for n in SQ[:12]: e(n)
    del SQ[:12]
    e(nonce_load(18))
    e("s_mov_b32 s42, 0x00010001\ns_mov_b32 s43, 0x00010001")
    for i in range(8):
        e(f"@vm s{i}")
        X = []
        for k in range(20):
            c0 = "0" if k < 2 else None; r = 84 + 20*i + k
            X += [f"v_dot2_f32_bf16 v{4+k%2}, v{r}, v{r}, {c0 or 'v%d' % (4+k%2)}", f"v_dot2_f32_bf16 v{6+k%2}, v{r}, s38, {c0 or 'v%d' % (6+k%2)}"]
        e(sprinkle(X, SQ, 30, first=0, limit=5))
        e("v_add_f32 v4, v4, v5\nv_add_f32 v5, v6, v7")
        for sh in (8, 4, 2, 1):
            e(f"v_add_f32_dpp v4, v4, v4 row_ror:{sh} row_mask:0xf bank_mask:0xf\nv_add_f32_dpp v5, v5, v5 row_ror:{sh} row_mask:0xf bank_mask:0xf")
        if i == 0: e("v_mov_b32 v8, v4\nv_mov_b32 v9, v5")
        else: e("s_lshl_b64 s[42:43], s[42:43], 1\nv_cndmask_b32 v8, v8, v4, s[42:43]\nv_cndmask_b32 v9, v9, v5, s[42:43]")
    assert not SQ
    e(f"""v_mul_f32 v9, {f2h(1/640)}, v9
v_mul_f32 v4, {f2h(1/640)}, v8
v_fma_f32 v4, -v9, v9, v4
v_max_f32 v4, 0, v4
v_add_f32 v4, {f2h(EPS)}, v4
v_rsq_f32 v4, v4
v_bfe_u32 v5, v{vL}, 1, 2
v_and_b32 v6, 1, v{vL}
v_mul_f32 v8, {f2h(2.0**-11)}, v4
v_lshl_add_u32 v12, v5, 7, v11
v_lshl_add_u32 v12, v6, 12, v12
v_lshl_add_u32 v13, v5, 8, v11
v_lshl_add_u32 v13, v6, 4, v13
s_mov_b32 s42, 0x00ff00ff
s_mov_b32 s43, 0x00ff00ff
s_mov_b64 exec, s[42:43]
buffer_store_dword v8, v12, s[20:23], s36 offen sc1
buffer_store_dword v9, v13, s[20:23], s37 offen sc1
s_mov_b64 exec, -1""")
    nonce_get(e, "kc", 18)
    e(gemm_role); e(PHS); e(PHK)
    for ki in range(O["wpre"]): e(phx(ki))
    e("@drain\ns_barrier"); flag_put(e, "ks1", FL1)
    e("kf_np2:")
    st(6)
    def unit_late():
        if O["uearly"]: return
        e("s_cmp_ge_u32 s2, 224\ns_cbranch_scc1 kn_nounit")
        e(U_addr)
        e([x for j in range(7) for x in U_frag[j][0]])
        for j in range(8):
            e(f"s_waitcnt lgkmcnt({min(12, 14 - 2*j)})"); e(U_frag[j][1])
            if j == 0: e(U_frag[7][0])
        e("kn_nounit:")
    e(wflag); e(w1set)
    if O["opre_kp"] == -1: e(outpre(140, O["opre_fl"]))
    if O["biasa"]: e(biasld)
    if O["unit_at"] < 0: unit_late()
    if O["np_early"]:
        e(PHK)
        for ki in range(O["wpre"], O["npre"]): e(phx(ki))
    flag_poll(e, "kn_w", 18, 200, back=2)
    st(8)
    third = """s_lshr_b32 s32, s2, 5
s_max_u32 s32, s32, 5
s_sub_u32 s32, s32, 5
s_lshl_b32 s32, s32, 2
s_add_u32 s32, s32, s28
s_mul_i32 s32, s32, 20480
s_mul_i32 s33, s30, 245760
s_add_u32 s32, s32, s33
s_add_u32 s33, s32, {0}
s_add_u32 s34, s33, 8192
s_add_u32 s35, s33, 12288"""
    touch = [f"buffer_load_dword v{200+k}, v203, s[20:23], s{33+k} offen sc1" for k in range(3)]
    e(f"v_lshlrev_b32 v203, 7, v{vL}")
    if O["touch"]: e(third.format(W1F)); e(touch)
    elif O["share1"]: e(share(W1F, 200))
    X = [] if O["np_early"] else PHK + [x for ki in range(O["wpre"], O["npre"]) for x in phx(ki)]
    NQ = list(W1L[:60 - len(W1Q_after)])
    cut = int(len(X) * min(1, max(0, O["unit_at"])))
    e(sprinkle(X[:cut], NQ, O["np_gap"], first=O["np_first"]))
    st(70)
    if 0 <= O["unit_at"] <= 1: unit_late()
    st(71)
    e(sprinkle(X[cut:], NQ, O["np_gap"]))
    st(72)
    for n in NQ: e(n)
    if O["unit_at"] > 1: unit_late()
    st(73)
    e(tileflag(206))
    e(f"s_sub_u32 s32, s2, 96\ns_lshl_b32 s32, s32, 7\ns_add_u32 s32, s32, {FLH}\nv_mov_b32 v207, s32\nv_cmp_gt_u32 vcc, 32, v{vL}\ns_nop 0\nv_cndmask_b32 v206, v207, v206, vcc")
    e("buffer_load_dwordx2 v[204:205], v206, s[20:23], 0 offen sc1\n@drain")
    if not O["uearly"]: e("s_barrier"); flag_put(e, "kn2", FL2, 208)
    e("v_cmp_ne_u64 vcc, s[10:11], v[204:205]\ns_cbranch_vccz kn_u_ok")
    flag_poll(e, "kn_u", 206, 204, back=2)
    e("kn_u_ok:")
    st(74)
    st(9)
    e.vm = vm_join
    moved = []
    if O["relay"]:
        moved = a.items[pos_np0:] + [("i", "s_branch kf_join")]; del a.items[pos_np0-1:]
    e("kf_join:")
    if W1Q: e(f"s_add_u32 s45, s44, {(60 - len(W1Q))//12*4096}")
    PHQ = (phk(120) if O["npre"] < 5 else []) + [x for ki in range(O["npre"], 5) for x in phx(ki, PT=120)]
    e(f"""s_mul_i32 s33, s29, 81920
s_lshl_b32 s39, s28, 12
s_add_u32 s33, s33, s39
v_bfe_u32 v2, v{vL}, 1, 2
v_bfe_u32 v12, v{vL}, 4, 2
v_xor_b32 v2, v2, v12
v_lshlrev_b32 v2, 5, v2
v_and_b32 v13, 1, v{vL}
v_lshl_or_b32 v2, v13, 4, v2
v_lshrrev_b32 v13, 3, v{vL}
v_lshl_add_u32 v13, v13, 7, v2
v_add_u32 v18, s39, v10""".replace("v12", "v204"))
    for c in range(1, 5): e(f"s_add_u32 s{34+c}, s33, {c*16384}")
    TG = SG
    hload = lambda c: [f"s_add_u32 m0, s39, {c*16384}\nbuffer_load_dwordx4 v13, s[20:23], s{33 if c == 0 else 34+c} offen offset:{q*1024} sc1 lds" + (f" #h{c}" if q == 3 else "") for q in range(4)]
    htag = lambda c: [f"ds_read_b32 v{TG+q}, v{18 if c < 4 else 19} offset:{(c%4)*16384 + q*1024}" for q in range(4)]
    hcheck = lambda c: [f"v_bitop3_b32 v2, v{TG}, v{TG+1}, v{TG+2} bitop3:0x80", f"v_bitop3_b32 v2, v2, v{TG+3}, 1 bitop3:0x80", "v_cmp_eq_u32 vcc, 0, v2"]
    hretry = lambda c: retry_block(f"h{c}", hload(c), htag(c) + ["s_waitcnt lgkmcnt(0)"] + hcheck(c))
    st(10)
    e(hload(0)); e(hload(1)); e(hload(2))
    e(f"""v_add_u32 v19, 0x10000, v18
v_lshrrev_b32 v2, 2, v{vL}
v_bfe_u32 v204, v2, 1, 2
v_and_b32 v205, 3, v{vL}
v_lshlrev_b32 v205, 3, v205
v_lshl_add_u32 v205, v2, 7, v205""")
    for u in range(4): e(f"s_add_u32 s{40+u}, s28, {u}\ns_and_b32 s{40+u}, s{40+u}, 3\nv_xor_b32 v2, s{40+u}, v204\nv_lshl_add_u32 v{14+u}, v2, 5, v205")
    e(f"s_mul_i32 s12, s30, 48\ns_mul_i32 s32, s28, 12\ns_add_u32 s12, s12, s32\ns_mul_i32 s12, s12, 5120\ns_add_u32 s12, s12, {W2F}")
    e("@vm h0"); e(htag(0)); e("s_waitcnt lgkmcnt(0)"); e(hcheck(0)); e(hretry(0))
    st(11)
    e("s_barrier")
    bf = lambda b, u: (BF + 16*b if b < 2 else SG + 4) + 4*u
    breads = lambda kp, b: [f"ds_read_b64_tr_b16 v[{bf(b,u)+2*h}:{bf(b,u)+2*h+1}], v{14+u} offset:{(kp%16)*4096 + h*2048}" for u in range(4) for h in range(2)]
    ac = lambda i, u: AC + 16*i + 4*u
    W2Q = []
    for n in range(60):
        m = n % 15
        m = n % 4
        pre = [f"s_add_u32 s13, s12, {n*1024}"] if m == 0 else []
        W2Q.append(pre + [f"buffer_load_dwordx4 {arng(4*n)}, v10, s[20:23], s13 offen offset:{(m%4)*1024} sc1"])
    if O.get('now2'): W2Q.clear(); W2Q += []
    B1, B1R, RT, FT = SG + 20, SG + 32, SG, SG + 20
    e(breads(0, 0)); e(breads(1, 1)[:6]); e("s_waitcnt lgkmcnt(6)"); e(breads(1, 1)[6:])
    sc1 = Sched(O["g1_vgap"])
    c1 = -2*math.log2(math.e)*math.sqrt(2/math.pi); c2 = c1*0.044715
    gram = lambda k: f"{MF} {rng(GR)}, {rng(bf(k%3,0))}, {rng(bf(k%3,0))}, {'0' if k == 0 else rng(GR)}"
    for kp in range(20):
        b = kp % 3; c = kp // 4; ph_ = kp % 4
        M = []
        if kp <= 16: M.append(gram(kp))
        for u in range(4):
            for i in range(3): M.append(f"{MF} {rng(ac(i,u))}, {arng(12*kp+4*i)}, {rng(bf(b,u))}, {'0' if kp == 0 else rng(ac(i,u))}")
        young = 12 if (ph_ == 1 and c < 4) else {18: 6, 19: 0}.get(kp, 8)
        e(f"@vm w1_{kp}\ns_waitcnt lgkmcnt({young})")
        if kp == 8: st(20)
        st(50 + kp)
        if kp == 16: st(21)
        lds, other = [], []
        if kp == 17:
            M = [gram(17)] + M[:8] + ["s_waitcnt lgkmcnt(8)", gram(18)] + M[8:]
        if kp == 18: M = [gram(19)] + M
        if kp < 18:
            if ph_ == 2 and c < 4:
                e(sc1(M[:2], [], [f"v_add_u32 v{14+u}, 0x10000, v{14+u}" for u in range(4)] if kp == 14 else [])); M = M[2:]; e("s_barrier")
            lds += breads(kp+2, (kp+2) % 3)
        if kp == 0: other += hload(3)
        if kp == 2: other += hload(4)
        if ph_ == 0 and c < 4: lds += [f"@vm h{c+1}\n" + htag(c+1)[0]] + htag(c+1)[1:]
        if ph_ == 1 and c < 4:
            e(sc1(M[:5], lds[:5], [])); M = M[5:]; lds = lds[5:]
            other[:0] = ["s_waitcnt lgkmcnt(5)\n" + hcheck(c+1)[0]] + hcheck(c+1)[1:] + hretry(c+1)
        if kp == O["w2_start"] - 2:
            other += [f"s_lshl_b32 s32, s30, 7\ns_add_u32 s32, s32, {(FL1 if O['uearly'] else FL2) + 160*128}", f"v_and_b32 v{FT}, 7, v{vL}", f"v_lshl_add_u32 v{FT}, v{FT}, 10, s32",
                      f"buffer_load_dwordx2 v[{FT+2}:{FT+3}], v{FT}, s[20:23], 0 offen sc1 #f2"]
        if kp == O["w2_start"]:
            chk = [f"v_cmp_ne_u64 vcc, s[10:11], v[{FT+2}:{FT+3}]"]
            other += ["@vm f2"] + chk + retry_block("f2", [f"buffer_load_dwordx2 v[{FT+2}:{FT+3}], v{FT}, s[20:23], 0 offen sc1"], chk)
            if O["share2"]: other += [x.replace("s38", "s46") for x in share(W2F, FT)]
        if kp == O["gpre_kp"]:
            other += [f"s_lshl_b32 s32, s29, 3\ns_add_u32 s32, s32, s30\ns_mul_i32 s32, s32, 24576\ns_mul_i32 s34, s28, 6144\ns_add_u32 s32, s32, s34\ns_add_u32 s46, s32, {G}\ns_add_u32 s47, s46, 4096"]
        if O["gpre_kp"] <= kp < O["gpre_kp"] + 6:
            i = kp - O["gpre_kp"]
            other += [f"buffer_store_dwordx4 {rng(TG)}, v10, s[20:23], s{46 + i//4} offen offset:{(i%4)*1024} sc1"]
        if kp == O["opre_kp"]: other += outpre(FT + 4, O["opre_fl"])
        if kp == 11 and O["biasa"]: other += [f"v_accvgpr_read_b32 v{B1R+k}, a{240+k}" for k in range(16)]
        if kp == 11 and not O["biasa"]:
            other += ["s_mul_i32 s32, s30, 384\ns_mul_i32 s34, s28, 96\ns_add_u32 s32, s32, s34", f"v_lshrrev_b32 v2, 4, v{vL}", f"v_lshl_add_u32 v{B1R+4}, v2, 3, s32"]
            other += [f"global_load_dwordx2 v[{B1R+2*i}:{B1R+1+2*i}], v{B1R+4}, s[54:55] offset:{32*i} #b1x" for i in range(3)]
        if kp == 12 and not O["biasa"]:
            other += ["s_mul_i32 s32, s30, 160", f"v_lshrrev_b32 v2, 4, v{vL}", "v_lshl_add_u32 v246, v2, 4, s32", "v_lshl_add_u32 v250, v2, 3, s32",
                      "global_load_dwordx4 v[242:245], v246, s[58:59]", "global_load_dwordx4 v[246:249], v246, s[58:59] offset:64", "global_load_dwordx2 v[250:251], v250, s[58:59] offset:128"]
        if kp == 13:
            other += [f"s_lshl_b32 s32, s29, 8\ns_lshl_b32 s34, s28, 6\ns_add_u32 s32, s32, s34\ns_add_u32 s32, s32, {MU}",
                      f"v_and_b32 v13, 15, v{vL}", "v_lshlrev_b32 v13, 2, v13"]
        if kp == 15: other += ["buffer_load_dword v13, v13, s[20:23], s32 offen sc1 #b1"]
        if kp == 16:
            other += [f"v_and_b32 v2, 3, v{vL}", "v_cmp_eq_u32 vcc, 1, v2", "v_cmp_eq_u32 s[34:35], 2, v2", "v_cmp_eq_u32 s[36:37], 3, v2",
                      f"v_bfe_u32 v18, v{vL}, 2, 2", f"v_lshrrev_b32 v19, 4, v{vL}", "v_cmp_eq_u32 s[38:39], v18, v19", f"v_and_b32 v18, 15, v{vL}", "v_lshlrev_b32 v18, 2, v18",
                      f"s_lshl_b32 s32, s28, 6\ns_add_u32 s32, s32, {RX}", "v_add_u32 v19, s32, v18", f"v_add_u32 v18, {RX}, v18"]
        if kp == 14:
            other += [f"s_lshl_b32 s8, s29, 3", "s_add_u32 s8, s8, s30", "s_mul_i32 s8, s8, 24576", f"s_add_u32 s8, s8, {G + O.get('gshift', 0)}",
                      "s_lshr_b32 s3, s28, 1", "s_add_u32 s3, s3, 4", "s_lshl_b32 s3, s3, 10", "s_add_u32 s3, s3, s8", "s_and_b32 s4, s28, 1", "s_lshl_b32 s4, s4, 9", "s_add_u32 s3, s3, s4",
                      "s_lshl_b32 s4, s28, 10", "s_add_u32 s8, s8, s4"] + [f"s_mul_i32 s{4+u}, s{40+u}, 6144" for u in range(4)]
        if kp == 15:
            assert not W1Q
            other += [f"v_and_b32 v2, 31, v{vL}", "v_lshlrev_b32 v2, 4, v2", f"v_cmp_gt_u32 vcc, 32, v{vL}",
                      f"v_mov_b32 v{RT}, s4", f"v_mov_b32 v{RT+1}, s5", f"v_cndmask_b32 v{RT}, v{RT+1}, v{RT}, vcc", f"v_add_u32 v11, v2, v{RT}",
                      f"v_mov_b32 v{RT}, s6", f"v_mov_b32 v{RT+1}, s7", f"v_cndmask_b32 v{RT}, v{RT+1}, v{RT}, vcc", f"v_add_u32 v12, v2, v{RT}"] + [f"s_add_u32 s{4+u}, s{4+u}, s8" for u in range(4)]
        if kp == 17:
            other += ["@vm b1x"]
            for i in range(3):
                for q in range(2): other += [f"v_and_b32 v{B1+4*i+2*q+1}, 0xffff0000, v{B1R+2*i+q}", f"v_lshlrev_b32 v{B1+4*i+2*q}, 16, v{B1R+2*i+q}"]
        if kp == 18: other += [f"s_mov_b32 s46, {f2h(c2)}", f"s_mov_b32 s47, {f2h(c2)}", "s_nop 0", "s_nop 0", "s_nop 0", "s_nop 0"]
        if kp == 18:
            x5, x6, x7 = RT, RT+1, RT+2
            other += [f"v_cndmask_b32 v{x5}, v{GR}, v{GR+1}, vcc", f"v_cndmask_b32 v{x5}, v{x5}, v{GR+2}, s[34:35]", f"v_cndmask_b32 v{x5}, v{x5}, v{GR+3}, s[36:37]",
                      f"v_mul_f32 v{x5}, {f2h(2/640**2)}, v{x5}", f"v_add_f32 v{x6}, {f2h(EPS)}, v{x5}", f"v_rcp_f32 v{x7}, v{x6}", f"v_rsq_f32 v{x6}, v{x6}", f"v_fmaak_f32 v{x5}, v{x5}, v{x7}, {f2h(EPS)}",
                      f"v_rsq_f32 v{x5}, v{x5}", f"v_mul_f32 v{x6}, {f2h(2/640)}, v{x6}", f"v_mul_f32 v{x5}, v{x5}, v{x6}", f"s_mov_b64 exec, s[38:39]\nds_write_b32 v19, v{x5}\ns_mov_b64 exec, -1"]
        if kp == 19:
            assert not W1Q
            e(M[:2]); M = M[2:]; e("s_barrier")
            for u in range(4): other += [f"s_lshl_b32 s32, s{40+u}, 6\nv_add_u32 v19, s32, v18", f"ds_read_b32 v{GR+u}, v19"]
            other += [f"v_mov_b32 v18, {f2h(c1)}", f"v_mov_b32 v19, {f2h(c1)}"]
        nb = O["g1_bg"] if kp >= O["g1_start"] else 0
        bgq = W1Q
        if not W1Q:
            bgq = W2Q; nb = min(nb, O["g1_bg2"], (12*(kp-1))//4 - (60 - len(W2Q))) if W2Q and kp > O["w2_start"] + O["w2_lag"] else 0
        e(sc1(M, lds, other, bgq, nb, low=None))
    assert not W1Q
    st(22)
    e("s_waitcnt lgkmcnt(0)")
    OUT = BF
    def gelu4(i, u, o, T):
        L = []; x = ac(i, u); p2 = lambda r: f"v[{r}:{r+1}]"
        for q in range(2): L.append(f"v_pk_fma_f32 {p2(x+2*q)}, {p2(x+2*q)}, {p2(GR+(u&2))}, {p2(B1+4*i+2*q)} op_sel:[0,{u&1},0] op_sel_hi:[1,{u&1},1]")
        for q in range(2): L.append(f"v_pk_mul_f32 {p2(T+2*q)}, {p2(x+2*q)}, {p2(x+2*q)}")
        for q in range(2): L.append(f"v_pk_fma_f32 {p2(T+2*q)}, {p2(T+2*q)}, s[46:47], v[18:19]")
        for q in range(2): L.append(f"v_pk_mul_f32 {p2(T+2*q)}, {p2(T+2*q)}, {p2(x+2*q)}")
        for r in range(4): L.append(f"v_exp_f32 v{T+r}, v{T+r}")
        for q in range(2): L.append(f"v_pk_add_f32 {p2(T+2*q)}, {p2(T+2*q)}, 1.0 op_sel_hi:[1,0]")
        for r in range(4): L.append(f"v_rcp_f32 v{T+r}, v{T+r}")
        for q in range(2): L.append(f"v_pk_mul_f32 {p2(T+2*q)}, {p2(T+2*q)}, {p2(x+2*q)}")
        for q in range(2): L.append(f"v_cvt_pk_bf16_f32 v{o+q}, v{T+2*q}, v{T+2*q+1}")
        return L
    L = []
    for u in range(4):
        o = OUT + 4*u
        L += gelu4(0, u, o, SG) + gelu4(1, u, o+2, SG+4) + [f"buffer_store_dwordx4 {rng(o)}, v10, s[20:23], s{4+u} offen sc1"]
        if u % 2 == 1:
            o = OUT + 16 + 4*(u//2)
            L += gelu4(2, u-1, o, SG) + gelu4(2, u, o+2, SG+4)
            L += [f"v_permlane32_swap_b32 v{o}, v{o+2}", f"v_permlane32_swap_b32 v{o+1}, v{o+3}", f"buffer_store_dwordx4 {rng(o)}, v{11+u//2}, s[20:23], s3 offen sc1 #gst"]
    cut = int(len(L) * O["gelu_cut"])
    e(sprinkle(L[:cut], W2Q, O["gelu_gap"])); e(L[cut:])
    st(23)
    A2, BF2, MB, GB, PS = 120, 204, 236, 20, 204
    a2 = lambda u, dt: A2 + 20*u + 4*dt
    bf2 = lambda b, u: BF2 + 16*b + 4*u
    gb = lambda b, ks: GB + 48*b + 4*ks
    e("s_mul_i32 s32, s28, 20480\ns_sub_u32 s32, s32, 0x10000")
    for u in range(4): e(f"v_add_u32 v{14+u}, s32, v{14+u}")
    br2 = lambda ki, b: [f"ds_read_b64_tr_b16 v[{bf2(b,u)+2*h}:{bf2(b,u)+2*h+1}], v{14+u} offset:{ki*4096 + h*2048}" for u in range(4) for h in range(2)]
    print("phi left for the third window:", len(PHQ), " W2 loads left:", len(W2Q))
    gflag = ["@vm gst", f"s_lshl_b32 s35, s29, 3\ns_add_u32 s35, s35, s30\ns_lshl_b32 s35, s35, 4\ns_add_u32 s35, s35, s28\ns_lshl_b32 s35, s35, 3\ns_add_u32 s35, s35, {FL3}",
             "v_mov_b32 v18, s10", "v_mov_b32 v19, s11", "v_mov_b32 v12, 0", "buffer_store_dwordx2 v[18:19], v12, s[20:23], s35 offen sc1"]
    if O["gflag_ki"] < 0:
        cut = int(len(PHQ) * O["gflag_at"])
        e(gflag[1:-1]); e(sprinkle(PHQ[:cut], W2Q, O["ext_gap"])); e(gflag[:1] + gflag[-1:]); del PHQ[:cut]
    e(sprinkle(PHQ, W2Q, O["ext_gap"]))
    e(br2(0, 0))
    UB = ["@vm b1"]
    for q in [0, 1, 2, 3, 4, 5, 9, 8, 7, 6]:
        lo, hi = f"v_lshlrev_b32 v{MB+2*q}, 16, v{242+q}", f"v_and_b32 v{MB+2*q+1}, 0xffff0000, v{242+q}"
        UB += ([lo, hi] if q <= 5 else [hi, lo]) + [f"v_add_f32 v{MB+2*q}, v13, v{MB+2*q}", f"v_add_f32 v{MB+2*q+1}, v13, v{MB+2*q+1}"]
    UB += [f"s_lshl_b32 s32, s29, 3\ns_lshl_b32 s33, s28, 1\ns_add_u32 s32, s32, s33\ns_mul_i32 s32, s32, 24576\ns_add_u32 s32, s32, {G}",
           "\n".join(f"s_mul_i32 s{36+u}, s{40+u}, 6144\ns_add_u32 s{36+u}, s{36+u}, s32" for u in range(4)),
           f"s_lshl_b32 s32, s29, 3\ns_lshl_b32 s33, s28, 1\ns_add_u32 s33, s33, s32\ns_lshl_b32 s33, s33, 7\ns_add_u32 s33, s33, {FL3}",
           f"v_bfe_u32 v2, v{vL}, 2, 1", f"v_and_b32 v3, 3, v{vL}", "v_lshlrev_b32 v3, 3, v3", "v_lshl_add_u32 v3, v2, 7, v3", "v_add_u32 v11, s33, v3"]
    for gq in range(4):
        UB += [f"v_add_u32 v{6+gq}, {(gq//2)*24576 + (gq%2)*3072}, v10"]
    def gl1(u, b, ks): return f"buffer_load_dwordx4 {rng(gb(b,ks))}, v{6 + ks//3}, s[20:23], s{36+u} offen offset:{(ks%3)*1024} sc1" + (f" #g{u}_{ks}")
    gload = lambda u, b: [gl1(u, b, ks) for ks in range(12)]
    for ki in range(5):
        M = [f"{MF} {rng(a2(u,dt))}, {rng(ph(ki,dt))}, {rng(bf2(ki%2,u))}, {'0' if ki == 0 else rng(a2(u,dt))}" for u in range(4) for dt in range(5)]
        e("s_waitcnt lgkmcnt(0)")
        st(80 + ki)
        if ki == O["gflag_ki"]: e(gflag[:1]); fl = gflag[1:]; st(86)
        else: fl = []
        UB[:0] = fl
        if ki == 4:
            for n in W2Q: e(n)
            W2Q.clear(); UB.append("buffer_load_dwordx2 v[18:19], v11, s[20:23], 0 offen sc1 #gf")
        e(sc1(M, br2(ki+1, 1-ki%2) if ki < 4 else [], UB, W2Q, 5, flush=(ki == 4)))
    for n in W2Q: e(n)
    for u in range(1, 4): e(f"s_mul_i32 s33, s{40+u}, 15360\ns_add_u32 s33, s33, {RG + (u-1)*5120}\nv_add_u32 v{13+u}, s33, v10")
    e(f"s_mul_i32 s33, s28, 15360\ns_add_u32 s33, s33, {RG}\nv_add_u32 v17, s33, v10")
    st(24)
    chk = ["v_cmp_ne_u64 vcc, s[10:11], v[18:19]"]
    e("@vm gf"); e(chk); e(retry_block("gf", ["buffer_load_dwordx2 v[18:19], v11, s[20:23], 0 offen sc1"], chk))
    e(gload(1, 0))
    st(25)
    order = [1, 2, 3, 0]; sc2 = Sched(1)
    if O.get("dummy"): e("s_add_u32 s60, s14, 0x3000000\ns_addc_u32 s61, s15, 0")
    srd(e, 16, 60, 2621440)
    for n, u in enumerate(order):
        b = n % 2
        first = []
        if n >= 1:
            pu = order[n-1]
            for dt in range(5): first += [f"ds_write_b128 v{13+pu}, {rng(a2(pu,dt))} offset:{dt*1024}"] + [""] * (3 if n < 3 else 5)
        if n == 3:
            first += ["s_waitcnt lgkmcnt(0)\ns_barrier"]
            rd = lambda sidx, base: [f"ds_read_b128 {rng(base+4*dt)}, v17 offset:{sidx*5120 + dt*1024}" for dt in range(5)]
            first += rd(0, PS) + rd(1, GB) + ["s_waitcnt lgkmcnt(5)"]
            A_ = [f"v_add_f32 v{MB+q}, v{MB+q}, v{PS+q}" for q in range(20)]
            first += [z for k in range(5) for z in (rd(2, GB+20)[k], A_[k])] + A_[5:] + ["s_waitcnt lgkmcnt(5)"] + [f"v_add_f32 v{MB+q}, v{MB+q}, v{GB+q}" for q in range(20)]
        if n == 2:
            first += [f"s_lshr_b32 s32, s29, 2\ns_lshl_b32 s32, s32, 8\ns_and_b32 s33, s29, 3\ns_lshl_b32 s33, s33, 3\ns_add_u32 s32, s32, s33\ns_lshl_b32 s33, s28, 6\ns_add_u32 s32, s32, s33",
                      f"v_lshrrev_b32 v3, 5, v{vL}", f"v_bfe_u32 v4, v{vL}, 2, 3", "v_lshl_add_u32 v3, v3, 5, v4", "v_add_u32 v3, s32, v3", "v_mul_u32_u24 v3, 1280, v3",
                      f"v_and_b32 v5, 3, v{vL}", f"v_and_b32 v12, 60, v{vL}", "v_lshl_add_u32 v12, v5, 6, v12",
                      "v_lshl_add_u32 v4, v5, 4, v3", "v_lshl_add_u32 v5, v5, 3, v3", "s_mul_i32 s32, s30, 160"]
        first = [x for x in first if x]
        wr_ = [x for x in first if x.startswith("ds_write_b128")]; first = [x for x in first if not x.startswith("ds_write_b128")]
        for ks in range(12):
            M = [f"{MF} {rng(a2(u,dt))}, {arng(20*ks+4*dt)}, {rng(gb(b,ks))}, {rng(a2(u,dt))}" for dt in range(5)]
            e(f"@vm g{u}_{ks}")
            if n == 0 and ks == 0: st(87)
            pre = ([gl1(order[n+1], 1-b, ks)] if n + 1 < 4 else [])
            if wr_: e(M[:2] if ks == 0 else []); e(sc2(M[2:] if ks == 0 else M, [], pre + [wr_.pop(0)]))
            else: e(sc2(M[:1], [], pre)); e(sc2(M[1:], [], first, flush=(ks == 11)))
        if n == 1: st(26)
        if n == 3: st(27)
    e("s_waitcnt lgkmcnt(0)")
    for q in range(10): e(f"v_pk_add_f32 v[{MB+2*q}:{MB+2*q+1}], v[{MB+2*q}:{MB+2*q+1}], v[{GB+20+2*q}:{GB+21+2*q}]")
    for q in range(10):
        e(f"v_pk_add_f32 v[{A2+2*q}:{A2+2*q+1}], v[{A2+2*q}:{A2+2*q+1}], v[{MB+2*q}:{MB+2*q+1}]\nv_cvt_pk_bf16_f32 v{PS+q}, v{A2+2*q}, v{A2+2*q+1}\nds_bpermute_b32 v{PS+10+q}, v12, v{PS+q}")
        if q == 6: e(f"s_waitcnt lgkmcnt(3)\nbuffer_store_dwordx4 {rng(PS+10)}, v4, s[16:19], s32 offen")
    e(f"s_waitcnt lgkmcnt(2)\nbuffer_store_dwordx4 {rng(PS+14)}, v4, s[16:19], s32 offen offset:64")
    e(f"s_waitcnt lgkmcnt(0)\nbuffer_store_dwordx2 v[{PS+18}:{PS+19}], v5, s[16:19], s32 offen offset:128")
    e("kf_done:")
    S.flush(a, 14, 28)
    e("kf_exit:\ns_endpgm")
    a.items += moved
    nonce_slow(a, spin)
    for tag, loads, check in retries:
        a(f"kf_rt_{tag}:")
        for x in loads: a(x.split(" #")[0])
        a("s_sub_u32 s50, s50, 1\ns_cbranch_scc1 kf_fail\ns_waitcnt vmcnt(0)")
        for x in check: a(x)
        a(f"s_cbranch_vccnz kf_rt_{tag}\ns_branch kf_ok_{tag}")
    for d in O.get("drop", ()):
        a.items = [(k, "s_nop 0") if k == "i" and x.startswith("buffer_store") and d in x else (k, x) for k, x in a.items]
    if O.get("plainst"):
        a.items = [(k, x.replace(" sc1", O["plainst"][1])) if k == "i" and x.startswith("buffer_store") and any(d in x for d in O["plainst"][0]) else (k, x) for k, x in a.items]
    if O.get("outflag"):
        a.items = [(k, x + " " + O["outflag"]) if k == "i" and x.startswith("buffer_store") and "s[16:19], s32" in x else (k, x) for k, x in a.items]
    if O.get("dummy"):
        pass
    if O.get("nosleep"): a.items = [(k, x) for k, x in a.items if not (k == "i" and x.startswith("s_sleep"))]
    sites = []
    for i, (k, x) in enumerate(a.items):
        if k == "i" and x == "s_cbranch_scc1 kf_fail":
            sites.append(len(sites)); a.items[i] = (k, f"s_cbranch_scc1 kf_fail{sites[-1]}")
    for n in sites: a(f"kf_fail{n}:\ns_movk_i32 s3, {n}\ns_branch kf_fail")
    a("""kf_fail:
s_lshl_b32 s32, s2, 8
s_or_b32 s32, s32, s3
s_or_b32 s32, s32, 0x10000
v_mov_b32 v2, s32
s_and_b32 s32, s3, 31
s_lshl_b32 s32, s32, 2
s_add_u32 s32, s32, 16
v_mov_b32 v3, s32
global_store_dword v3, v2, s[62:63]
kf_last:
s_endpgm""")
    return a
```

```python
import re, struct

def f2h(x):
    return "0x%08x" % struct.unpack("<I", struct.pack("<f", x))[0]

REG = re.compile(r"(?<![\w.])(-?\|?|abs\()?([vas])(?:(\d+)|\[(\d+):(\d+)\])")
TRANS = ("v_exp_f32", "v_log_f32", "v_rcp_f32", "v_rsq_f32", "v_sqrt_f32", "v_sin_f32", "v_cos_f32")

def regs_of(tok):
    tok = tok.strip()
    out = set()
    if tok.startswith("vcc"): return {("s", "vcc")}
    if tok.startswith("exec"): return {("s", "exec")}
    if tok == "m0": return {("s", "m0")}
    m = REG.search(tok)
    if not m: return out
    k = m.group(2)
    if m.group(3) is not None: out.add((k, int(m.group(3))))
    else:
        for i in range(int(m.group(4)), int(m.group(5)) + 1): out.add((k, i))
    return out

class Ins:
    __slots__ = ("text", "mn", "kind", "wr", "rd", "A", "B", "C", "passes", "states", "target", "stdata", "dpp", "addr_s")
    def __init__(self, text):
        self.text = text
        t = text.split(";")[0].strip()
        parts = t.split(None, 1)
        mn = parts[0]; self.mn = mn
        rest = parts[1] if len(parts) > 1 else ""
        ops = [o.strip() for o in re.split(r",(?![^\[]*\])", rest)] if rest else []
        opsr = []
        for o in ops:
            opsr.append(o.split()[0] if o and not o.startswith("abs(") else o)
        self.wr = set(); self.rd = set(); self.A = self.B = self.C = set(); self.passes = 0
        self.states = 1; self.target = None; self.stdata = set(); self.dpp = ("dpp" in mn) or ("row_" in t) or ("quad_perm" in t)
        self.addr_s = set()
        base = re.sub(r"_(e32|e64|dpp|sdwa)$", "", mn)
        R = [regs_of(o) for o in opsr]
        if mn == "s_nop":
            self.kind = "nop"; self.states = int(opsr[0], 0) + 1
        elif mn.startswith("v_mfma"):
            self.kind = "mfma"; self.wr = R[0]; self.A = R[1]; self.B = R[2]; self.C = R[3]
            self.rd = R[1] | R[2] | R[3]
            self.passes = 8 if "32x32" in mn else 4
        elif mn.startswith("v_"):
            self.kind = "valu"
            if base in TRANS: self.kind = "trans"
            if base.startswith("v_dot2"): self.kind = "dl"
            if base.startswith("v_permlane"):
                self.kind = "perm"; self.wr = R[0] | R[1]; self.rd = R[0] | R[1]
            else:
                self.wr = set(R[0]); srcs = R[1:]
                if base in ("v_add_co_u32", "v_sub_co_u32", "v_addc_co_u32", "v_subb_co_u32"):
                    self.wr |= R[1]; srcs = R[2:]
                for s in srcs: self.rd |= s
                if base in ("v_fmac_f32", "v_dot2c_f32_bf16", "v_pk_fmac_f16") or self.dpp: self.rd |= R[0]
                if base == "v_cndmask_b32" and len(R) == 3: self.rd.add(("s", "vcc"))
                if base.startswith("v_cmpx"): self.wr.add(("s", "exec"))
                if base in ("v_readfirstlane_b32", "v_readlane_b32"): self.kind = "rdlane"
        elif mn.startswith("buffer_") or mn.startswith("global_"):
            self.kind = "vmem"
            islds = t.endswith(" lds") or " lds " in t
            if mn.startswith("buffer_wbl2") or mn.startswith("buffer_inv"):
                pass
            elif "load" in mn:
                if islds:
                    for r in R: self.rd |= r
                    self.rd.add(("s", "m0")); self.kind = "dma"
                else:
                    self.wr = R[0]
                    for r in R[1:]: self.rd |= r
            else:
                for r in R: self.rd |= r
                d = R[0] if mn.startswith("buffer_") else R[1]
                if "x4" in mn or "x3" in mn: self.stdata = d
            self.addr_s = {r for r in self.rd if r[0] == "s"}
        elif mn.startswith("ds_"):
            self.kind = "ds"
            if "read" in mn or "permute" in mn or "swizzle" in mn:
                self.wr = R[0]
                for r in R[1:]: self.rd |= r
                if "d16" in mn: self.rd |= R[0]
            else:
                for r in R: self.rd |= r
        elif mn.startswith("s_cbranch") or mn == "s_branch":
            self.kind = "branch"; self.target = opsr[0]
        elif mn.startswith("s_"):
            self.kind = "salu"
            if mn.startswith("s_cmp") or mn.startswith("s_bitcmp") or mn in ("s_waitcnt", "s_barrier", "s_sleep", "s_endpgm", "s_setprio"):
                for r in R: self.rd |= r
            else:
                if R: self.wr = set(R[0])
                for r in R[1:]: self.rd |= r
                if "saveexec" in mn: self.wr.add(("s", "exec"))
        else:
            raise ValueError("unknown instruction " + text)

VALUISH = ("valu", "trans", "dl", "perm", "rdlane")

def need(p, c):
    n = 0
    pv = p.kind in VALUISH; cv = c.kind in VALUISH
    vec = lambda s: {r for r in s if r[0] != "s"}
    sca = lambda s: {r for r in s if r[0] == "s"}
    if p.kind == "mfma":
        big = 8 if p.passes == 4 else 12
        if c.kind == "mfma":
            if p.wr & (c.A | c.B): n = max(n, big)
            if p.wr & c.C:
                if not (p.wr == c.C and p.passes == c.passes): n = max(n, big - 2)
            if (p.wr & c.wr) and not (p.wr == c.C): n = max(n, big)
        else:
            if p.wr & (c.rd | c.wr): n = max(n, big)
            if cv and (p.C & c.wr): n = max(n, 3 if p.passes == 4 else 7)
            if c.kind in ("ds", "vmem") and ((p.A | p.B | p.C) & c.wr): n = max(n, 1)
    if pv:
        w = vec(p.wr); sw = sca(p.wr)
        if c.kind == "mfma" and (w & c.rd): n = max(n, 2)
        if c.kind == "mfma" and ("s", "exec") in sw: n = max(n, 4)
        if c.kind == "perm" and (w & c.rd): n = max(n, 2)
        if cv and c.dpp and (w & c.rd): n = max(n, 2)
        if cv and c.dpp and ("s", "exec") in sw: n = max(n, 5)
        if c.kind == "rdlane" and (w & c.rd): n = max(n, 1)
        if c.kind in ("rdlane", "perm") and ("s", "exec") in sw: n = max(n, 4)
        if p.kind == "trans" and cv and (w & c.rd): n = max(n, 1)
        if p.kind == "dl" and (w & (c.rd | c.wr)) and c.kind != "salu":
            if not (c.kind == "dl" and c.mn == p.mn and not (w & (c.rd - c.wr))): n = max(n, 3)
        if cv and (sw & c.rd): n = max(n, 2)
        if c.kind in ("vmem", "dma") and (sw & c.addr_s): n = max(n, 5)
        if c.kind in ("salu", "branch") and (sw & c.rd): n = max(n, 1)
    if p.kind == "salu" and ("s", "m0") in p.wr and c.kind == "dma": n = max(n, 1)
    if p.kind == "vmem" and p.stdata and (p.stdata & c.wr): n = max(n, 2)
    return n

class Asm:
    def __init__(self):
        self.items = []
    def __call__(self, text):
        for ln in text.split("\n"):
            s = ln.strip()
            if not s or s.startswith(";"): continue
            if s.endswith(":") and " " not in s: self.items.append(("l", s[:-1]))
            elif s.startswith("."): self.items.append(("r", s))
            else: self.items.append(("i", s))
    def label(self, l): self.items.append(("l", l))
    def raw(self, s): self.items.append(("r", s))
    def extend(self, other): self.items += other.items
    def finalize(self, W=16):
        out = []
        hists = [[]]
        pend = {}
        labelpos = {}
        nops = 0
        def trim(h):
            tot = 0; k = len(h)
            while k > 0 and tot < W:
                k -= 1; tot += h[k].states
            return h[k:]
        def req(h, c):
            d = 0; best = 0
            for p in reversed(h):
                best = max(best, need(p, c) - d)
                d += p.states
                if d >= W: break
            return best
        backs = []
        for kind, x in self.items:
            if kind == "r":
                out.append(x); continue
            if kind == "l":
                out.append(x + ":"); labelpos[x] = len(out)
                hists = hists + pend.pop(x, [])
                continue
            c = Ins(x)
            r = max([req(h, c) for h in hists] + [0])
            while r > 0:
                k = min(r, 16); np_ = Ins("s_nop %d" % (k - 1)); out.append(np_); nops += k
                hists = [h + [np_] for h in hists]; r -= k
            out.append(c)
            hists = [trim(h + [c]) for h in hists]
            uniq = []
            for h in hists:
                if not any(len(h) == len(u) and all(a is b for a, b in zip(h, u)) for u in uniq): uniq.append(h)
            hists = uniq
            if c.kind == "branch":
                if c.target in labelpos: backs.append((len(out) - 1, c.target, [list(h) for h in hists]))
                else: pend.setdefault(c.target, []).extend([list(h) for h in hists])
                if c.mn == "s_branch": hists = [[]]
            if c.mn == "s_endpgm": hists = [[]]
        assert not pend, "unresolved labels %s" % list(pend)
        ins_at = {}
        for pos, tgt, hs in backs:
            worst = 0
            for h in hs:
                d = 0; i = labelpos[tgt]
                while i < len(out) and d < W:
                    c = out[i]; i += 1
                    if not isinstance(c, Ins): continue
                    dd = d
                    for p in reversed(h):
                        worst = max(worst, need(p, c) - dd); dd += p.states
                    d += c.states
                    if c.mn == "s_branch": break
            if worst > 0: ins_at[pos] = worst
        lines = []
        for i, o in enumerate(out):
            if i in ins_at: lines.append("    s_nop %d" % (ins_at[i] - 1))
            lines.append("    " + o.text if isinstance(o, Ins) else o)
        self.nops = nops
        self.ninstr = sum(isinstance(o, Ins) for o in out)
        return "\n".join(lines) + "\n"

def weave(main, fill, start=0, every=1, per=1):
    out = []; fi = 0
    for i, m in enumerate(main):
        out.append(m)
        if i >= start and (i - start) % every == 0:
            for _ in range(per):
                if fi < len(fill): out.append(fill[fi]); fi += 1
    out += fill[fi:]
    return out


class Stamps:
    def __init__(self, on, base=64, dbg=0x1400000):
        self.on = on; self.base = base; self.dbg = dbg
    def start(self, a):
        if self.on:
            a(f"s_memrealtime s[{self.base}:{self.base+1}]\ns_memtime s[{self.base+2}:{self.base+3}]")
            for i in range(2, 14): a(f"s_mov_b32 s{self.base+2*i}, 0")
    def __call__(self, a, i):
        if self.on: a(f"s_memtime s[{self.base+2+2*i}:{self.base+3+2*i}]")
    def flush(self, a, ws, swave, vt=2, koff=0):
        if not self.on: return
        b = self.base
        a(f"{'s_nop 0' if getattr(self, 'nowait', False) else 's_waitcnt vmcnt(0)'}\ns_memtime s[{b+26}:{b+27}]\ns_memrealtime s[{b+28}:{b+29}]\ns_waitcnt lgkmcnt(0)\ns_mov_b64 exec, 1")
        a(f"s_lshl_b32 s{b+1}, s2, 8\ns_lshl_b32 s{b+3}, s{swave}, 6\ns_add_u32 s{b+1}, s{b+1}, s{b+3}\ns_add_u32 s{b+1}, s{b+1}, {self.dbg + koff}\nv_mov_b32 v{vt}, s{b+1}")
        a(f"v_mov_b32 v{vt+1}, s{b}\nglobal_store_dword v{vt}, v{vt+1}, s[{ws}:{ws+1}]")
        for i in range(1, 13):
            a(f"s_sub_u32 s{b+3}, s{b+2+2*i}, s{b+2}\ns_cmp_eq_u32 s{b+2+2*i}, 0\ns_cselect_b32 s{b+3}, 0, s{b+3}\nv_mov_b32 v{vt+1}, s{b+3}\nglobal_store_dword v{vt}, v{vt+1}, s[{ws}:{ws+1}] offset:{4*i}")
        a(f"v_mov_b32 v{vt+1}, s{b+28}\nglobal_store_dword v{vt}, v{vt+1}, s[{ws}:{ws+1}] offset:52")
        a(f"v_mov_b32 v{vt+1}, s50\nglobal_store_dword v{vt}, v{vt+1}, s[{ws}:{ws+1}] offset:56")


def est(x):
    t = 0
    for y in x.split("\n"):
        y = y.strip()
        if not y or y.endswith(":"): continue
        if y.startswith("v_mfma"): t += 9
        elif y.startswith(TRANS): t += 8.3
        else: t += 4.4
    return t

def sprinkle(L, Q, gap, first=None, limit=None):
    out = []; acc = 0 if first is None else gap - first; n = 0
    for x in L:
        out.append(x); acc += est(x)
        if acc >= gap and Q and (limit is None or n < limit):
            out += Q.pop(0); acc = 0; n += 1
    return out


def kind_of(x):
    ks = set()
    for y in x.split("\n"):
        y = y.strip()
        if y.startswith("ds_"): ks.add("lds")
        if y.startswith("buffer_") or y.startswith("global_"): ks.add("vm")
    return ks

class Sched:
    def __init__(self, vgap=4, bgfirst=False): self.vgap = vgap; self.since = 99; self.bgfirst = bgfirst
    def __call__(self, M, lds=(), other=(), bg=None, nbg=0, flush=True, start=0, low=None):
        out = []; lds = list(lds); other = other if isinstance(other, list) else list(other)
        for i, m in enumerate(M):
            out.append(m)
            if not m.lstrip().startswith("v_mfma"): continue
            self.since += 1
            if i < start: continue
            room = 8.9; used_lds = False
            if lds: out.append(lds.pop(0)); room -= 4.4; used_lds = True
            while room > 1:
                pick = None
                if bg and nbg > 0 and self.since >= self.vgap and not (other and "vm" in kind_of(other[0])) and (self.bgfirst or not other):
                    it = "\n".join(bg.pop(0)); nbg -= 1
                    out.append(it); room -= est(it); self.since = 0; continue
                if other:
                    k = kind_of(other[0]); c = est(other[0])
                    if not (("lds" in k and used_lds) or ("vm" in k and self.since < self.vgap) or (c > room + 0.1 and room < 8)): pick = other
                if pick is None and bg and nbg > 0 and self.since >= self.vgap and not (other and "vm" in kind_of(other[0])):
                    it = "\n".join(bg.pop(0)); nbg -= 1
                    out.append(it); room -= est(it); self.since = 0; continue
                if pick is None and low and not (est(low[0]) > room + 0.1 and room < 8): pick = low
                if pick is None: break
                it = pick.pop(0); out.append(it); room -= max(est(it), 1)
                k = kind_of(it)
                if "lds" in k: used_lds = True
                if "vm" in k: self.since = 0
        out += lds
        if flush: out += other; del other[:]
        return out
```

```python
from asmlib import *
from layout import *
import math, re
import k2 as P2
from k2 import rng, arng, MF, FAc, TC, TS, ZF, TMP, wt, xi, zf, a1, pk, stage64, stage32, trreads, p2_consts, RG, RX

LDS = 163840
vL = 1
PHI, FR, ACC, WG_ = 20, 100, 148, 212
P = lambda i: PHI + 8*i
Q = lambda i: PHI + 8*i + 4
SIDE = 81920
SIDE2 = 122880
STEPS = [s for u in range(5) for s in (2*u, 2*u+10, 2*u+1, 2*u+11)]

class VM:
    def __init__(self): self.n = 0; self.tags = {}; self.done = 0
    def op(self, tag=None):
        self.n += 1
        if tag is not None: self.tags[tag] = self.n
    def wait(self, tag):
        t = self.tags[tag]
        if t <= self.done: return None
        self.done = t
        return f"s_waitcnt vmcnt({min(63, self.n - t)})"
class Emit:
    def __init__(self, a): self.a = a; self.vm = VM(); self.marks = set()
    def __call__(self, L):
        if isinstance(L, str): L = [L]
        for x in [y.strip() for z in L for y in z.split("\n")]:
            if not x: continue
            if x.startswith("@vm "):
                w = self.vm.wait(x[4:])
                if w: self.a(w)
                continue
            if x.startswith("@mark "): self.marks.add(x[6:]); continue
            if x.startswith("@need "):
                assert x[6:] in self.marks, x
                continue
            if x == "@drain":
                self.a("s_waitcnt vmcnt(0)"); self.vm.done = self.vm.n; continue
            tag = None
            if " #" in x: x, tag = x.split(" #")
            if x.startswith("buffer_") or x.startswith("global_"): self.vm.op(tag)
            self.a(x)

def srd(e, d, base, size):
    e(f"s_mov_b32 s{d}, s{base}\ns_and_b32 s{d+1}, s{base+1}, 0xffff\ns_mov_b32 s{d+2}, {size}\ns_mov_b32 s{d+3}, 0x20000")

def rot(dst, src, k):
    p2 = lambda r: f"v[{r}:{r+1}]"
    return [f"v_pk_mul_f32 {p2(dst)}, {p2(src)}, {p2(k)} op_sel_hi:[1,0]",
            f"v_pk_fma_f32 {p2(dst)}, {p2(src)}, {p2(k)}, {p2(dst)} op_sel:[1,1,0] op_sel_hi:[0,1,1] neg_lo:[1,0,0]"]

def phi_gen():
    ZA = lambda i: FR + 4*i; ZB = lambda i: FR + 4*i + 2; K = FR + 20
    H = ["s_lshl_b32 s31, s30, 6", "s_add_u32 s32, s31, s28", "s_add_u32 s32, s32, 1",
         f"v_and_b32 v2, 15, v{vL}", "v_lshl_add_u32 v2, v2, 2, s32", "v_cvt_f32_u32 v2, v2", f"v_mul_f32 v2, {f2h(1/640)}, v2",
         f"v_lshrrev_b32 v3, 4, v{vL}", "v_lshl_add_u32 v3, v3, 3, s31", "v_cvt_f32_u32 v3, v3", "v_mul_f32 v3, v3, v2",
         f"v_cos_f32 v{K}, v2", f"v_sin_f32_e64 v{K+1}, -v2"]
    for i in range(5):
        t = 4 + i % 2
        H += [f"v_fmamk_f32 v{t}, v2, {f2h(32*i)}, v3", f"v_cos_f32 v{ZA(i)}, v{t}", f"v_sin_f32_e64 v{ZA(i)+1}, -v{t}"]
    L = []
    for jp in range(4):
        R1 = [rot(ZB(i), ZA(i), K) for i in range(5)]
        L += [r[0] for r in R1] + [r[1] for r in R1]
        for i in range(5): L += [f"v_cvt_pk_bf16_f32 v{P(i)+jp}, v{ZA(i)}, v{ZB(i)}", f"v_cvt_pk_bf16_f32 v{Q(i)+jp}, v{ZA(i)+1}, v{ZB(i)+1}"]
        if jp < 3:
            R2 = [rot(ZA(i), ZB(i), K) for i in range(5)]
            L += [r[0] for r in R2] + [r[1] for r in R2]
    return H, L

def p2_consts_rot(T=196):
    from k2 import FAs, FAn, FBc, FBs, FBn
    L = [f"v_and_b32 v2, 15, v{vL}", "s_lshl_b32 s39, s28, 4", "v_add_u32 v2, s39, v2", "v_cvt_f32_u32 v2, v2",
         f"v_lshrrev_b32 v3, 4, v{vL}", "v_cvt_f32_u32 v3, v3",
         f"v_mul_f32 v4, {f2h(1/64)}, v2", "v_mul_f32 v5, 4.0, v3", "v_mul_f32 v5, v5, v4"]
    Z = lambda ch, j: T + 4 + 8*ch + 2*j
    def block(starts, consts, dc, ds, dn):
        X = []
        for ch, (sr, br, off) in enumerate(starts):
            X += [f"v_fmamk_f32 v{6+ch%2}, v{sr}, {f2h(off)}, v{br}", f"v_cos_f32 v{Z(ch,0)}, v{6+ch%2}", f"v_sin_f32 v{Z(ch,0)+1}, v{6+ch%2}"]
        for j in range(1, 4):
            R = [rot(Z(ch,j), Z(ch,j-1), consts[ch]) for ch in range(4)]
            X += [r[0] for r in R] + [r[1] for r in R]
        for ch in range(4):
            for q in range(2):
                X += [f"v_cvt_pk_bf16_f32 v{dc+2*ch+q}, v{Z(ch,2*q)}, v{Z(ch,2*q+1)}", f"v_cvt_pk_bf16_f32 v{ds+2*ch+q}, v{Z(ch,2*q)+1}, v{Z(ch,2*q+1)+1}"]
        return X + [f"v_xor_b32 v{dn+k}, 0x80008000, v{ds+k}" for k in range(8)]
    L += [f"v_cos_f32 v{T}, v4", f"v_sin_f32 v{T+1}, v4"]
    L += block([(4, 5, 16*ch) for ch in range(4)], [T]*4, FAc, FAs, FAn)
    L += [f"v_mul_f32 v4, {f2h(1/2048)}, v2", f"v_mul_f32 v3, {f2h(8.0)}, v3", "v_mul_f32 v5, v3, v4"]
    for k in range(8): L += [f"v_fmamk_f32 v{6+k%2}, v4, {f2h(k)}, v5", f"v_cos_f32 v{TC+k}, v{6+k%2}", f"v_sin_f32 v{TS+k}, v{6+k%2}"]
    L += [f"v_bfe_u32 v2, v{vL}, 2, 2", f"v_and_b32 v4, 3, v{vL}", "v_lshl_add_u32 v2, v2, 3, v4", "v_cvt_f32_u32 v2, v2",
          f"v_mul_f32 v4, {f2h(1/32)}, v2", f"v_add_f32 v8, {f2h(4/32)}, v4", "v_mul_f32 v5, v3, v4", "v_mul_f32 v9, v3, v8",
          f"v_cos_f32 v{T}, v4", f"v_sin_f32 v{T+1}, v4", f"v_cos_f32 v{T+2}, v8", f"v_sin_f32 v{T+3}, v8"]
    L += block([(4, 5, 0), (4, 5, 4), (8, 9, 0), (8, 9, 4)], [T, T, T+2, T+2], FBc, FBs, FBn)
    return L

def phi_fix(e, tag):
    e(f"s_lshl_b32 s32, s30, 2\ns_add_u32 s32, s32, s28\ns_cmp_eq_u32 s32, 19\ns_cbranch_scc0 {tag}_nofix")
    e(f"v_and_b32 v2, 15, v{vL}\nv_cmp_eq_u32 vcc, 15, v2\nv_mov_b32 v3, 0xbf353f35\nv_mov_b32 v4, 0")
    for i in range(5):
        for jp in range(4):
            e(f"v_cndmask_b32 v{P(i)+jp}, v{P(i)+jp}, v3, vcc\nv_cndmask_b32 v{Q(i)+jp}, v{Q(i)+jp}, v4, vcc")
    e(f"{tag}_nofix:")
    e("""s_add_u32 s32, s28, 1
s_and_b32 s32, s32, 2
s_cmp_lg_u32 s32, 0
s_cselect_b32 s33, 0x80008000, 0
s_cmp_lt_u32 s28, 2
s_cselect_b32 s34, 0x80008000, 0
s_bitcmp1_b32 s28, 0
s_cselect_b32 s46, 1.0, -1.0
s_cselect_b32 s47, 1.0, -1.0""")
    e(f"s_cbranch_scc1 {tag}_keep")
    for i in range(5):
        for jp in range(4): e(f"v_xor_b32 v{P(5+i)+jp}, s33, v{Q(i)+jp}\nv_xor_b32 v{Q(5+i)+jp}, s34, v{P(i)+jp}")
    e(f"s_branch {tag}_shifted\n{tag}_keep:")
    for i in range(5):
        for jp in range(4): e(f"v_xor_b32 v{P(5+i)+jp}, s33, v{P(i)+jp}\nv_xor_b32 v{Q(5+i)+jp}, s34, v{Q(i)+jp}")
    e(f"{tag}_shifted:")

def div12(e, row, pc, k):
    e(f"v_add_u32 v{pc}, {64*k}, v{vL}\nv_mul_u32_u24 v{row}, 5462, v{pc}\nv_lshrrev_b32 v{row}, 16, v{row}\nv_mul_u32_u24 v9, 12, v{row}\nv_sub_u32 v{pc}, v{pc}, v9")

def w2f_parts(ld, R, early=False):
    setup = ["s_mov_b32 s4, s56\ns_and_b32 s5, s57, 0xffff\ns_cmp_lt_u32 s51, 64\ns_cselect_b32 s6, 1966080, 0\ns_mov_b32 s7, 0x20000"]
    for k in range(3):
        setup += [f"v_add_u32 v3, {64*k}, v{vL}", "v_mul_u32_u24 v2, 5462, v3", "v_lshrrev_b32 v2, 16, v2", "v_mul_u32_u24 v4, 12, v2", "v_sub_u32 v3, v3, v4",
                  "v_mul_u32_u24 v2, 1280, v2", f"v_lshl_add_u32 v{244+k}, v3, 4, v2"]
    setup += ["s_lshr_b32 s36, s51, 3\ns_and_b32 s37, s51, 7\ns_mul_i32 s38, s36, 192\ns_mul_i32 s39, s28, 48\ns_add_u32 s38, s38, s39\ns_mul_i32 s38, s38, 1280",
              f"s_mul_i32 s48, s37, 160\ns_and_b32 s49, s48, 63\ns_sub_u32 s48, s48, s49\ns_add_u32 s38, s38, s48\ns_mul_i32 s39, s28, 9216\ns_add_u32 s39, s39, {SIDE2}"]
    dma = []
    for blk in range(3):
        for k in range(3):
            dma.append([f"s_add_u32 m0, s39, {(3*blk+k)*1024}"] + ([f"s_add_u32 s38, s38, {16*1280}"] if blk and k == 0 else [])
                       + [f"buffer_load_dwordx4 v{244+k}, s[4:7], s38 offen {ld} lds" + (" #w2s" if blk == 2 and k == 2 else "")])
    addr = [f"s_sub_u32 s13, s2, 160\ns_lshr_b32 s36, s13, 3\ns_and_b32 s37, s13, 7\ns_mul_i32 s13, s37, 160\ns_and_b32 s13, s13, 63\ns_mul_i32 s38, s28, 9216\ns_add_u32 s13, s13, s38\ns_add_u32 s13, s13, {SIDE2}",
            f"v_lshrrev_b32 v188, 2, v{vL}", "v_mul_u32_u24 v189, 192, v188", f"v_and_b32 v190, 3, v{vL}", "v_add_u32 v189, s13, v189",
            "v_lshl_add_u32 v180, v190, 4, v189", "v_lshl_add_u32 v181, v190, 3, v189", "v_and_b32 v188, 7, v188", "v_mul_u32_u24 v189, 192, v188", "v_add_u32 v189, s13, v189",
            f"v_lshrrev_b32 v191, 5, v{vL}", "v_lshl_add_u32 v182, v190, 4, v189", "v_lshl_add_u32 v182, v191, 3, v182", "v_lshl_add_u32 v183, v190, 3, v189",
            f"s_mul_i32 s36, s36, 6\ns_mul_i32 s37, s37, 48\ns_add_u32 s36, s36, s37\ns_add_u32 s37, s36, s28\ns_mul_i32 s37, s37, 5120\ns_add_u32 s37, s37, {W2F}",
            f"s_lshr_b32 s13, s28, 1\ns_add_u32 s36, s36, s13\ns_add_u32 s36, s36, 4\ns_mul_i32 s36, s36, 5120\ns_add_u32 s36, s36, {W2F}\ns_and_b32 s13, s28, 1\ns_lshl_b32 s13, s13, 9\ns_add_u32 s36, s36, s13",
            f"v_and_b32 v187, 31, v{vL}", "v_lshlrev_b32 v187, 4, v187", "v_lshl_add_u32 v185, v191, 10, v187", "v_add_u32 v186, 4096, v10", "v_add_u32 v187, 4096, v187"]
    frag = []
    for j in range(8):
        r = R + 4*(j % 2 if early else j)
        if j < 4: rd = [f"v180 offset:{h*16*192 + 64*(j//2) + 8*(j%2)}" for h in range(2)]; stv = f"v10, s[20:23], s37 offen offset:{j*1024}"
        elif j == 4: rd = [f"v181 offset:{h*16*192 + 128}" for h in range(2)]; stv = "v186, s[20:23], s37 offen"
        elif j < 7: rd = [f"v182 offset:{32*192 + h*8*192 + 64*(j-5)}" for h in range(2)]; stv = f"v185, s[20:23], s36 offen offset:{(j-5)*2048}"
        else: rd = [f"v183 offset:{32*192 + h*8*192 + 128}" for h in range(2)]; stv = "v187, s[20:23], s36 offen"
        frag.append(([f"ds_read_b64_tr_b16 v[{r+2*h}:{r+2*h+1}], {rd[h]}" for h in range(2)], f"buffer_store_dwordx4 {rng(r)}, {stv} sc1"))
    if early:
        ren = {"v180": "v247", "v181": "v248", "v182": "v249", "v183": "v250", "v185": "v251", "v186": "v252", "v187": "v253",
               "v188": "v2", "v189": "v3", "v190": "v4", "v191": "v5", "v10": "v17"}
        sub = lambda x: re.sub(r"v1?\d\d\b|v10\b", lambda m_: ren.get(m_.group(0), m_.group(0)), x)
        addr = ["s_cmp_lt_u32 s2, 224\ns_cselect_b32 s8, 0, 0x40000000", f"v_lshl_add_u32 v17, v{vL}, 4, s8"] + [sub(x).replace("s38", "s12") for x in addr]
        addr = [x.replace("v_lshlrev_b32 v253, 4, v253", "v_lshl_add_u32 v253, v253, 4, s8") for x in addr]
        frag = [([sub(x) for x in rd], sub(st_)) for rd, st_ in frag]
    return setup, dma, addr, frag

def kloop(e, reads, mfmas, extra, stp, half, xlds=lambda n: []):
    e("@vm c0\ns_barrier"); stp(5)
    nb = 2 if half else 3
    for k in range(nb - 1): e(reads(STEPS[k], k))
    seen = set(); sc = Sched(4); pend = []
    for n, st in enumerate(STEPS):
        first = (st // 10) not in seen; seen.add(st // 10)
        M = mfmas(st, n % nb, first)
        nx = n + nb - 1
        Rd = reads(STEPS[nx], nx % nb) if nx < 20 else []
        xl = extra(n)
        newchunk = nx < 20 and nx % 4 == 0
        if not half:
            Rd = Rd + [x for x in xl if x.startswith("ds_read")]; pend += [x for x in xl if not x.startswith("ds_read")]
            e(f"s_waitcnt lgkmcnt({4 if n < 19 else 0})")
            if newchunk:
                e(sc(M[:2], [], pend, flush=False)); M = M[2:]
                e(f"@vm c{nx//4}\ns_barrier"); stp(40 + nx//4)
            e(sc(M, Rd, pend, flush=(n == 19)))
            continue
        pend += xl
        if not newchunk and nx < 20:
            e(f"s_waitcnt lgkmcnt({len(Rd) - half})")
            h = len(M) // 2
            e(xlds(n))
            e(sc(M[:h], Rd[:h], pend, flush=False)); e(f"s_waitcnt lgkmcnt({h})"); e(sc(M[h:], Rd[h:], pend, flush=False))
        elif newchunk:
            h = len(M) // 2
            e(f"s_waitcnt lgkmcnt({len(Rd) - half})")
            e(sc(M[:2], [], pend, flush=False))
            e(f"@vm c{nx//4}\ns_barrier"); stp(40 + nx//4)
            e(sc(M[2:h], Rd[:h-2], pend, flush=False)); e(f"s_waitcnt lgkmcnt({h-2})"); e(sc(M[h:], Rd[h-2:], pend, flush=False))
        else:
            h = len(M) // 2
            e(f"s_waitcnt lgkmcnt({half})"); e(sc(M[:h], [], pend, flush=False)); e("s_waitcnt lgkmcnt(0)"); e(sc(M[h:], [], pend))

def gclear(e):
    e(f"""s_lshl_b32 s32, s29, 3
s_add_u32 s32, s32, s30
s_mul_i32 s32, s32, 24576
s_mul_i32 s33, s28, 6144
s_add_u32 s32, s32, s33
s_add_u32 s32, s32, {G}
s_add_u32 s33, s32, 4096
v_mov_b32 v4, 0
v_mov_b32 v5, 0
v_mov_b32 v6, 0
v_mov_b32 v7, 0
v_lshlrev_b32 v10, 4, v{vL}""")
    for i in range(6): e(f"buffer_store_dwordx4 v[4:7], v10, s[20:23], s{32 + i//4} offen offset:{(i%4)*1024} sc1")

NONCE_SLOW = []
def nonce_items(tag, R):
    NONCE_SLOW.append((tag, R))
    return [f"{tag}_n0:\nv_readfirstlane_b32 s10, v{R}", f"v_readfirstlane_b32 s11, v{R+1}",
            f"s_add_u32 s32, s10, 1000\ns_addc_u32 s33, s11, 0\ns_sub_u32 s32, s32, s94\ns_subb_u32 s33, s33, s95\ns_cmp_ge_i32 s33, 0\ns_cbranch_scc0 {tag}_n2\n{tag}_n1:"]
def nonce_get(e, tag, R): e(nonce_items(tag, R))
def nonce_slow(a, spin):
    for tag, R in NONCE_SLOW:
        a(f"""{tag}_n2:
s_cmp_lt_u32 s50, {spin - 4096}
s_cselect_b32 s32, s10, 0
s_cmp_lg_u32 s32, 0
s_cbranch_scc1 {tag}_n1
s_sub_u32 s50, s50, 1
s_cbranch_scc1 kf_fail
v_mov_b32 v{R}, 0
global_load_dwordx2 v[{R}:{R+1}], v{R}, s[62:63] sc1
s_waitcnt vmcnt(0)
s_branch {tag}_n0""")
    NONCE_SLOW.clear()

def nonce_load(R): return [f"v_mov_b32 v{R}, 0", f"global_load_dwordx2 v[{R}:{R+1}], v{R}, s[62:63] sc1 #nonce"]

def flag_put(e, tag, base, R=2, sh=7):
    e(f"""s_cmp_lg_u32 s28, 0
s_cbranch_scc1 {tag}_f
s_lshl_b32 s32, s2, {sh}
s_add_u32 s32, s32, {base}
v_mov_b32 v{R}, s10
v_mov_b32 v{R+1}, s11
v_mov_b32 v{R+2}, 0""")
    e.a(f"buffer_store_dwordx2 v[{R}:{R+1}], v{R+2}, s[20:23], s32 offen sc1\n{tag}_f:")

def flag_poll(e, tag, vaddr, R, back=4):
    e(f"""s_branch {tag}_q
{tag}_p:
s_sleep {back}
{tag}_q:
buffer_load_dwordx2 v[{R}:{R+1}], v{vaddr}, s[20:23], 0 offen sc1
s_sub_u32 s50, s50, 1
s_cbranch_scc1 kf_fail
@drain
v_cmp_ne_u64 vcc, s[10:11], v[{R}:{R+1}]
s_cbranch_vccnz {tag}_p""")

def cmul2(c, src, wr, wi, conj):
    A, B = [], []
    for t in range(2):
        for rp in range(2):
            T = TMP + 4*((2*t+rp) % 2)
            re, im, x, y = src(c, 0, t) + 2*rp, src(c, 1, t) + 2*rp, wr(t) + 2*rp, wi(t) + 2*rp
            cv = [f"v_cvt_pk_bf16_f32 v{pk(c,0)+2*t+rp}, v{T}, v{T+1}", f"v_cvt_pk_bf16_f32 v{pk(c,1)+2*t+rp}, v{T+2}, v{T+3}"]
            if t == 0:
                for k in range(2): A += [f"v_mul_f32 v{T+k}, v{re+k}, v{x+k}", f"v_mul_f32 v{T+2+k}, v{im+k}, v{x+k}"]
                for k in range(2):
                    if conj: A += [f"v_fmac_f32 v{T+k}, v{im+k}, v{y+k}", f"v_fma_f32 v{T+2+k}, -v{re+k}, v{y+k}, v{T+2+k}"]
                    else:    A += [f"v_fma_f32 v{T+k}, -v{im+k}, v{y+k}, v{T+k}", f"v_fmac_f32 v{T+2+k}, v{re+k}, v{y+k}"]
                A += cv
            else:
                p2 = lambda r: f"v[{r}:{r+1}]"
                neg = " neg_lo:[1,0,0] neg_hi:[1,0,0]"
                B += [f"v_pk_mul_f32 {p2(T)}, {p2(re)}, {p2(x)}", f"v_pk_mul_f32 {p2(T+2)}, {p2(im)}, {p2(x)}",
                      f"v_pk_fma_f32 {p2(T)}, {p2(im)}, {p2(y)}, {p2(T)}" + ("" if conj else neg),
                      f"v_pk_fma_f32 {p2(T+2)}, {p2(re)}, {p2(y)}, {p2(T+2)}" + (neg if conj else "")] + cv
    return A, B

def build(diag=False, spin=1<<16, ld="", opt={}):
    O = dict(x_gap=45, w1_p2=34, w1_gap=58, w1_pre=22, npre=4, wpre=0, nst=1, f1_at=0.0, eq_gap=10, ctab=False, np_gap=60, np_first=100, mapB=True, f0_at=1.0, f0_merge=True, c_late=False, c_gap=62, beta=False, e_win=12, vtouch=224, rot1=False, rot2=False, half=True, fa_put=0.75, fa_poll=1.0, fa_chk=3, fb_ks=6, wline=False, blank=False, gf1=4.5, gf2=None, bgfirst=True, idmap=False, idrot=240, xtouch=False, relay=True, whead=False, x2split=True, opre_kp=99, opre_fl='sc1', biasa=False, nst2=1, gflag_at=0.5, lean=True, lean_w=True, wt_post=False, share1=False, share2=False, w2_lag=0, np_early=True, wf_at=0.2, tlb=0, wt_late=True, w_late=0, g1_bg2=3, gelu_cut=0.95, f0_n=17, x_n=14, nostat=False, unit_at=0, hint=True, prew=False, gpre_kp=99, uf=[1, 2, 4, 5, 6, 8, 9, 10, 12], uearly=False, u_pos=6, g1_start=1, g1_vgap=3, touch=False, touch2=False, g1_bg=4, gelu_gap=90, pf=True, w2_start=7, gflag_ki=1, ext_gap=75, w_gap=50, w_n=16); O.update(opt)
    a = Asm(); e = Emit(a); S = Stamps(bool(diag))
    smap = {"A": {i: i for i in range(1, 12)},
            "B": {9: 1, 10: 2, 11: 3, 20: 4, 21: 5, 22: 6, 23: 7, 24: 8, 25: 9, 26: 10, 27: 11},
            "G": {22: 1, 23: 2, 80: 3, 81: 4, 86: 5, 82: 6, 83: 7, 84: 8, 24: 9, 25: 10, 87: 11},
            "F": {8: 1, 70: 2, 71: 3, 72: 4, 73: 5, 74: 6, 9: 7, 10: 8, 11: 9},
            "E": {11: 1, 50: 2, 51: 3, 52: 4, 53: 5, 54: 6, 55: 7, 56: 8, 57: 9, 58: 10, 60: 11},
            "D": {1: 1, 40: 2, 2: 3, 5: 4, 41: 5, 42: 6, 43: 7, 44: 8, 4: 9, 45: 10, 6: 11},
            "C": {8: 1, 33: 2, 34: 3, 35: 4, 36: 5, 30: 6, 31: 7, 32: 8, 9: 9, 37: 10, 38: 11}}.get(diag, {})
    st = lambda i: S(a, smap[i]) if i in smap else None
    IDM = "s_cmp_lt_u32 s2, 16\ns_cselect_b32 s3, 96, 0\ns_add_u32 s2, s2, s3\ns_cmp_lt_u32 s2, 112\ns_cselect_b32 s3, s3, 16\n" if False else ""
    if O["idmap"]: IDM = "s_cmp_lt_u32 s2, 96\ns_cselect_b32 s3, 0, 16\ns_cmp_lt_u32 s2, 16\ns_cselect_b32 s3, 96, s3\ns_add_u32 s2, s2, s3\ns_add_u32 s2, s2, 144\ns_and_b32 s2, s2, 255"; O["idrot"] = 0
    S.nowait = diag == 'Z'
    S.start(a)
    e(f"""s_cmp_ge_u32 s2, 256
s_cbranch_scc1 kf_exit
{IDM}
{"s_add_u32 s2, s2, %d" % O["idrot"] if O["idrot"] else ""}
{"s_and_b32 s2, s2, 255" if O["idrot"] else ""}
s_load_dwordx4 s[4:7], s[0:1], 0
s_load_dwordx2 s[8:9], s[0:1], 16
s_load_dwordx8 s[52:59], s[0:1], 32
s_load_dwordx4 s[60:63], s[0:1], 64
s_load_dwordx2 s[14:15], s[0:1], 80
s_memrealtime s[94:95]
v_lshrrev_b32 v2, 6, v0
v_and_b32 v{vL}, 63, v0
v_readfirstlane_b32 s28, v2
s_and_b32 s29, s2, 7
s_lshl_b32 s29, s29, 2
s_bfe_u32 s32, s2, 0x20003
s_add_u32 s29, s29, s32
s_lshr_b32 s30, s2, 5
s_mov_b32 s50, {spin}""")
    if O["pf"]:
        e(f"""s_getpc_b64 s[32:33]
kf_pc:
s_lshr_b32 s34, s2, 3
s_lshl_b32 s34, s34, 11
v_and_b32 v2, 127, v0
v_lshl_add_u32 v2, v2, 4, s34
s_mov_b32 s35, kf_last-kf_pc-16
v_min_u32 v2, s35, v2
v_and_b32 v2, -16, v2
v_mov_b32 v3, s33
v_add_co_u32 v2, vcc, s32, v2
v_addc_co_u32 v3, vcc, 0, v3, vcc""")
        a("global_load_dwordx4 v[240:243], v[2:3], off")
    e("s_cmp_ge_u32 s2, 160\ns_cbranch_scc1 kf_notx")
    pos_split = len(a.items)
    PH, AC, GR, BF, SG = 20, 120, 168, 172, 204
    ph = lambda ki, dt: PH + 20*ki + 4*dt
    DN = [0, 252, 253, 254, 255]
    PHS = [f"v_bfe_u32 v2, v{vL}, 2, 2", f"v_and_b32 v3, 3, v{vL}", "v_lshl_add_u32 v2, v2, 3, v3", "s_mul_i32 s32, s30, 80",
          "v_add_u32 v2, s32, v2", f"v_and_b32 v3, 15, v{vL}", "v_add_u32 v3, s32, v3", "s_movk_i32 s9, 320"]
    for dt in range(5):
        off = 32*(dt//2) + 4*(dt%2) if dt < 4 else 64
        PHS += [f"v_add_u32 v4, {off}, v{2 if dt < 4 else 3}", "v_subrev_u32 v5, 640, v4", "v_cmp_le_u32 vcc, s9, v4", "s_nop 0",
              "v_cndmask_b32 v4, v4, v5, vcc", "v_cvt_f32_i32 v4, v4", f"v_mul_f32 v{DN[dt]}, {f2h(1/640)}, v4"]
    PHS += [f"v_lshrrev_b32 v2, 4, v{vL}", "s_cmp_eq_u32 s28, 3", "s_cselect_b32 s9, 3, 4", "v_cmp_eq_u32 s[48:49], s9, v2", "s_mul_i32 s31, s28, 5"]
    phk = lambda PT: [x for dt in range(5) for x in (f"v_mul_f32 v{4+dt%2}, 4.0, v{DN[dt]}", f"v_cos_f32 v{PT+2*dt}, v{4+dt%2}", f"v_sin_f32_e64 v{PT+2*dt+1}, -v{4+dt%2}")]
    PHK = phk(196)
    def phx(ki, dst=None, PT=196):
        ph_ = dst or ph
        Z = lambda dt, j: PT + 10 + 8*dt + 2*j
        X = [f"s_add_u32 s9, s31, {ki}", "s_lshr_b32 s51, s9, 2", "s_lshl_b32 s51, s51, 6", "s_and_b32 s9, s9, 3", "s_add_u32 s9, s9, s51", "s_add_u32 s9, s9, 1",
             f"v_and_b32 v3, 48, v{vL}", "v_add_u32 v3, s9, v3", "v_cvt_f32_u32 v3, v3"]
        for dt in range(5): X += [f"v_mul_f32 v{4+dt%2}, v3, v{DN[dt]}", f"v_cos_f32 v{Z(dt,0)}, v{4+dt%2}", f"v_sin_f32_e64 v{Z(dt,0)+1}, -v{4+dt%2}"]
        X += [f"s_mov_b32 s8, {f2h(2/640)}"] + [f"v_pk_mul_f32 v[{Z(dt,0)}:{Z(dt,0)+1}], v[{Z(dt,0)}:{Z(dt,0)+1}], s[8:9] op_sel_hi:[1,0]" for dt in range(5)]
        for j in range(1, 4):
            R = [rot(Z(dt,j), Z(dt,j-1), PT+2*dt) for dt in range(5)]
            X += [r[0] for r in R] + [r[1] for r in R]
        for dt in range(5):
            if ki == 4: X += [f"v_mul_f32 v4, {f2h(math.sqrt(0.5))}, v{Z(dt,3)}", f"v_cndmask_b32 v{Z(dt,3)}, v{Z(dt,3)}, v4, s[48:49]"]
            for q in range(2):
                X += [f"v_cvt_pk_bf16_f32 v{ph_(ki,dt)+q}, v{Z(dt,2*q)}, v{Z(dt,2*q+1)}", f"v_cvt_pk_bf16_f32 v{ph_(ki,dt)+2+q}, v{Z(dt,2*q)+1}, v{Z(dt,2*q+1)+1}"]
            if dst: X += [f"ds_write_b128 v19, {rng(ph_(ki,dt))} offset:{(5*ki+dt)*1024}"]
        return X
    gemm_role = ["s_bfe_u32 s29, s2, 0x20001", "s_lshl_b32 s29, s29, 3", "s_lshr_b32 s32, s2, 5", "s_add_u32 s29, s29, s32",
               "s_and_b32 s30, s2, 1", "s_lshl_b32 s30, s30, 2", "s_bfe_u32 s32, s2, 0x20003", "s_add_u32 s30, s30, s32"]
    if not O['mapB']: gemm_role = ["s_and_b32 s29, s2, 7", "s_lshl_b32 s29, s29, 2", "s_bfe_u32 s32, s2, 0x20003", "s_add_u32 s29, s29, s32", "s_lshr_b32 s30, s2, 5"]
    retries = []; extra_tail = []
    if O["beta"]:
        w1r = lambda kp, i: 12*(kp if kp < 13 else kp - 13) + 4*i
        w1ok = lambda kp: 0 if kp < 13 else kp - 13 + 2
        free = [(r, 0) for r in (156, 240, 244, 248, 252)] + [(12*k + 4*i, k + 2) for k in range(7, 13) for i in range(3)] + [(12*(k-13) + 4*i, k + 2) for k in range(13, 20) for i in range(3)]
        w2r = lambda n: 160 + 4*n if n < 20 else free[n-20][0]
        w2ok = lambda n: 0 if n < 20 else free[n-20][1]
    else:
        w1r = lambda kp, i: 12*kp + 4*i; w1ok = lambda kp: 0
        w2r = lambda n: 4*n; w2ok = lambda n: (4*n + 3)//12 + 2
    WS, SS = (9, 7) if O['wline'] else (7, 3)
    def retry_block(tag, loads, check):
        retries.append((tag, loads, check)); return [f"s_cbranch_vccnz kf_rt_{tag}\nkf_ok_{tag}:"]
    def warm_pages(R):
        if not O["tlb"]: return
        st_, n = O["tlb"], -(-WSEND // O["tlb"])
        for k in range(-(-n // 64)):
            e(f"v_add_u32 v{R}, {64*k}, v{vL}\nv_min_u32 v{R}, {n-1}, v{R}\nv_mul_u32_u24 v{R}, {st_}, v{R}")
            a(f"buffer_load_dword v{R}, v{R}, s[20:23], 0 offen")
        e(f"v_min_u32 v{R+1}, {2621440//st_}, v{vL}\nv_mul_u32_u24 v{R+1}, {st_}, v{R+1}\nv_min_u32 v{R+1}, 2621436, v{R+1}\nv_mov_b32 v{R+2}, 0\nv_mov_b32 v{R+3}, 0")
        a(f"global_load_dword v{R+1}, v{R+1}, s[60:61]\nglobal_load_dword v{R+2}, v{R+2}, s[54:55]\nglobal_load_dword v{R+3}, v{R+3}, s[58:59]")
    GH, GL = phi_gen()
    e(f"""s_lshr_b32 s32, s29, 2
s_lshl_b32 s32, s32, 8
s_and_b32 s33, s29, 3
s_lshl_b32 s33, s33, 3
s_add_u32 s32, s32, s33
s_lshl_b32 s33, s28, 5
s_add_u32 s32, s32, s33
v_lshrrev_b32 v2, 3, v{vL}
v_add_u32 v5, s32, v2
v_mul_u32_u24 v5, 1280, v5
v_bfe_u32 v3, v{vL}, 4, 1
s_lshl_b32 s33, s28, 1
v_or_b32 v3, s33, v3
v_and_b32 v4, 7, v{vL}
v_xor_b32 v3, v3, v4
v_lshl_add_u32 v17, v3, 4, v5
v_add_u32 v19, 163840, v17
s_lshl_b32 s41, s28, 10
s_lshl_b32 s43, s30, 7
s_mov_b32 s42, s43
s_add_u32 s44, s43, 640""")
    if O["xtouch"]:
        e(f"""s_lshl_b32 s33, s30, 2
s_add_u32 s33, s33, s28
s_lshl_b32 s33, s33, 5
v_and_b32 v6, 31, v{vL}
v_add_u32 v6, s33, v6
v_mul_u32_u24 v7, 6554, v6
v_lshrrev_b32 v7, 16, v7
v_mul_u32_u24 v8, 10, v7
v_sub_u32 v6, v6, v8
v_lshrrev_b32 v8, 3, v7
v_and_b32 v7, 7, v7
v_lshl_add_u32 v7, v8, 5, v7
s_lshl_b32 s33, s28, 5
s_sub_u32 s33, s32, s33
v_add_u32 v7, s33, v7
v_mul_u32_u24 v7, 1280, v7
v_lshl_add_u32 v6, v6, 7, v7""")
    if not O["lean"]: e(GH)
    e("s_waitcnt lgkmcnt(0)")
    st(1)
    srd(e, 16, 4, 2621440)
    if O["xtouch"]: a("buffer_load_dword v6, v6, s[16:19], 0 offen")
    XD = []
    for c in range(5):
        for k, u in enumerate((c, c+5)):
            sr = (42, 44)[k]
            adv = [f"s_add_u32 s{sr}, s{sr}, 128"] + ([f"s_cmp_eq_u32 s{sr}, 1280", f"s_cselect_b32 s{sr}, 0, s{sr}"] if k else [])
            XD.append([f"s_add_u32 m0, s41, {8*u*1024}"] + (adv if c else []) + [f"buffer_load_dwordx4 v17, s[16:19], s{sr} offen {ld} lds"])
            XD.append([f"s_add_u32 m0, s41, {(8*u+4)*1024}", f"buffer_load_dwordx4 v19, s[16:19], s{sr} offen {ld} lds" + (f" #c{c}" if k else "")])
    for d in XD[:4]: e(d)
    st(40)
    if O["lean"]: e(GH)
    srd(e, 20, 14, WSEND + (0x2000000 if O.get('dummy') else 0)); srd(e, 24, 6, 1314816); srd(e, 4, 8, 1314816)
    warm_pages(244)
    e("""s_or_b32 s32, s2, s28
s_cmp_lg_u32 s32, 0
s_cbranch_scc1 kf_nononce
s_or_b32 s12, s94, 1
v_mov_b32 v2, s12
v_mov_b32 v3, s95
v_mov_b32 v4, 0""")
    a("global_store_dwordx2 v4, v[2:3], s[62:63] sc1\nkf_nononce:")
    XA0 = f"""s_and_b32 s36, s2, 3
s_lshl_b32 s36, s36, 4
s_bfe_u32 s37, s2, 0x30002
s_lshl_b32 s37, s37, 2
s_add_u32 s37, s37, s28
s_lshl_b32 s37, s37, 6
s_add_u32 s36, s36, s37
s_mul_i32 s36, s36, 642
s_add_u32 s36, s36, s43
s_add_u32 s36, s36, 2
s_lshl_b32 s39, s28, 11
s_add_u32 s39, s39, {SIDE}
v_lshrrev_b32 v2, 3, v{vL}
v_mul_u32_u24 v2, 642, v2
v_lshrrev_b32 v3, 4, v{vL}
v_and_b32 v4, 7, v{vL}
v_xor_b32 v3, v3, v4
v_lshl_add_u32 v15, v3, 4, v2
v_xor_b32 v3, 4, v3
v_lshl_add_u32 v16, v3, 4, v2
v_add_u32 v16, {8*642}, v16""".split("\n")
    if not O['wt_late']: e(XA0)
    WD = [[f"s_add_u32 m0, s39, {arr*8192 + nh*1024}", f"buffer_load_dwordx4 v{15+nh}, s[{24 if arr == 0 else 4}:{27 if arr == 0 else 7}], s36 offen {ld} lds"] for arr in range(2) for nh in range(2)]
    BQ = XD[4:O['x_n']] if O['wt_late'] else XD[4:6] + WD + XD[6:O['x_n']]
    e(sprinkle(GL, BQ, O['x_gap'], first=0))
    st(2)
    phi_fix(e, "kx")
    for d in BQ: e(d)
    BQ = XD[O['x_n']:]
    if O['wt_late']: BQ = XD[O['x_n']:14] + [XA0] + WD + [['@mark wd']] + XD[14:]
    if O['wt_post']: WD[-1][-1] += " #wd"; BQ = XD[O['x_n']:] + [XA0] + WD + [['@mark wd']]
    e(f"""v_and_b32 v2, 15, v{vL}
v_lshrrev_b32 v3, 2, v2
v_and_b32 v4, 3, v2
v_lshlrev_b32 v5, 10, v3
v_lshl_add_u32 v5, v4, 7, v5
v_lshrrev_b32 v4, 1, v4
v_lshl_or_b32 v3, v3, 1, v4
v_lshrrev_b32 v4, 4, v{vL}
v_xor_b32 v3, v3, v4
v_lshl_add_u32 v10, v3, 4, v5
v_xor_b32 v11, 64, v10
v_add_u32 v12, 40960, v10
v_add_u32 v13, 40960, v11""")
    XA1 = f"""v_and_b32 v2, 15, v0
v_lshrrev_b32 v3, 4, v0
v_lshrrev_b32 v4, 1, v3
v_lshrrev_b32 v5, 1, v2
v_xor_b32 v4, v4, v5
v_lshlrev_b32 v4, 4, v4
v_and_b32 v5, 1, v3
v_lshl_or_b32 v4, v5, 3, v4
v_lshl_add_u32 v4, v2, 7, v4
v_add_u32 v15, {SIDE}, v4
@mark xa1
v_lshlrev_b32 v3, 13, v3
v_lshl_add_u32 v16, v2, 4, v3
s_lshl_b32 s36, s30, 19
s_and_b32 s37, s2, 3
s_lshl_b32 s37, s37, 11
s_add_u32 s36, s36, s37
s_bfe_u32 s37, s2, 0x10002
s_lshl_b32 s37, s37, 10
s_add_u32 s36, s36, s37
s_bfe_u32 s37, s2, 0x20003
s_lshl_b32 s37, s37, 8
s_add_u32 s36, s36, s37
s_add_u32 s36, s36, {WT}
s_mov_b32 s48, 0x05040100
s_mov_b32 s49, 0x07060302""".split("\n")
    XA2 = f"""s_mul_i32 s12, s29, 81920
s_lshl_b32 s37, s30, 2
s_add_u32 s37, s37, s28
s_lshl_b32 s37, s37, 12
s_add_u32 s12, s12, s37
s_lshl_b32 s37, s28, 12
s_add_u32 s37, s37, {SIDE + 16384}
v_and_b32 v2, 7, v{vL}
v_lshrrev_b32 v3, 4, v{vL}
v_xor_b32 v3, v3, v2
v_and_b32 v4, 15, v{vL}
v_lshlrev_b32 v4, 7, v4
v_lshl_add_u32 v4, v3, 4, v4
v_add_u32 v248, s37, v4
v_xor_b32 v249, 64, v248
v_lshrrev_b32 v3, 3, v{vL}
v_xor_b32 v2, v2, v3
v_lshlrev_b32 v3, 7, v3
v_lshl_add_u32 v3, v2, 4, v3
v_add_u32 v18, s37, v3
v_lshlrev_b32 v14, 4, v{vL}""".split("\n")
    st(3)
    def xreads(s_, buf):
        u = s_ // 2
        return [f"ds_read_b128 {rng(FR+16*buf+4*t)}, v{10 + (s_ % 2) + (2 if u >= 5 else 0)} offset:{(u%5)*8192 + (t//2)*4096 + (t%2)*512}" for t in range(4)]
    xacc = lambda s_, t, p: ACC + 32*s_ + 8*t + 4*p
    def xm(s_, buf, first):
        return [f"{MF} {rng(xacc(s_//10,t,p))}, {rng(FR+16*buf+4*t)}, {rng(P(s_%10) if p == 0 else Q(s_%10))}, {'0' if first else rng(xacc(s_//10,t,p))}" for t in range(4) for p in range(2)]
    WDt, WO = WG_, WG_ + 16
    def wave_flag(base, R):
        return [f"s_lshl_b32 s32, s2, {WS-SS}\ns_add_u32 s32, s32, s28\ns_lshl_b32 s32, s32, {SS}\ns_add_u32 s32, s32, {base}", f"v_mov_b32 v{R}, s10", f"v_mov_b32 v{R+1}, s11", f"v_mov_b32 v{R+2}, 0",
                f"buffer_store_dwordx2 v[{R}:{R+1}], v{R+2}, s[20:23], s32 offen sc1"]
    nA, nR, nP = ((8, 9), 11, 14) if O["wt_late"] else ((0, 2), 3, 6)
    if O["wt_post"]: nA, nR, nP = (13, 14), 99, 99
    def xextra(n):
        L = []
        for _ in range(2 if O["wt_late"] and n < 6 else 1):
            if BQ: L += BQ.pop(0)
        if n == nA[0]: L += (["@need wd"] if O["wt_late"] else []) + XA1[:11]
        if n == nA[1]: L += XA1[11:]
        if n == (12 if O["wt_late"] else 11): L += XA2
        if n == nR: e("@need xa1")
        if n in (nR, nR+1): L += [f"ds_read_b64 v[{WDt+8*(n-nR)+2*r}:{WDt+8*(n-nR)+2*r+1}], v15 offset:{(4*(n-nR)+r)*2048}" for r in range(4)]
        if nP <= n < nP + 4:
            q = n - nP
            L += [f"v_perm_b32 v{WO+4*q+2*arr+rp}, v{WDt+8*arr+4*rp+2+q//2}, v{WDt+8*arr+4*rp+q//2}, s{48+q%2}" for arr in range(2) for rp in range(2)]
            L += [f"buffer_store_dwordx4 {rng(WO+4*q)}, v16, s[20:23], s36 offen sc1 #wts", f"s_add_u32 s36, s36, {16*8192}"]
        if n == (4 if O["wt_post"] else 10): L += nonce_load(250)
        if n == O["f0_n"]:
            N_ = nonce_items("kx", 250)
            L += ["@vm nonce", "\n".join(N_)] + ([] if O["wt_late"] else wave_flag(FL0, 252))
        return L
    kloop(e, xreads, xm, xextra, st, 0)
    st(4)
    for p in range(2):
        for h in range(2):
            o = FR + 8*p + 4*h
            for t in (2*h, 2*h+1):
                for rp in range(2):
                    d = xacc(0,t,p) + 2*rp; s_ = xacc(1,t,p) + 2*rp
                    e(f"v_pk_fma_f32 v[{d}:{d+1}], v[{s_}:{s_+1}], s[46:47], v[{d}:{d+1}]\nv_cvt_pk_bf16_f32 v{o+2*(t%2)+rp}, v{d}, v{d+1}")
            if p == 1 and h == 0:
                e("s_waitcnt lgkmcnt(0)")
                for i in range(2): e(f"buffer_store_dwordx4 {rng(FR+16+4*i)}, v14, s[20:23], s12 offen offset:{i*1024} sc1")
            e(f"v_and_b32 v{o}, -2, v{o}\nds_write_b128 v{248+h}, {rng(o)} offset:{p*2048}")
        e(f"s_waitcnt lgkmcnt(0)\nds_read_b128 {rng(FR+16+8*p)}, v18 offset:{p*2048}\nds_read_b128 {rng(FR+20+8*p)}, v18 offset:{p*2048+1024}")
    for i in (2, 3): e(f"s_waitcnt lgkmcnt({3-i})\nbuffer_store_dwordx4 {rng(FR+16+4*i)}, v14, s[20:23], s12 offen offset:{i*1024} sc1")
    st(45)
    F = wave_flag(FL1, 2)
    if O["wt_post"]:
        e("@vm wd\ns_barrier")
        e([f"ds_read_b64 v[{WDt+2*k}:{WDt+2*k+1}], v15 offset:{k*2048}" for k in range(8)])
        e(F[:-1]); e("s_waitcnt lgkmcnt(0)\ns_barrier")
        e([f"v_perm_b32 v{WO+4*q+2*arr+rp}, v{WDt+8*arr+4*rp+2+q//2}, v{WDt+8*arr+4*rp+q//2}, s{48+q%2}" for q in range(4) for arr in range(2) for rp in range(2)])
        e("@drain"); e(F[-1:])
        for q in range(4): e(f"buffer_store_dwordx4 {rng(WO+4*q)}, v16, s[20:23], s36 offen sc1 #wts\ns_add_u32 s36, s36, {16*8192}")
    else:
        e(F[:-1]); e("@drain"); e(F[-1:])
    st(6)
    e(f"""s_and_b32 s32, s2, 0xe0
s_add_u32 s32, s32, s28
s_lshl_b32 s32, s32, {WS}
s_bfe_u32 s33, s2, 0x20001
s_lshl_b32 s33, s33, {SS}
s_add_u32 s32, s32, s33
s_add_u32 s32, s32, {FL1 if O["wt_late"] and not O["wt_post"] else FL0}
v_and_b32 v146, 7, v{vL}
v_lshl_add_u32 v146, v146, {WS+2}, s32
s_lshl_b32 s32, s28, {WS+1}
s_add_u32 s32, s32, {FL1 + (240 << WS)}
v_and_b32 v144, 1, v{vL}
v_lshl_add_u32 v144, v144, {WS}, s32
v_bfe_u32 v145, v{vL}, 1, 1
v_lshl_add_u32 v144, v145, {WS+3}, v144
""")
    if O["wt_late"]: e("v_mov_b32 v143, v146\nv_mov_b32 v146, v144")
    else: e(f"v_cmp_gt_u32 vcc, 8, v{vL}\ns_nop 0\nv_cndmask_b32 v146, v144, v146, vcc")
    if O["ctab"]: e(f"""s_lshl_b32 s32, s28, 3
s_add_u32 s32, s32, {FL0 + 228*128}
v_min_u32 v144, 14, v{vL}
v_lshl_add_u32 v144, v144, 7, s32
v_cmp_gt_u32 vcc, 12, v{vL}
s_nop 0
v_cndmask_b32 v146, v144, v146, vcc""")
    e(gemm_role)
    if O["beta"]: e(f"s_lshl_b32 s32, s30, 1\ns_lshr_b32 s38, s28, 1\ns_add_u32 s32, s32, s38\ns_lshl_b32 s32, s32, {WS}\ns_add_u32 s32, s32, {FL1 + (240 << WS)}\nv_mov_b32 v144, s32\nv_cmp_gt_u32 vcc, 32, v{vL}\ns_nop 0\nv_cndmask_b32 v146, v144, v146, vcc")
    C_ = p2_consts_rot() if (not O['ctab'] and not O['c_late']) else []
    k = int(len(C_) * O["f0_at"])
    e(C_[:k]); e("" if O["f0_merge"] else "buffer_load_dwordx2 v[144:145], v146, s[20:23], 0 offen sc1 #f0"); e(C_[k:])
    if O["wt_post"]: e("@vm wts"); e(wave_flag(FL0, 2))
    e(f"""v_bfe_u32 v2, v{vL}, 1, 1
v_bfe_u32 v3, v{vL}, 3, 1
v_lshl_or_b32 v2, v3, 1, v2
v_lshrrev_b32 v3, 4, v{vL}
v_xor_b32 v2, v2, v3
v_lshlrev_b32 v2, 4, v2
v_bfe_u32 v3, v{vL}, 2, 1
v_lshl_or_b32 v2, v3, 3, v2
v_and_b32 v3, 15, v{vL}
v_lshl_add_u32 v2, v3, 6, v2
s_lshl_b32 s32, s28, 10
s_add_u32 s32, s32, {RG}
v_add_u32 v16, s32, v2
v_xor_b32 v17, 8, v16
v_bfe_u32 v2, v{vL}, 3, 1
v_bfe_u32 v3, v{vL}, 5, 1
v_lshl_or_b32 v2, v3, 1, v2
v_and_b32 v3, 3, v{vL}
v_xor_b32 v2, v2, v3
v_lshlrev_b32 v2, 4, v2
v_bfe_u32 v3, v{vL}, 4, 1
v_lshl_or_b32 v2, v3, 3, v2
v_lshrrev_b32 v3, 2, v{vL}
v_lshl_add_u32 v2, v3, 6, v2
v_add_u32 v14, {RG}, v2
v_xor_b32 v15, 8, v14
v_bfe_u32 v2, v{vL}, 3, 1
s_lshl_b32 s32, s28, 1
v_add_u32 v2, s32, v2
v_lshrrev_b32 v3, 4, v{vL}
v_lshl_add_u32 v2, v2, 2, v3
v_and_b32 v4, 7, v{vL}
v_lshlrev_b32 v4, 4, v4
v_lshl_add_u32 v147, v2, 7, v4
s_mov_b32 s32, 81920
v_mad_u32_u24 v13, v2, s32, v4
s_lshr_b32 s33, s2, 3
s_lshl_b32 s33, s33, 12
s_and_b32 s34, s2, 7
s_lshl_b32 s34, s34, 8
s_add_u32 s33, s33, s34
s_mov_b32 s34, {RB}
s_add_u32 s35, s34, 4096
s_lshl_b32 s36, s2, 14
s_lshl_b32 s37, s28, 11
s_add_u32 s36, s36, s37
s_add_u32 s36, s36, {WT}
s_add_u32 s37, s36, 8192
s_and_b32 s32, s2, 0xe0
s_lshl_b32 s38, s28, 1
s_add_u32 s32, s32, s38
s_lshl_b32 s32, s32, {WS}
s_bfe_u32 s38, s2, 0x20003
s_lshl_b32 s38, s38, {SS}
s_add_u32 s32, s32, s38
s_add_u32 s32, s32, {FL1}
v_and_b32 v6, 3, v{vL}
v_lshl_add_u32 v6, v6, {WS+3}, s32
v_bfe_u32 v7, v{vL}, 2, 1
v_lshl_add_u32 v149, v7, {WS}, v6""")
    if O["wt_late"]: e(f"v_cmp_gt_u32 vcc, 8, v{vL}\ns_nop 0\nv_cndmask_b32 v149, v143, v149, vcc")
    if O["f0_merge"]: e(f"v_cmp_gt_u32 vcc, 16, v{vL}\ns_nop 0\nv_cndmask_b32 v149, v146, v149, vcc")
    wflag = [f"s_lshr_b32 s32, s28, 1\ns_lshl_b32 s32, s32, 3\ns_add_u32 s32, s32, s30\ns_lshl_b32 s32, s32, {WS}\ns_add_u32 s32, s32, {FL1 + (160 << WS)}",
             f"v_min_u32 v18, 19, v{vL}", "v_and_b32 v7, 3, v18", "v_lshrrev_b32 v18, 2, v18", f"v_lshl_add_u32 v18, v18, {WS+4}, s32", f"v_lshl_add_u32 v18, v7, {SS}, v18"]
    tileflag = lambda R: [f"s_and_b32 s32, s29, 3\ns_lshl_b32 s32, s32, 3\ns_lshr_b32 s38, s29, 2\ns_add_u32 s32, s32, s38\ns_lshl_b32 s32, s32, {WS}\ns_add_u32 s32, s32, {FL1}\ns_lshl_b32 s38, s38, {WS}\ns_add_u32 s38, s38, {FL1 + (240 << WS)}",
                          f"v_lshrrev_b32 v{R}, 2, v{vL}", f"v_lshl_add_u32 v{R}, v{R}, {WS+5}, s32", f"v_and_b32 v{R+1}, 3, v{vL}", f"v_lshl_add_u32 v{R}, v{R+1}, {SS}, v{R}",
                          f"v_and_b32 v{R+1}, 1, v{vL}", f"v_lshl_add_u32 v{R+1}, v{R+1}, {WS+3}, s38", f"v_cmp_gt_u32 vcc, 20, v{vL}", "s_nop 0", f"v_cndmask_b32 v{R}, v{R+1}, v{R}, vcc"]
    biasld = ["s_mul_i32 s32, s30, 384\ns_mul_i32 s38, s28, 96\ns_add_u32 s32, s32, s38", f"v_lshrrev_b32 v2, 4, v{vL}", "v_lshl_add_u32 v3, v2, 3, s32"]
    biasld += [f"global_load_dwordx2 a[{240+2*i}:{241+2*i}], v3, s[54:55] offset:{32*i}" for i in range(3)]
    biasld += ["s_mul_i32 s32, s30, 160", "v_lshl_add_u32 v3, v2, 4, s32", "v_lshl_add_u32 v4, v2, 3, s32",
               "global_load_dwordx4 a[246:249], v3, s[58:59]", "global_load_dwordx4 a[250:253], v3, s[58:59] offset:64", "global_load_dwordx2 a[254:255], v4, s[58:59] offset:128"]
    def outpre(R, fl):
        return [f"s_mov_b32 s16, s60\ns_and_b32 s17, s61, 0xffff\ns_mov_b32 s18, 2621440\ns_mov_b32 s19, 0x20000",
                "s_lshr_b32 s32, s29, 2\ns_lshl_b32 s32, s32, 8\ns_and_b32 s3, s29, 3\ns_lshl_b32 s3, s3, 3\ns_add_u32 s32, s32, s3\ns_lshl_b32 s3, s28, 6\ns_add_u32 s32, s32, s3",
                f"v_lshrrev_b32 v{R}, 5, v{vL}", f"v_bfe_u32 v{R+1}, v{vL}, 2, 3", f"v_lshl_add_u32 v{R}, v{R}, 5, v{R+1}", f"v_add_u32 v{R}, s32, v{R}", f"v_mul_u32_u24 v{R}, 1280, v{R}",
                f"v_and_b32 v{R+1}, 3, v{vL}", f"v_lshl_add_u32 v{R+2}, v{R+1}, 4, v{R}", f"v_lshl_add_u32 v{R+1}, v{R+1}, 3, v{R}", "s_mul_i32 s3, s30, 160",
                f"buffer_store_dwordx4 {rng(R)}, v{R+2}, s[16:19], s3 offen {fl}", f"buffer_store_dwordx4 {rng(R)}, v{R+2}, s[16:19], s3 offen offset:64 {fl}",
                f"buffer_store_dwordx2 v[{R}:{R+1}], v{R+1}, s[16:19], s3 offen offset:128 {fl}"]
    def blank(R, which):
        if not O["blank"]: return []
        L = [f"v_mov_b32 v{R}, 0", f"v_mov_b32 v{R+1}, 0"]
        if "1" in which: L += [f"s_lshl_b32 s32, s2, {WS-SS}\ns_add_u32 s32, s32, s28\ns_lshl_b32 s32, s32, {SS}\ns_add_u32 s32, s32, {FL1}", f"buffer_store_dwordx2 v[{R}:{R+1}], v{R}, s[20:23], s32 offen sc1"]
        if "3" in which: L += [f"s_lshl_b32 s32, s29, 3\ns_add_u32 s32, s32, s30\ns_lshl_b32 s32, s32, {WS-SS}\ns_add_u32 s32, s32, s28\ns_lshl_b32 s32, s32, {SS}\ns_add_u32 s32, s32, {FL3}", f"buffer_store_dwordx2 v[{R}:{R+1}], v{R}, s[20:23], s32 offen sc1"]
        return L
    w2base = f"s_mul_i32 s12, s30, 48\ns_mul_i32 s32, s28, 12\ns_add_u32 s12, s12, s32\ns_mul_i32 s12, s12, 5120\ns_add_u32 s12, s12, {W2F}"
    W2E = [([f"s_add_u32 s13, s12, {n*1024}"] if n % 4 == 0 else []) + [f"buffer_load_dwordx4 {arng(160+4*n)}, v10, s[20:23], s13 offen offset:{(n%4)*1024} sc1"] for n in range(20)]
    eflag = f"s_lshl_b32 s32, s30, 1\ns_lshr_b32 s38, s28, 1\ns_add_u32 s32, s32, s38\ns_lshl_b32 s32, s32, {WS}\ns_add_u32 s32, s32, {FL1 + (240 << WS)}"
    def share(base, R):
        return [f"s_lshr_b32 s32, s2, 5\ns_lshl_b32 s32, s32, 2\ns_add_u32 s32, s32, s28\ns_mul_i32 s32, s32, 7680\ns_mul_i32 s38, s30, 245760\ns_add_u32 s38, s38, s32\ns_add_u32 s38, s38, {base}",
                f"v_min_u32 v{R}, 59, v{vL}", f"v_lshlrev_b32 v{R}, 7, v{R}", f"buffer_load_dword v{R}, v{R}, s[20:23], s38 offen sc1"]
    w1set = [f"v_lshlrev_b32 v10, 4, v{vL}", "v_add_u32 v11, 20480, v10", "v_add_u32 v12, 40960, v10", "s_mul_i32 s44, s30, 12", "s_mul_i32 s32, s28, 3",
             "s_add_u32 s44, s44, s32", "s_mul_i32 s44, s44, 20480", f"s_add_u32 s44, s44, {W1F}",
             ]
    w1set += ["s_lshr_b32 s96, s2, 5"]
    if O["rot1"]:
        w1set += ["s_cmp_ge_u32 s96, 5\ns_cselect_b32 s97, 5, 0\ns_sub_u32 s97, s96, s97\ns_lshl_b32 s97, s97, 12"]
        for c in range(1, 5): w1set += [f"s_add_u32 s{97+c}, s{96+c}, 4096\ns_cmp_eq_u32 s{97+c}, 20480\ns_cselect_b32 s{97+c}, 0, s{97+c}"]
    for c in range(0):
        w1set += [f"s_add_u32 s{4+c}, s51, {c}", f"s_mul_i32 s32, s{4+c}, 52", "s_lshr_b32 s32, s32, 8", "s_mul_i32 s32, s32, 5", f"s_sub_u32 s{4+c}, s{4+c}, s32", f"s_lshl_b32 s{4+c}, s{4+c}, 12"]
    e(wflag); e(w1set)
    if O["beta"]: e(w2base)
    if O["opre_kp"] == -1: e(outpre(140, O["opre_fl"]))
    if O["biasa"]: e(biasld)
    RAW, RR, SC = ZF, ZF + 40, ZF + 24
    e(PHS); e(f"s_mul_i32 s32, s28, 10240\ns_add_u32 s32, s32, {RG + 32768}\nv_add_u32 v19, s32, v10\ns_lshl_b32 s38, s28, 14\ns_add_u32 s38, s38, {CT}")
    chk = ["v_cmp_ne_u64 vcc, s[10:11], v[144:145]"]
    if not O["f0_merge"]:
        e("@vm f0"); e(chk); e(retry_block("f0", ["buffer_load_dwordx2 v[144:145], v146, s[20:23], 0 offen sc1"], chk))
    EQ = [[f"buffer_load_dwordx4 {rng(RR+4*h)}, v147, s[20:23], s{34+h} offen sc1"] for h in range(2)]
    for k in range(16 if O["ctab"] else 0): EQ.append(([f"s_add_u32 s38, s38, 4096"] if k and k % 4 == 0 else []) + [f"buffer_load_dwordx4 {rng(FAc+4*k)}, v10, s[20:23], s38 offen offset:{(k%4)*1024} sc1"])
    WQ = [[f"buffer_load_dwordx4 {rng(wt(c,1,t))}, v10, s[20:23], s{36+c} offen offset:{t*1024} sc1 #wt{c}"] for c in range(2) for t in range(2)]
    if not O["wt_late"]: EQ += WQ
    EL = []; RQ = []
    if O["f0_merge"]: RQ = EQ[:2]; del EQ[:2]
    if O["beta"]: EQ += W2E[:O["e_win"]]; EL = W2E[O["e_win"]:]
    if O["c_late"]: e(sprinkle(p2_consts_rot(), EQ, O["c_gap"], first=0))
    X = (PHK if O["nst"] + O["nst2"] else []) + [x for ki in range(O["nst"]) for x in phx(ki, lambda k, dt: 152 + 4*dt)]
    cut = int(len(X) * O["f1_at"])
    e(sprinkle(X[:cut], EQ, O["eq_gap"], first=0))
    for n in EQ: e(n)
    e("buffer_load_dwordx2 v[150:151], v149, s[20:23], 0 offen sc1 #f1")
    e(X[cut:])
    st(7)
    chk = ["v_cmp_ne_u64 vcc, s[10:11], v[150:151]"]
    e("@vm f1"); e(chk); e(retry_block("f1", ["buffer_load_dwordx2 v[150:151], v149, s[20:23], 0 offen sc1"], chk))
    st(8)
    for c in range(2):
        for p in range(2):
            e(f"buffer_load_dwordx4 {rng(RAW+8*c+4*p)}, v13, s[20:23], s33 offen offset:{c*128 + p*2048} sc1 #x{c}{p}")
            if c == 0 and p == 0:
                for n in RQ: e(n[0] + " #x00")
    if not O["wf_at"]: e("buffer_load_dwordx2 v[8:9], v18, s[20:23], 0 offen sc1 #wf")
    e(tileflag(2)); e("buffer_load_dwordx2 v[6:7], v2, s[20:23], 0 offen sc1 #tf")
    if O["wt_late"]:
        for n in WQ: e(n)
    e(sprinkle([x for ki in range(O["nst"], O["nst"] + O["nst2"]) for x in phx(ki, lambda k, dt: 164 + 4*dt)], EL, 40))
    assert not EL
    st(33)
    for c in range(2):
        for p in range(2):
            e(f"@vm x{c}{p}")
            if c == 0 and p == 0: st(34)
            raw = RAW + 8*c + 4*p
            for q in range(4):
                d = xi(c, p, 0) + 2*q
                e(f"v_lshlrev_b32 v{d}, 16, v{raw+q}\nv_and_b32 v{d+1}, 0xffff0000, v{raw+q}")
                e(f"v_pk_mul_f32 v[{TMP+2*q}:{TMP+2*q+1}], v[{d}:{d+1}], v[{RR+2*q}:{RR+2*q+1}]")
            o = SC + 8*c + 4*p
            for q in range(4): e(f"v_cvt_pk_bf16_f32 v{o+q}, v{TMP+2*q}, v{TMP+2*q+1}")
            e(f"ds_write_b64 v16, v[{o}:{o+1}] offset:{c*8192 + p*4096}\nds_write_b64 v17, v[{o+2}:{o+3}] offset:{c*8192 + p*4096}")
    st(35)
    st(36)
    e("s_waitcnt lgkmcnt(0)\ns_barrier")
    st(30)
    W1L = []
    for kp in range(20):
        for i in range(3):
            pre = [f"s_add_u32 s45, s44, {'s%d' % (97 + kp//4) if O['rot1'] else kp*1024}"] if (kp % 4 == 0 and i == 0) else []
            W1L.append(pre + [f"buffer_load_dwordx4 {arng(w1r(kp,i))}, v{10+i}, s[20:23], s45 offen offset:{(kp%4)*1024} sc1 #w1_{kp}"])
    W1Q = list(W1L)
    tw = lambda c, conj: cmul2(c, a1, lambda t: TC+4*t, lambda t: TS+4*t, conj)
    wm = lambda c: cmul2(c, a1, lambda t: wt(c, 0, t), lambda t: wt(c, 1, t), False)
    def unp(c):
        L = []
        for t in range(2):
            x, y = wt(c, 0, t), wt(c, 1, t)
            for (d, s_) in ((x, y), (x+2, y+1), (y, y+2), (y+2, y+3)): L += [f"v_lshlrev_b32 v{d}, 16, v{s_}", f"v_and_b32 v{d+1}, 0xffff0000, v{s_}"]
        return L
    def intro(base, inv):
        R0, R1 = trreads(0, base), trreads(1, base); A0 = stage64(0, inv)
        second = weave(A0[8:], R1[4:12])
        if not inv:
            U = unp(0); second = ["@vm wt0"] + [z for k in range(8) for z in (A0[8+k], R1[4+k], U[2*k], U[2*k+1])]
        return (R0[:12] + ["s_waitcnt lgkmcnt(4)"] + weave(A0[:8], R0[12:] + R1[:4]) + ["s_waitcnt lgkmcnt(4)"]
                + second + ["s_waitcnt lgkmcnt(4)"] + R1[12:])
    ov = lambda M, AB: weave(M, AB[0], 0, 1, 2) + AB[1]
    A1_ = stage64(1, False)
    def fchk(tag, R, ad):
        chk = [f"v_cmp_ne_u64 vcc, s[10:11], v[{R}:{R+1}]"]
        return [f"@vm {tag}"] + chk + retry_block(tag, [f"buffer_load_dwordx2 v[{R}:{R+1}], v{ad}, s[20:23], 0 offen sc1"], chk)
    I0 = intro(0, False)
    e(I0[:12])
    seq = I0[12:] + fchk("tf", 6, 2) + ["@vm wt1"] + weave(A1_[:8], unp(1), 0, 1, 2) + ["s_waitcnt lgkmcnt(0)"] + ov(A1_[8:], tw(0, True))
    seq += ov(stage32(0, False), tw(1, True)) + ov(stage32(1, False), wm(0)) + ov(stage32(0, True), wm(1)) + ov(stage32(1, True), tw(0, False))
    wr = lambda c: [f"ds_write_b64 v{16+h}, v[{pk(c,p)+2*h}:{pk(c,p)+2*h+1}] offset:{16384 + c*8192 + p*4096}" for p in range(2) for h in range(2)]
    U1 = tw(1, False)
    seq += wr(0) + ([] if O["x2split"] else U1[0] + U1[1] + wr(1))
    cut = int(len(seq) * O["wf_at"])
    if cut: seq[max(0, cut - 60):max(0, cut - 60)] = ["buffer_load_dwordx2 v[8:9], v18, s[20:23], 0 offen sc1 #wf"]
    e(seq[:cut]); e(fchk("wf", 8, 18))
    if O["share1"]: e(share(W1F, 8))
    e(sprinkle(seq[cut:], W1Q, O["w1_gap"], limit=O["w1_p2"]))
    st(31)
    e("s_waitcnt lgkmcnt(0)\ns_barrier")
    st(32)
    if not O["x2split"]: e(intro(16384, True))
    e("s_cmp_eq_u32 s2, 159\ns_cselect_b32 s32, 0, -1")
    def fin(c):
        L = []
        for p in range(2):
            o = a1(c, p, 0)
            for q in range(4): L.append(f"v_cvt_pk_bf16_f32 v{o+q}, v{xi(c,p,0)+2*q}, v{xi(c,p,0)+2*q+1}")
            if c == 1 and p == 1: L += [f"v_and_or_b32 v{o}, v{o}, s32, 1"] + [f"v_and_b32 v{o+q}, s32, v{o+q}" for q in (1, 2, 3)]
            else: L.append(f"v_or_b32 v{o}, 1, v{o}")
            L.append(f"buffer_store_dwordx4 {rng(o)}, v13, s[20:23], s33 offen offset:{c*128 + p*2048} sc1")
        return L
    A1_ = stage64(1, True)
    if O["x2split"]:
        R0, R1 = trreads(0, 16384), trreads(1, 16384); A0 = stage64(0, True)
        UP = P2.cmul(1, a1, lambda t: TC+4*t, lambda t: TS+4*t, False)
        e(R0[:8]); e(weave(UP[:16], R0[8:], 0, 2, 1)); e("s_waitcnt lgkmcnt(8)")
        e(weave(A0[:8], UP[16:32], 0, 1, 2)); e("s_waitcnt lgkmcnt(0)")
        e(weave(A0[8:], UP[32:] + wr(1), 0, 1, 2)); e("s_waitcnt lgkmcnt(0)\ns_barrier")
        F0_ = fin(0)
        e(R1[:8]); e(weave(F0_[:8], R1[8:], 0, 1, 1)); e(F0_[8:]); e("s_waitcnt lgkmcnt(8)")
        e(A1_[:8] + ["s_waitcnt lgkmcnt(0)"] + A1_[8:] + fin(1))
    else:
        e(A1_[:8] + ["s_waitcnt lgkmcnt(0)"] + weave(A1_[8:], fin(0), 0, 1, 2) + fin(1))
    st(9)
    flag_put(e, "kxh", FLH)
    e([f"ds_read_b128 {rng(ph(ki,dt))}, v19 offset:{(5*ki+dt)*1024}" for ki in range(O["nst"] + O["nst2"]) for dt in range(5)])
    e(sprinkle(PHK + [x for ki in range(O["nst"] + O["nst2"], O["npre"]) for x in phx(ki)], W1Q, O["w1_gap"], limit=O["w1_pre"]))
    W1Q_after = list(W1Q)
    assert w1ok((59 - len(W1Q))//3) == 0
    print("phi left: late W1 loads", len(W1Q))
    e("s_branch kf_join")
    pos_np0 = len(a.items)
    vm_join = e.vm
    e.vm = VM()
    pos_w0 = len(a.items)
    e("kf_notx:\ns_cmp_ge_u32 s2, 240\ns_cbranch_scc1 kf_spare")
    e("""s_sub_u32 s32, s2, 160
s_and_b32 s29, s32, 7
s_lshl_b32 s29, s29, 1
s_bfe_u32 s33, s32, 0x10003
s_add_u32 s29, s29, s33
s_lshr_b32 s30, s32, 4""")
    for k in range(3):
        div12(e, 2, 3, k)
        e(f"v_bfe_u32 v4, v2, 3, 1\nv_lshlrev_b32 v4, 1, v4\nv_xor_b32 v3, v3, v4\nv_mul_u32_u24 v2, 3072, v2\nv_lshl_add_u32 v{14+k}, v3, 4, v2")
    e("""s_lshr_b32 s32, s28, 1
s_and_b32 s33, s28, 1
s_mul_i32 s33, s33, 10
s_add_u32 s32, s32, s33
s_mul_i32 s41, s32, 6144
s_lshl_b32 s33, s30, 1
s_add_u32 s42, s32, s33
s_mul_i32 s40, s29, 192""")
    D = []
    for c in range(5):
        for hf in range(2):
            for k in range(3):
                d = []
                if hf == 0 and k == 0: d += [f"s_add_u32 s43, s42, {2*c}", "s_cmp_ge_u32 s43, 20", "s_cselect_b32 s44, 20, 0", "s_sub_u32 s43, s43, s44", "s_mul_i32 s43, s43, 98304", "s_add_u32 s43, s43, s40"]
                if hf == 1 and k == 0: d += ["s_add_u32 s43, s43, 49152"]
                d = [f"s_add_u32 m0, s41, {c*12288 + (3*hf+k)*1024}"] + d + [f"buffer_load_dwordx4 v{14+k}, s[24:27], s43 offen {ld} lds" + (f" #c{c}" if hf == 1 and k == 2 else "")]
                D.append(d)
    U_setup, U_dma, U_addr, U_frag = w2f_parts(ld, 2 if O['uearly'] else ACC, O['uearly'])
    if not O["lean_w"]: e(GH)
    e("s_waitcnt lgkmcnt(0)")
    st(1)
    srd(e, 24, 52, 1966080)
    nf = 0 if O["w_late"] else 6
    for d in D[:nf]: e(d)
    if O["whead"]:
        head = a.items[pos_w0+1:]; del a.items[pos_w0:]
        a.items[pos_split-1] = ("i", "s_cbranch_scc0 kf_x")
        a.items[pos_split:pos_split] = head + [("i", "s_branch kf_wrest"), ("l", "kf_x")]
        a.label("kf_wrest")
    if O["lean_w"]: e(GH)
    srd(e, 20, 14, WSEND + (0x2000000 if O.get('dummy') else 0))
    warm_pages(248)
    BQ = D[nf:O["w_n"]]
    if O["uearly"]:
        e("s_sub_u32 s51, s2, 160"); e(U_setup); e(U_addr)
        BQ = D[nf:O["u_pos"]] + U_dma + D[O["u_pos"]:12]
    e(sprinkle(GL, BQ, O["w_gap"], first=O["w_late"]))
    W0 = BQ
    WA = [f"s_mul_i32 s12, s29, {6*20*1024}\ns_lshl_b32 s13, s30, 2\ns_add_u32 s13, s13, s28", f"s_lshl_b32 s13, s13, 10\ns_add_u32 s12, s12, s13\ns_add_u32 s12, s12, {W1F + O.get('w1shift', 0)}"]
    BQ = D[O["w_n"]:24] + [["s_sub_u32 s51, s2, 160"] + U_setup] + D[24:] + U_dma
    if O["uearly"]: BQ = D[12:] + [WA]
    st(2)
    if not O["w_late"]:
        for d in W0: e(d)
        W0 = []
    phi_fix(e, "kw")
    for d in W0: e(d)
    e(f"""v_lshrrev_b32 v2, 4, v{vL}
v_bfe_u32 v3, v{vL}, 2, 2
v_lshl_add_u32 v3, v2, 3, v3
v_mul_u32_u24 v3, 192, v3
v_and_b32 v4, 3, v{vL}
v_lshl_add_u32 v3, v4, 3, v3
v_and_b32 v2, 1, v2
v_lshlrev_b32 v2, 5, v2
v_add_u32 v10, v3, v2
v_sub_u32 v11, v3, v2
v_add_u32 v11, 32, v11
v_add_u32 v12, 61440, v10
v_add_u32 v13, 61440, v11""")
    st(3)
    def wreads(s_, buf):
        return [f"ds_read_b64_tr_b16 v[{FR+24*buf+4*ft+2*h}:{FR+24*buf+4*ft+2*h+1}], v{10 + (ft % 2) + (2 if s_ >= 10 else 0)} offset:{(s_%10)*6144 + h*768 + 64*(ft//2)}" for ft in range(6) for h in range(2)]
    wacc = lambda s_, ft, p: ACC + 48*s_ + 8*ft + 4*p
    def wmf(s_, buf, first):
        return [f"{MF} {rng(wacc(s_//10,ft,p))}, {rng(P(s_%10) if p == 0 else Q(s_%10))}, {rng(FR+24*buf+4*ft)}, {'0' if first else rng(wacc(s_//10,ft,p))}" for ft in range(6) for p in range(2)]
    def wextra(n):
        L = []
        for _ in range(3):
            if BQ: L += BQ.pop(0)
        if n == 12: assert not BQ; L += nonce_load(18)
        return L
    def wepi(ft, packed):
        o = (2 + 4*(ft % 2)) if not packed else FR + 4*ft; L = []
        for p in range(2):
            for rp in range(2):
                d = wacc(0,ft,p) + 2*rp; s_ = wacc(1,ft,p) + 2*rp
                if packed: L.append(f"v_pk_fma_f32 v[{d}:{d+1}], v[{s_}:{s_+1}], s[46:47], v[{d}:{d+1}]")
                else: L += [f"v_fma_f32 v{d+k}, v{s_+k}, s46, v{d+k}" for k in range(2)]
                L.append(f"v_cvt_pk_bf16_f32 v{o+2*p+rp}, v{d}, v{d+1}")
        return L + [f"buffer_store_dwordx4 {rng(o)}, v17, s[20:23], s12 offen sc1 #w1f", "s_add_u32 s12, s12, 20480"]
    BQ += [WA + [f"v_lshlrev_b32 v17, 4, v{vL}"]]
    kloop(e, wreads, wmf, wextra, st, 6)
    st(4)
    for ft in range(6): e(wepi(ft, True))
    e(gemm_role); e(PHS)
    e("@vm nonce"); nonce_get(e, "kv", 18)
    F = wave_flag(FL1, 14)
    e(F[:-1]); e("@drain"); e(F[-1:]); st(37)
    e("s_barrier")
    e("s_branch kf_np2")
    e("kf_spare:")
    e(f"""s_and_b32 s32, s2, 7
s_lshl_b32 s33, s32, 8
s_bfe_u32 s34, s2, 0x10003
s_lshl_b32 s35, s34, 7
s_add_u32 s33, s33, s35
s_lshl_b32 s35, s28, 5
s_add_u32 s33, s33, s35
s_mul_i32 s33, s33, 1280
v_lshrrev_b32 v2, 4, v{vL}
v_mul_u32_u24 v3, 1280, v2
v_and_b32 v4, 15, v{vL}
v_lshl_add_u32 v10, v4, 4, v3
s_lshl_b32 s34, s34, 2
s_add_u32 s34, s34, s28
s_lshl_b32 s36, s32, 9
s_lshl_b32 s35, s34, 4
s_add_u32 s36, s36, s35
s_add_u32 s36, s36, {RB}
s_lshl_b32 s37, s32, 10
s_lshl_b32 s35, s34, 5
s_add_u32 s37, s37, s35
s_add_u32 s37, s37, {MU}
v_lshlrev_b32 v11, 2, v2
s_mov_b32 s38, 0x3f803f80
s_waitcnt lgkmcnt(0)""")
    st(1)
    srd(e, 16, 4, 2621440); srd(e, 20, 14, WSEND + (0x2000000 if O.get('dummy') else 0))
    SQ = []
    for i in range(8):
        for v in range(5): SQ.append((["s_add_u32 s33, s33, 5120"] if i and v == 0 else []) + [f"buffer_load_dwordx4 {rng(84+20*i+4*v)}, v10, s[16:19], s33 offen offset:{256*v} {ld} #s{i}"])
    warm_pages(248)
    for n in SQ[:12]: e(n)
    del SQ[:12]
    e(nonce_load(18))
    if O["beta"]:
        e(U_setup[0].replace("s_cmp_lt_u32 s51, 64\ns_cselect_b32 s6, 1966080, 0", "s_mov_b32 s6, 1966080")); e(U_setup[1:22])
        e(f"""s_sub_u32 s44, s2, 240
s_lshl_b32 s44, s44, 3
s_lshl_b32 s45, s28, 1
s_add_u32 s44, s44, s45
s_lshr_b32 s45, s44, 4
s_bfe_u32 s46, s44, 0x20002
s_and_b32 s47, s44, 3
s_mul_i32 s48, s46, 384
s_mul_i32 s49, s47, 48
s_add_u32 s48, s48, s49
s_mul_i32 s48, s48, 1280
s_mul_i32 s49, s45, 160
s_and_b32 s51, s49, 63
s_sub_u32 s49, s49, s51
s_add_u32 s48, s48, s49
s_mul_i32 s49, s28, 12288
s_mul_i32 s45, s45, 48
s_mul_i32 s46, s46, 12
s_add_u32 s45, s45, s46
s_add_u32 s45, s45, s47
s_mul_i32 s45, s45, 5120
s_add_u32 s45, s45, {W2F}
s_add_u32 s51, s51, s49
v_lshrrev_b32 v2, 2, v{vL}
v_mul_u32_u24 v2, 192, v2
v_add_u32 v2, s51, v2
v_and_b32 v3, 3, v{vL}
v_lshl_add_u32 v14, v3, 4, v2
v_lshl_add_u32 v15, v3, 3, v2
v_lshlrev_b32 v16, 4, v{vL}
v_add_u32 v17, 4096, v16""")
        for g_, row in enumerate((0, 16, 48, 64)):
            for k in range(3): SQ.insert(3*g_ + k, [f"s_add_u32 m0, s49, {(3*g_+k)*1024}"] + ([f"s_add_u32 s46, s48, {row*1280}"] if k == 0 else []) + [f"buffer_load_dwordx4 v{244+k}, s[4:7], s46 offen {ld} lds #w2e"])
        for n in SQ[:12]: e(n)
        del SQ[:12]
    e("s_mov_b32 s42, 0x00010001\ns_mov_b32 s43, 0x00010001")
    for i in range(8):
        e(f"@vm s{i}")
        X = []
        for k in range(20):
            c0 = "0" if k < 2 else None; r = 84 + 20*i + k
            X += [f"v_dot2_f32_bf16 v{4+k%2}, v{r}, v{r}, {c0 or 'v%d' % (4+k%2)}", f"v_dot2_f32_bf16 v{6+k%2}, v{r}, s38, {c0 or 'v%d' % (6+k%2)}"]
        e(sprinkle(X, SQ, 30, first=0, limit=5))
        e("v_add_f32 v4, v4, v5\nv_add_f32 v5, v6, v7")
        for sh in (8, 4, 2, 1):
            e(f"v_add_f32_dpp v4, v4, v4 row_ror:{sh} row_mask:0xf bank_mask:0xf\nv_add_f32_dpp v5, v5, v5 row_ror:{sh} row_mask:0xf bank_mask:0xf")
        if O["beta"] and i in (2, 3):
            t_ = i - 2
            e("@vm w2e")
            for dt in range(5):
                for h in range(2): e(f"ds_read_b64_tr_b16 v[{20+4*dt+2*h}:{21+4*dt+2*h}], " + (f"v14 offset:{t_*6144 + h*3072 + 64*(dt//2) + 8*(dt%2)}" if dt < 4 else f"v15 offset:{t_*6144 + h*3072 + 128}"))
            for dt in range(5): e(f"s_waitcnt lgkmcnt({8 - 2*dt})\nbuffer_store_dwordx4 {rng(20+4*dt)}, " + (f"v16, s[20:23], s45 offen offset:{dt*1024} sc1" if dt < 4 else "v17, s[20:23], s45 offen sc1"))
            e("s_add_u32 s45, s45, 5120")
        if i == 0: e("v_mov_b32 v8, v4\nv_mov_b32 v9, v5")
        else: e("s_lshl_b64 s[42:43], s[42:43], 1\nv_cndmask_b32 v8, v8, v4, s[42:43]\nv_cndmask_b32 v9, v9, v5, s[42:43]")
    assert not SQ
    e(f"""v_mul_f32 v9, {f2h(1/640)}, v9
v_mul_f32 v4, {f2h(1/640)}, v8
v_fma_f32 v4, -v9, v9, v4
v_max_f32 v4, 0, v4
v_add_f32 v4, {f2h(EPS)}, v4
v_rsq_f32 v4, v4
v_bfe_u32 v5, v{vL}, 1, 2
v_and_b32 v6, 1, v{vL}
v_mul_f32 v8, {f2h(2.0**-11)}, v4
v_lshl_add_u32 v12, v5, 7, v11
v_lshl_add_u32 v12, v6, 12, v12
v_lshl_add_u32 v13, v5, 8, v11
v_lshl_add_u32 v13, v6, 4, v13
s_mov_b32 s42, 0x00ff00ff
s_mov_b32 s43, 0x00ff00ff
s_mov_b64 exec, s[42:43]
buffer_store_dword v8, v12, s[20:23], s36 offen sc1
buffer_store_dword v9, v13, s[20:23], s37 offen sc1
s_mov_b64 exec, -1""")
    nonce_get(e, "kc", 18)
    e(gemm_role); e(PHS); e(PHK)
    for ki in range(O["wpre"]): e(phx(ki))
    e("@drain\ns_barrier"); flag_put(e, "ks1", FL1, sh=WS)
    e("kf_np2:")
    st(6)
    def unit_late():
        if O["uearly"]: return
        e("s_cmp_ge_u32 s2, 224\ns_cbranch_scc1 kn_nounit")
        e(U_addr)
        if O["beta"]: e("s_bitcmp1_b32 s2, 3\ns_cselect_b32 s13, 0, 0x40000000\nv_add_u32 v184, s13, v10\nv_add_u32 v186, s13, v186")
        e([x for j in range(7) for x in U_frag[j][0]])
        for j in range(8):
            e(f"s_waitcnt lgkmcnt({min(12, 14 - 2*j)})"); e(U_frag[j][1].replace("v10, s[20:23]", "v184, s[20:23]") if O["beta"] else U_frag[j][1])
            if j == 0: e(U_frag[7][0])
        e("kn_nounit:")
    e(wflag); e(w1set)
    if O["opre_kp"] == -1: e(outpre(140, O["opre_fl"]))
    if O["biasa"]: e(biasld)
    if O["unit_at"] < 0: unit_late()
    if O["np_early"]:
        EQ = []
        if O["beta"]:
            e(w2base); e(eflag); e("v_mov_b32 v190, s32"); flag_poll(e, "kn_e", 190, 192, back=2); EQ = list(W2E)
        e(sprinkle(PHK + [x for ki in range(O["wpre"], O["npre"]) for x in phx(ki)], EQ, 75))
        for n in EQ: e(n)
    flag_poll(e, "kn_w", 18, 200, back=2)
    st(8)
    third = """s_lshr_b32 s32, s2, 5
s_max_u32 s32, s32, 5
s_sub_u32 s32, s32, 5
s_lshl_b32 s32, s32, 2
s_add_u32 s32, s32, s28
s_mul_i32 s32, s32, 20480
s_mul_i32 s33, s30, 245760
s_add_u32 s32, s32, s33
s_add_u32 s33, s32, {0}
s_add_u32 s34, s33, 8192
s_add_u32 s35, s33, 12288"""
    touch = [f"buffer_load_dword v{200+k}, v203, s[20:23], s{33+k} offen sc1" for k in range(3)]
    e(f"v_lshlrev_b32 v203, 7, v{vL}")
    if O["touch"]: e(third.format(W1F)); e(touch)
    elif O["share1"]: e(share(W1F, 200))
    if O["vtouch"]:
        e(f"s_cmp_lt_u32 s2, {O['vtouch']}\ns_cbranch_scc1 kn_novt")
        for i in range(3): a(f"s_add_u32 s33, s44, {i*20480 + 12288}\nbuffer_load_dword v{200+i}, v203, s[20:23], s33 offen sc1")
        e("kn_novt:")
    X = [] if O["np_early"] else PHK + [x for ki in range(O["wpre"], O["npre"]) for x in phx(ki)]
    NQ = list(W1L[:60 - len(W1Q_after)])
    cut = int(len(X) * min(1, max(0, O["unit_at"])))
    e(sprinkle(X[:cut], NQ, O["np_gap"], first=O["np_first"]))
    st(70)
    if 0 <= O["unit_at"] <= 1: unit_late()
    st(71)
    e(sprinkle(X[cut:], NQ, O["np_gap"]))
    st(72)
    for n in NQ: e(n)
    if O["unit_at"] > 1: unit_late()
    st(73)
    e(tileflag(206))
    e(f"s_sub_u32 s32, s2, 96\ns_lshl_b32 s32, s32, 7\ns_add_u32 s32, s32, {FLH}\nv_mov_b32 v207, s32\nv_cmp_gt_u32 vcc, 32, v{vL}\ns_nop 0\nv_cndmask_b32 v206, v207, v206, vcc")
    e("buffer_load_dwordx2 v[204:205], v206, s[20:23], 0 offen sc1\n@drain")
    if not O["uearly"]: e("s_barrier"); flag_put(e, "kn2", FL2, 208)
    e("v_cmp_ne_u64 vcc, s[10:11], v[204:205]\ns_cbranch_vccz kn_u_ok")
    flag_poll(e, "kn_u", 206, 204, back=2)
    e("kn_u_ok:")
    st(74)
    st(9)
    e.vm = vm_join
    moved = []
    if O["relay"]:
        moved = a.items[pos_np0:] + [("i", "s_branch kf_join")]; del a.items[pos_np0-1:]
    e("kf_join:")
    if W1Q: e(f"s_add_u32 s45, s44, {'s%d' % (97 + (60 - len(W1Q))//12) if O['rot1'] else (60 - len(W1Q))//12*4096}")
    PHQ = (phk(120) if O["npre"] < 5 else []) + [x for ki in range(O["npre"], 5) for x in phx(ki, PT=120)]
    e(f"""s_mul_i32 s33, s29, 81920
s_lshl_b32 s39, s28, 12
s_add_u32 s33, s33, s39
v_bfe_u32 v2, v{vL}, 1, 2
v_bfe_u32 v12, v{vL}, 4, 2
v_xor_b32 v2, v2, v12
v_lshlrev_b32 v2, 5, v2
v_and_b32 v13, 1, v{vL}
v_lshl_or_b32 v2, v13, 4, v2
v_lshrrev_b32 v13, 3, v{vL}
v_lshl_add_u32 v13, v13, 7, v2
v_add_u32 v18, s39, v10""".replace("v12", "v204"))
    if O["rot1"]:
        pass
    for c in range(1, 5): e(f"s_add_u32 s{34+c}, s33, {c*16384}") if not O["rot1"] else e(f"s_lshl_b32 s32, s{97+c}, 2\ns_add_u32 s{34+c}, s33, s32")
    if O["rot1"]: e("s_lshl_b32 s32, s97, 2\ns_add_u32 s33, s33, s32\nv_add_u32 v18, s32, v18\ns_mul_i32 s9, s29, 81920")
    TG = SG
    m0of = lambda c: f"s_sub_u32 m0, s{33 if c == 0 else 34+c}, s9" if O["rot1"] else f"s_add_u32 m0, s39, {c*16384}"
    hload = lambda c: [f"{m0of(c)}\nbuffer_load_dwordx4 v13, s[20:23], s{33 if c == 0 else 34+c} offen offset:{q*1024} sc1 lds" + (f" #h{c}" if q == 3 else "") for q in range(4)]
    htag = lambda c: [f"ds_read_b32 v{TG+q}, v18 offset:{q*1024}" if O["rot1"] else f"ds_read_b32 v{TG+q}, v{18 if c < 4 else 19} offset:{(c%4)*16384 + q*1024}" for q in range(4)]
    hcheck = lambda c: [f"v_bitop3_b32 v2, v{TG}, v{TG+1}, v{TG+2} bitop3:0x80", f"v_bitop3_b32 v2, v2, v{TG+3}, 1 bitop3:0x80", "v_cmp_eq_u32 vcc, 0, v2"]
    hretry = lambda c: retry_block(f"h{c}", hload(c), htag(c) + ["s_waitcnt lgkmcnt(0)"] + hcheck(c))
    st(10)
    e(hload(0)); e(hload(1)); e(hload(2))
    e(f"""v_add_u32 v19, 0x10000, v18
v_lshrrev_b32 v2, 2, v{vL}
v_bfe_u32 v204, v2, 1, 2
v_and_b32 v205, 3, v{vL}
v_lshlrev_b32 v205, 3, v205
v_lshl_add_u32 v205, v2, 7, v205""")
    if O["rot1"]: assert O["half"]; e("s_lshl_b32 s32, s97, 2\nv_add_u32 v19, s32, v205")
    if O["half"]:
        assert O["npre"] <= 4
        vb = 19 if O["rot1"] else 205
        for u in range(4): e(f"v_xor_b32 v2, {u}, v204\nv_lshl_add_u32 v{14+u}, v2, 5, v{vb}")
        e(f"v_xor_b32 v2, s28, v204\nv_lshl_add_u32 v112, v2, 5, v{vb}\ns_mov_b32 s40, s28")
        for u in range(1, 4): e(f"s_cmp_ge_u32 {u-1}, s28\ns_addc_u32 s{40+u}, {u-1}, 0")
        e("s_mul_i32 s32, s28, 20480\nv_add_u32 v205, s32, v205")
        for u in range(4): e(f"v_xor_b32 v2, s{40+u}, v204\nv_lshl_add_u32 v{113+u}, v2, 5, v205")
    else:
        for u in range(4): e(f"s_add_u32 s{40+u}, s28, {u}\ns_and_b32 s{40+u}, s{40+u}, 3\nv_xor_b32 v2, s{40+u}, v204\nv_lshl_add_u32 v{14+u}, v2, 5, v205")
    e(f"s_mul_i32 s12, s30, 48\ns_mul_i32 s32, s28, 12\ns_add_u32 s12, s12, s32\ns_mul_i32 s12, s12, 5120\ns_add_u32 s12, s12, {W2F}")
    e("@vm h0"); e(htag(0)); e("s_waitcnt lgkmcnt(0)"); e(hcheck(0)); e(hretry(0))
    st(11)
    e("s_barrier")
    bf = lambda b, u: (BF + 16*b if b < 2 else SG + 4) + 4*u
    breads = lambda kp, b: [f"ds_read_b64_tr_b16 v[{bf(b,u)+2*h}:{bf(b,u)+2*h+1}], v{14+u} offset:{(kp % (4 if O['rot1'] else 16))*4096 + h*2048}" for u in range(4) for h in range(2)]
    NR = 8
    gop = lambda b: bf(b, 0)
    if O["half"]:
        NR = 10; gop = lambda b: 100 + 4*b; breads0 = breads
        breads = lambda kp, b: [f"ds_read_b64_tr_b16 v[{gop(b)+2*h}:{gop(b)+2*h+1}], v112 offset:{(kp % (4 if O['rot1'] else 16))*4096 + h*2048}" for h in range(2)] + breads0(kp, b)
    ac = lambda i, u: AC + 16*i + 4*u
    W2Q = []
    for n in range(60):
        m = n % 4
        pre = [f"s_add_u32 s13, s12, {n*1024}"] if m == 0 else []
        if O["rot2"]:
            m = n % 15
            pre = [f"s_add_u32 s13, s96, {n//15}\ns_and_b32 s13, s13, 3\ns_mul_i32 s13, s13, 15360\ns_add_u32 s13, s13, s12"] if m == 0 else (["s_add_u32 s13, s13, 4096"] if m % 4 == 0 else [])
        W2Q.append(pre + [f"buffer_load_dwordx4 {arng(w2r(n))}, v10, s[20:23], s13 offen offset:{(m%4)*1024} sc1"])
    if O["beta"]: del W2Q[:20]
    if O.get('now2'): W2Q.clear(); W2Q += []
    B1, B1R, RT, FT = SG + 20, SG + 32, SG, SG + 20
    e(breads(0, 0)); e(breads(1, 1)[:5]); e("s_waitcnt lgkmcnt(5)"); e(breads(1, 1)[5:])
    sc1 = Sched(O["g1_vgap"], O["bgfirst"])
    c1 = -2*math.log2(math.e)*math.sqrt(2/math.pi); c2 = c1*0.044715
    gram = lambda k: f"{MF} {rng(GR)}, {rng(gop(k%3))}, {rng(gop(k%3))}, {'0' if k == 0 else rng(GR)}"
    for kp in range(20):
        b = kp % 3; c = kp // 4; ph_ = kp % 4
        M = []
        if kp <= 16: M.append(gram(kp))
        for u in range(4):
            for i in range(3): M.append(f"{MF} {rng(ac(i,u))}, {arng(w1r(kp,i))}, {rng(bf(b,u))}, {'0' if kp == 0 else rng(ac(i,u))}")
        young = NR + 4 if (ph_ == 1 and c < 4) else {18: NR - 2, 19: 0}.get(kp, NR)
        e(f"@vm w1_{kp}\ns_waitcnt lgkmcnt({young})")
        if kp == 8: st(20)
        st(50 + kp)
        if kp == 16: st(21)
        lds, other = [], []
        if kp == 17:
            M = [gram(17)] + M[:8] + ["s_waitcnt lgkmcnt(8)", gram(18)] + M[8:]
        if kp == 18: M = [gram(19)] + M
        if kp < 18:
            if ph_ == 2 and c < 4:
                mv = [f"v_add_u32 v{r}, 0x10000, v{r}" for r in [14, 15, 16, 17] + ([112] if O["half"] else [])] if kp == 14 else []
                if O["rot1"]: mv = [f"s_sub_u32 s51, s{98+c}, s{97+c}\ns_lshl_b32 s51, s51, 2"] + [f"v_add_u32 v{r}, s51, v{r}" for r in (14, 15, 16, 17, 112)]
                e(sc1(M[:2], [], mv)); M = M[2:]; e("s_barrier")
            lds += breads(kp+2, (kp+2) % 3)
        if kp == 0: other += hload(3)
        if kp == 2: other += hload(4)
        if ph_ == 0 and c < 4:
            adv = f"s_sub_u32 s51, s{98+c}, s{97+c}\ns_lshl_b32 s51, s51, 2\nv_add_u32 v18, s51, v18\n" if O["rot1"] else ""
            lds += [adv + f"@vm h{c+1}\n" + htag(c+1)[0]] + htag(c+1)[1:]
        if ph_ == 1 and c < 4:
            e(sc1(M[:5], lds[:5], [])); M = M[5:]; lds = lds[5:]
            other[:0] = ["s_waitcnt lgkmcnt(5)\n" + hcheck(c+1)[0]] + hcheck(c+1)[1:] + hretry(c+1)
        if kp == O["w2_start"] - 2:
            other += [f"s_lshl_b32 s32, s30, 7\ns_add_u32 s32, s32, {(FL1 if O['uearly'] else FL2) + 160*128}", f"v_and_b32 v{FT}, 7, v{vL}", f"v_lshl_add_u32 v{FT}, v{FT}, 10, s32",
                      f"buffer_load_dwordx2 v[{FT+2}:{FT+3}], v{FT}, s[20:23], 0 offen sc1 #f2"]
        if kp == O["w2_start"]:
            chk = [f"v_cmp_ne_u64 vcc, s[10:11], v[{FT+2}:{FT+3}]"]
            other += ["@vm f2"] + chk + retry_block("f2", [f"buffer_load_dwordx2 v[{FT+2}:{FT+3}], v{FT}, s[20:23], 0 offen sc1"], chk)
            if O["share2"]: other += [x.replace("s38", "s46") for x in share(W2F, FT)]
        if kp == O["gpre_kp"]:
            other += [f"s_lshl_b32 s32, s29, 3\ns_add_u32 s32, s32, s30\ns_mul_i32 s32, s32, 24576\ns_mul_i32 s34, s28, 6144\ns_add_u32 s32, s32, s34\ns_add_u32 s46, s32, {G}\ns_add_u32 s47, s46, 4096"]
        if O["gpre_kp"] <= kp < O["gpre_kp"] + 6:
            i = kp - O["gpre_kp"]
            other += [f"buffer_store_dwordx4 {rng(TG)}, v10, s[20:23], s{46 + i//4} offen offset:{(i%4)*1024} sc1"]
        if kp == 5: other += blank(FT + 4, "3")
        if kp == O["opre_kp"]: other += outpre(FT + 4, O["opre_fl"])
        if kp == 11 and O["biasa"]: other += [f"v_accvgpr_read_b32 v{B1R+k}, a{240+k}" for k in range(16)]
        if kp == 11 and not O["biasa"]:
            other += ["s_mul_i32 s32, s30, 384\ns_mul_i32 s34, s28, 96\ns_add_u32 s32, s32, s34", f"v_lshrrev_b32 v2, 4, v{vL}", f"v_lshl_add_u32 v{B1R+4}, v2, 3, s32"]
            other += [f"global_load_dwordx2 v[{B1R+2*i}:{B1R+1+2*i}], v{B1R+4}, s[54:55] offset:{32*i} #b1x" for i in range(3)]
        if kp == 12 and not O["biasa"]:
            other += ["s_mul_i32 s32, s30, 160", f"v_lshrrev_b32 v2, 4, v{vL}", "v_lshl_add_u32 v246, v2, 4, s32", "v_lshl_add_u32 v250, v2, 3, s32",
                      "global_load_dwordx4 v[242:245], v246, s[58:59]", "global_load_dwordx4 v[246:249], v246, s[58:59] offset:64", "global_load_dwordx2 v[250:251], v250, s[58:59] offset:128"]
        if kp == 13:
            other += [f"s_lshl_b32 s32, s29, 8\ns_lshl_b32 s34, s28, 6\ns_add_u32 s32, s32, s34\ns_add_u32 s32, s32, {MU}",
                      f"v_and_b32 v13, 15, v{vL}", "v_lshlrev_b32 v13, 2, v13"]
        if kp == 15: other += ["buffer_load_dword v13, v13, s[20:23], s32 offen sc1 #b1"]
        if kp == 16:
            other += [f"v_and_b32 v2, 3, v{vL}", "v_cmp_eq_u32 vcc, 1, v2", "v_cmp_eq_u32 s[34:35], 2, v2", "v_cmp_eq_u32 s[36:37], 3, v2",
                      f"v_bfe_u32 v18, v{vL}, 2, 2", f"v_lshrrev_b32 v19, 4, v{vL}", "v_cmp_eq_u32 s[38:39], v18, v19", f"v_and_b32 v18, 15, v{vL}", "v_lshlrev_b32 v18, 2, v18",
                      f"s_lshl_b32 s32, s28, 6\ns_add_u32 s32, s32, {RX}", "v_add_u32 v19, s32, v18", f"v_add_u32 v18, {RX}, v18"]
        if kp == 14:
            other += [f"s_lshl_b32 s8, s29, 3", "s_add_u32 s8, s8, s30", "s_mul_i32 s8, s8, 24576", f"s_add_u32 s8, s8, {G + O.get('gshift', 0)}",
                      "s_lshr_b32 s3, s28, 1", "s_add_u32 s3, s3, 4", "s_lshl_b32 s3, s3, 10", "s_add_u32 s3, s3, s8", "s_and_b32 s4, s28, 1", "s_lshl_b32 s4, s4, 9", "s_add_u32 s3, s3, s4",
                      "s_lshl_b32 s4, s28, 10", "s_add_u32 s8, s8, s4"] + [(f"s_movk_i32 s{4+u}, {6144*u}" if O["half"] else f"s_mul_i32 s{4+u}, s{40+u}, 6144") for u in range(4)]
        if kp == 15:
            assert not W1Q
            other += [f"v_and_b32 v2, 31, v{vL}", "v_lshlrev_b32 v2, 4, v2", f"v_cmp_gt_u32 vcc, 32, v{vL}",
                      f"v_mov_b32 v{RT}, s4", f"v_mov_b32 v{RT+1}, s5", f"v_cndmask_b32 v{RT}, v{RT+1}, v{RT}, vcc", f"v_add_u32 v11, v2, v{RT}",
                      f"v_mov_b32 v{RT}, s6", f"v_mov_b32 v{RT+1}, s7", f"v_cndmask_b32 v{RT}, v{RT+1}, v{RT}, vcc", f"v_add_u32 v12, v2, v{RT}"] + [f"s_add_u32 s{4+u}, s{4+u}, s8" for u in range(4)]
        if kp == 17:
            other += ["@vm b1x"]
            for i in range(3):
                for q in range(2): other += [f"v_and_b32 v{B1+4*i+2*q+1}, 0xffff0000, v{B1R+2*i+q}", f"v_lshlrev_b32 v{B1+4*i+2*q}, 16, v{B1R+2*i+q}"]
        if kp == 18: other += [f"s_mov_b32 s46, {f2h(c2)}", f"s_mov_b32 s47, {f2h(c2)}", "s_nop 0", "s_nop 0", "s_nop 0", "s_nop 0"]
        if kp == 18:
            x5, x6, x7 = RT, RT+1, RT+2
            other += [f"v_cndmask_b32 v{x5}, v{GR}, v{GR+1}, vcc", f"v_cndmask_b32 v{x5}, v{x5}, v{GR+2}, s[34:35]", f"v_cndmask_b32 v{x5}, v{x5}, v{GR+3}, s[36:37]",
                      f"v_mul_f32 v{x5}, {f2h(2/640**2)}, v{x5}", f"v_add_f32 v{x6}, {f2h(EPS)}, v{x5}", f"v_rcp_f32 v{x7}, v{x6}", f"v_rsq_f32 v{x6}, v{x6}", f"v_fmaak_f32 v{x5}, v{x5}, v{x7}, {f2h(EPS)}",
                      f"v_rsq_f32 v{x5}, v{x5}", f"v_mul_f32 v{x6}, {f2h(2/640)}, v{x6}", f"v_mul_f32 v{x5}, v{x5}, v{x6}", f"s_mov_b64 exec, s[38:39]\nds_write_b32 v19, v{x5}\ns_mov_b64 exec, -1"]
        if kp == 19:
            assert not W1Q
            e(M[:2]); M = M[2:]; e("s_barrier")
            for u in range(4): other += ([f"ds_read_b32 v{GR+u}, v18 offset:{64*u}"] if O["half"] else [f"s_lshl_b32 s32, s{40+u}, 6\nv_add_u32 v19, s32, v18", f"ds_read_b32 v{GR+u}, v19"])
            other += [f"v_mov_b32 v18, {f2h(c1)}", f"v_mov_b32 v19, {f2h(c1)}"]
        nb = O["g1_bg"] if kp >= O["g1_start"] else 0
        n1 = sum(1 for j in range(60 - len(W1Q), 60) if w1ok(j//3) <= kp)
        n2 = sum(1 for j in range(60 - len(W2Q), 60) if w2ok(j) <= kp) if kp > O["w2_start"] + O["w2_lag"] else 0
        if n1: bgq = W1Q; nb = min(nb, n1)
        else: bgq = W2Q; nb = min(nb, O["g1_bg2"], n2) if not (W1Q and not O["beta"]) else 0
        e(sc1(M, lds, other, bgq, nb, low=None))
    assert not W1Q
    st(22)
    e("s_waitcnt lgkmcnt(0)")
    OUT = BF
    def gelu4(i, u, o, T):
        L = []; x = ac(i, u); p2 = lambda r: f"v[{r}:{r+1}]"
        for q in range(2): L.append(f"v_pk_fma_f32 {p2(x+2*q)}, {p2(x+2*q)}, {p2(GR+(u&2))}, {p2(B1+4*i+2*q)} op_sel:[0,{u&1},0] op_sel_hi:[1,{u&1},1]")
        for q in range(2): L.append(f"v_pk_mul_f32 {p2(T+2*q)}, {p2(x+2*q)}, {p2(x+2*q)}")
        for q in range(2): L.append(f"v_pk_fma_f32 {p2(T+2*q)}, {p2(T+2*q)}, s[46:47], v[18:19]")
        for q in range(2): L.append(f"v_pk_mul_f32 {p2(T+2*q)}, {p2(T+2*q)}, {p2(x+2*q)}")
        for r in range(4): L.append(f"v_exp_f32 v{T+r}, v{T+r}")
        for q in range(2): L.append(f"v_pk_add_f32 {p2(T+2*q)}, {p2(T+2*q)}, 1.0 op_sel_hi:[1,0]")
        for r in range(4): L.append(f"v_rcp_f32 v{T+r}, v{T+r}")
        for q in range(2): L.append(f"v_pk_mul_f32 {p2(T+2*q)}, {p2(T+2*q)}, {p2(x+2*q)}")
        for q in range(2): L.append(f"v_cvt_pk_bf16_f32 v{o+q}, v{T+2*q}, v{T+2*q+1}")
        return L
    L = []
    for u in range(4):
        o = OUT + 4*u
        L += gelu4(0, u, o, SG) + gelu4(1, u, o+2, SG+4) + [f"buffer_store_dwordx4 {rng(o)}, v10, s[20:23], s{4+u} offen sc1"]
        if u % 2 == 1:
            o = OUT + 16 + 4*(u//2)
            L += gelu4(2, u-1, o, SG) + gelu4(2, u, o+2, SG+4)
            L += [f"v_permlane32_swap_b32 v{o}, v{o+2}", f"v_permlane32_swap_b32 v{o+1}, v{o+3}", f"buffer_store_dwordx4 {rng(o)}, v{11+u//2}, s[20:23], s3 offen sc1 #{'gst' if u == 3 else 'gsa'}"]
    fladdr = lambda r, base: f"s_lshl_b32 s{r}, s29, 3\ns_add_u32 s{r}, s{r}, s30\ns_lshl_b32 s{r}, s{r}, {WS-SS}\ns_add_u32 s{r}, s{r}, s28\ns_lshl_b32 s{r}, s{r}, {SS}\ns_add_u32 s{r}, s{r}, {base}"
    if O["half"]:
        k = int(len(L) * O["fa_put"])
        L[k:k] = [fladdr(35, FL0), "v_mov_b32 v200, s10", "v_mov_b32 v201, s11", "@vm gsa", "buffer_store_dwordx2 v[200:201], off, s[20:23], s35 sc1"]
    cut = int(len(L) * O["gelu_cut"])
    e(sprinkle(L[:cut], W2Q, O["gelu_gap"])); e(L[cut:])
    st(23)
    A2, BF2, MB, GB, PS = 120, 204, 236, 20, 204
    a2 = lambda u, dt: A2 + 20*u + 4*dt
    bf2 = lambda b, u: BF2 + 16*b + 4*u
    gb = lambda b, ks: GB + 48*b + 4*ks
    if O["half"]:
        for u in range(4): e(f"v_mov_b32 v{14+u}, v{113+u}")
    else:
        e("s_mul_i32 s32, s28, 20480\ns_sub_u32 s32, s32, 0x10000")
        for u in range(4): e(f"v_add_u32 v{14+u}, s32, v{14+u}")
    br2 = lambda ki, b: [f"ds_read_b64_tr_b16 v[{bf2(b,u)+2*h}:{bf2(b,u)+2*h+1}], v{14+u} offset:{ki*4096 + h*2048}" for u in range(4) for h in range(2)]
    print("phi left for the third window:", len(PHQ), " W2 loads left:", len(W2Q))
    gflag = ["@vm gst", f"s_lshl_b32 s35, s29, 3\ns_add_u32 s35, s35, s30\ns_lshl_b32 s35, s35, {WS-SS}\ns_add_u32 s35, s35, s28\ns_lshl_b32 s35, s35, {SS}\ns_add_u32 s35, s35, {FL3}",
             "v_mov_b32 v18, s10", "v_mov_b32 v19, s11", "buffer_store_dwordx2 v[18:19], off, s[20:23], s35 sc1"]
    if O["gflag_ki"] < 0:
        cut = int(len(PHQ) * O["gflag_at"])
        e(gflag[1:-1]); e(sprinkle(PHQ[:cut], W2Q, O["ext_gap"])); e(gflag[:1] + gflag[-1:]); del PHQ[:cut]
    e(sprinkle(PHQ, W2Q, O["ext_gap"]))
    e(br2(0, 0))
    UB = []
    UB += [f"s_lshl_b32 s32, s29, 3\ns_lshl_b32 s33, s28, 1\ns_add_u32 s32, s32, s33\ns_mul_i32 s32, s32, 24576\ns_add_u32 s32, s32, {G}",
           "\n".join(f"s_mul_i32 s{36+u}, s{40+u}, 6144\ns_add_u32 s{36+u}, s{36+u}, s32" for u in range(4)),
           f"s_lshl_b32 s32, s29, 3\ns_lshl_b32 s33, s28, 1\ns_add_u32 s33, s33, s32\ns_lshl_b32 s33, s33, {WS}\ns_add_u32 s33, s33, {FL3}",
           f"v_bfe_u32 v2, v{vL}, 2, 1", f"v_and_b32 v3, 3, v{vL}", f"v_lshlrev_b32 v3, {SS}, v3", f"v_lshl_add_u32 v3, v2, {WS}, v3", "v_add_u32 v11, s33, v3"]
    UB += [f"v_add_u32 v12, {(FL0 - FL3) & 0xffffffff}, v11\n@mark ub2"]
    for gq in range(4):
        if O["rot2"]: UB += [f"s_add_u32 s33, s96, {gq}\ns_and_b32 s33, s33, 3\ns_lshr_b32 s34, s33, 1\ns_mul_i32 s34, s34, 24576\ns_and_b32 s33, s33, 1\ns_mul_i32 s33, s33, 3072\ns_add_u32 s33, s33, s34\nv_add_u32 v{6+gq}, s33, v10" + ("\n@mark ub" if gq == 3 else "")]
        else: UB += [f"v_add_u32 v{6+gq}, {(gq//2)*24576 + (gq%2)*3072}, v10" + ("\n@mark ub" if gq == 3 else "")]
    UB += ["@vm b1"]
    for q in [0, 1, 2, 3, 4, 5, 9, 8, 7, 6]:
        lo, hi = f"v_lshlrev_b32 v{MB+2*q}, 16, v{242+q}", f"v_and_b32 v{MB+2*q+1}, 0xffff0000, v{242+q}"
        UB += ([lo, hi] if q <= 5 else [hi, lo]) + [f"v_add_f32 v{MB+2*q}, v13, v{MB+2*q}", f"v_add_f32 v{MB+2*q+1}, v13, v{MB+2*q+1}"]
    def gl1(u, b, ks): return f"buffer_load_dwordx4 {rng(gb(b,ks))}, v{6 + ks//3}, s[20:23], s{36+u} offen offset:{(ks%3)*1024} sc1" + (f" #g{u}_{ks}")
    gload = lambda u, b: [gl1(u, b, ks) for ks in range(12)]
    for ki in range(5):
        M = [f"{MF} {rng(a2(u,dt))}, {rng(ph(ki,dt))}, {rng(bf2(ki%2,u))}, {'0' if ki == 0 else rng(a2(u,dt))}" for u in range(4) for dt in range(5)]
        e("s_waitcnt lgkmcnt(0)")
        st(80 + ki)
        if ki == O["gflag_ki"]: e(gflag[:1]); fl = gflag[1:]; st(86)
        else: fl = []
        UB[:0] = fl
        if ki == (O["fa_chk"] if O["half"] else 4):
            for n in W2Q: e(n)
            W2Q.clear()
            if O["half"]:
                ca = ["v_cmp_ne_u64 vcc, s[10:11], v[200:201]"]
                e("@vm fa"); e(ca); e(retry_block("fa", ["buffer_load_dwordx2 v[200:201], v12, s[20:23], 0 offen sc1"], ca))
                W2Q += [[x] for x in gload(1, 0)]
        if O["half"] and ki == int(O["fa_poll"]):
            k = int(round((O["fa_poll"] - ki) * 20)); M[k:k] = ["@need ub2\nbuffer_load_dwordx2 v[200:201], v12, s[20:23], 0 offen sc1 #fa"]
        gfl = lambda R, t: f"buffer_load_dwordx2 v[{R}:{R+1}], v11, s[20:23], 0 offen sc1 #{t}"
        for (pos, R, t) in ((O["gf1"], 18, "gf"), (O["gf2"], 2, "gf2")):
            if pos is not None and int(pos) == ki:
                k = int(round((pos - ki) * 20))
                e(sc1(M[:k], [], [])) if False else None
                M[k:k] = ["@need ub\n" + gfl(R, t)]
        e(sc1(M, br2(ki+1, 1-ki%2) if ki < 4 else [], UB, W2Q, 7 if O['half'] else 5, flush=(ki == 4)))
    for n in W2Q: e(n)
    for u in range(1, 4):
        if O["half"]: e(f"s_sub_u32 s34, s28, s{40+u}\ns_add_u32 s34, s34, 3\ns_and_b32 s34, s34, 3\ns_mul_i32 s34, s34, 5120\ns_mul_i32 s33, s{40+u}, 15360\ns_add_u32 s33, s33, s34\ns_add_u32 s33, s33, {RG}\nv_add_u32 v{13+u}, s33, v10")
        else: e(f"s_mul_i32 s33, s{40+u}, 15360\ns_add_u32 s33, s33, {RG + (u-1)*5120}\nv_add_u32 v{13+u}, s33, v10")
    e(f"s_mul_i32 s33, s28, 15360\ns_add_u32 s33, s33, {RG}\nv_add_u32 v17, s33, v10")
    st(24)
    chk = ["v_cmp_ne_u64 vcc, s[10:11], v[18:19]"]
    if not O["half"]: e("@vm gf"); e(chk)
    if O["half"]: pass
    elif O["gf2"] is None: e(retry_block("gf", ["buffer_load_dwordx2 v[18:19], v11, s[20:23], 0 offen sc1"], chk))
    else:
        e("s_cbranch_vccnz kf_gf2\nkf_ok_gf:")
        retries.append(("gf", ["buffer_load_dwordx2 v[18:19], v11, s[20:23], 0 offen sc1"], chk))
        extra_tail.append("kf_gf2:\ns_waitcnt vmcnt(0)\nv_cmp_ne_u64 vcc, s[10:11], v[2:3]\ns_cbranch_vccz kf_ok_gf\ns_branch kf_rt_gf")
    if not O["half"]: e(gload(1, 0))
    st(25)
    order = [1, 2, 3, 0]; sc2 = Sched(1)
    if O.get("dummy"): e("s_add_u32 s60, s14, 0x3000000\ns_addc_u32 s61, s15, 0")
    srd(e, 16, 60, 2621440)
    for n, u in enumerate(order):
        b = n % 2
        first = []
        if n >= 1:
            pu = order[n-1]
            for dt in range(5): first += [f"ds_write_b128 v{13+pu}, {rng(a2(pu,dt))} offset:{dt*1024}"] + [""] * (3 if n < 3 else 5)
        if n == 3:
            first += ["s_waitcnt lgkmcnt(0)\ns_barrier"]
            rd = lambda sidx, base: [f"ds_read_b128 {rng(base+4*dt)}, v17 offset:{sidx*5120 + dt*1024}" for dt in range(5)]
            first += rd(0, PS) + rd(1, GB) + ["s_waitcnt lgkmcnt(5)"]
            A_ = [f"v_add_f32 v{MB+q}, v{MB+q}, v{PS+q}" for q in range(20)]
            first += [z for k in range(5) for z in (rd(2, GB+20)[k], A_[k])] + A_[5:] + ["s_waitcnt lgkmcnt(5)"] + [f"v_add_f32 v{MB+q}, v{MB+q}, v{GB+q}" for q in range(20)]
        if n == 2:
            first += [f"s_lshr_b32 s32, s29, 2\ns_lshl_b32 s32, s32, 8\ns_and_b32 s33, s29, 3\ns_lshl_b32 s33, s33, 3\ns_add_u32 s32, s32, s33\ns_lshl_b32 s33, s28, 6\ns_add_u32 s32, s32, s33",
                      f"v_lshrrev_b32 v3, 5, v{vL}", f"v_bfe_u32 v4, v{vL}, 2, 3", "v_lshl_add_u32 v3, v3, 5, v4", "v_add_u32 v3, s32, v3", "v_mul_u32_u24 v3, 1280, v3",
                      f"v_and_b32 v5, 3, v{vL}", f"v_and_b32 v12, 60, v{vL}", "v_lshl_add_u32 v12, v5, 6, v12",
                      "v_lshl_add_u32 v4, v5, 4, v3", "v_lshl_add_u32 v5, v5, 3, v3", "s_mul_i32 s32, s30, 160"]
        first = [x for x in first if x]
        wr_ = [x for x in first if x.startswith("ds_write_b128")]; first = [x for x in first if not x.startswith("ds_write_b128")]
        for ks in range(12):
            M = [f"{MF} {rng(a2(u,dt))}, {arng(w2r(5*ks+dt))}, {rng(gb(b,ks))}, {rng(a2(u,dt))}" for dt in range(5)]
            e(f"@vm g{u}_{ks}")
            if n == 0 and ks == 0: st(87)
            pre = ([gl1(order[n+1], 1-b, ks)] if n + 1 < 4 else [])
            if O["half"] and n == 0:
                kb = O["fb_ks"]; per = -(-12 // (12 - kb))
                if ks == kb: e("@vm gf"); e(chk); e(retry_block("gf", ["buffer_load_dwordx2 v[18:19], v11, s[20:23], 0 offen sc1"], chk))
                pre = [gl1(order[1], 1, j) for j in range(per*(ks-kb), min(12, per*(ks-kb+1)))] if ks >= kb else []
                e(Sched(2)(M, [], pre)); continue
            if wr_: e(M[:2] if ks == 0 else []); e(sc2(M[2:] if ks == 0 else M, [], pre + [wr_.pop(0)]))
            else: e(sc2(M[:1], [], pre)); e(sc2(M[1:], [], first, flush=(ks == 11)))
        if n == 1: st(26)
        if n == 3: st(27)
    e("s_waitcnt lgkmcnt(0)")
    for q in range(10): e(f"v_pk_add_f32 v[{MB+2*q}:{MB+2*q+1}], v[{MB+2*q}:{MB+2*q+1}], v[{GB+20+2*q}:{GB+21+2*q}]")
    for q in range(10):
        e(f"v_pk_add_f32 v[{A2+2*q}:{A2+2*q+1}], v[{A2+2*q}:{A2+2*q+1}], v[{MB+2*q}:{MB+2*q+1}]\nv_cvt_pk_bf16_f32 v{PS+q}, v{A2+2*q}, v{A2+2*q+1}\nds_bpermute_b32 v{PS+10+q}, v12, v{PS+q}")
        if q == 6: e(f"s_waitcnt lgkmcnt(3)\nbuffer_store_dwordx4 {rng(PS+10)}, v4, s[16:19], s32 offen")
    e(f"s_waitcnt lgkmcnt(2)\nbuffer_store_dwordx4 {rng(PS+14)}, v4, s[16:19], s32 offen offset:64")
    e(f"s_waitcnt lgkmcnt(0)\nbuffer_store_dwordx2 v[{PS+18}:{PS+19}], v5, s[16:19], s32 offen offset:128")
    e("kf_done:")
    S.flush(a, 14, 28)
    e("kf_exit:\ns_endpgm")
    a.items += moved
    nonce_slow(a, spin)
    for x in extra_tail: a(x)
    for tag, loads, check in retries:
        a(f"kf_rt_{tag}:")
        for x in loads: a(x.split(" #")[0])
        a("s_sub_u32 s50, s50, 1\ns_cbranch_scc1 kf_fail\ns_waitcnt vmcnt(0)")
        for x in check: a(x)
        a(f"s_cbranch_vccnz kf_rt_{tag}\ns_branch kf_ok_{tag}")
    for d in O.get("drop", ()):
        a.items = [(k, "s_nop 0") if k == "i" and x.startswith("buffer_store") and d in x else (k, x) for k, x in a.items]
    if O.get("plainst"):
        a.items = [(k, x.replace(" sc1", O["plainst"][1])) if k == "i" and x.startswith("buffer_store") and any(d in x for d in O["plainst"][0]) else (k, x) for k, x in a.items]
    if O.get("outflag"):
        a.items = [(k, x + " " + O["outflag"]) if k == "i" and x.startswith("buffer_store") and "s[16:19], s32" in x else (k, x) for k, x in a.items]
    if O.get("dummy"):
        pass
    if O.get("nosleep"): a.items = [(k, x) for k, x in a.items if not (k == "i" and x.startswith("s_sleep"))]
    sites = []
    for i, (k, x) in enumerate(a.items):
        if k == "i" and x == "s_cbranch_scc1 kf_fail":
            sites.append(len(sites)); a.items[i] = (k, f"s_cbranch_scc1 kf_fail{sites[-1]}")
    for n in sites: a(f"kf_fail{n}:\ns_movk_i32 s3, {n}\ns_branch kf_fail")
    a("""kf_fail:
s_lshl_b32 s32, s2, 8
s_or_b32 s32, s32, s3
s_or_b32 s32, s32, 0x10000
v_mov_b32 v2, s32
s_and_b32 s32, s3, 31
s_lshl_b32 s32, s32, 2
s_add_u32 s32, s32, 16
v_mov_b32 v3, s32
global_store_dword v3, v2, s[62:63]
kf_last:
s_endpgm""")
    return a
```

```python
XH   = 0x000000
RB   = 0x280000
MU   = 0x282000
CT   = 0x290000
W1F  = 0x300000
W2F  = 0x500000
WT   = 0x700000
G    = 0xC00000
FL1  = 0x1240000
FL0  = 0x1208000
FL3  = 0x1260000
FL2  = 0x1218000
FLH  = 0x1220000
WSEND = 0x1280000
DBG  = 0x1400000
EPS = 1e-5
```

```python
from asmlib import *
from layout import *
import math, re
import k2 as P2
from k2 import rng, arng, MF, FAc, TC, TS, ZF, TMP, wt, xi, zf, a1, pk, stage64, stage32, trreads, p2_consts, RG, RX

LDS = 163840
vL = 1
PHI, FR, ACC, WG_ = 20, 100, 148, 212
P = lambda i: PHI + 8*i
Q = lambda i: PHI + 8*i + 4
SIDE = 81920
SIDE2 = 122880
STEPS = [s for u in range(5) for s in (2*u, 2*u+10, 2*u+1, 2*u+11)]

class VM:
    def __init__(self): self.n = 0; self.tags = {}; self.done = 0
    def op(self, tag=None):
        self.n += 1
        if tag is not None: self.tags[tag] = self.n
    def wait(self, tag):
        t = self.tags[tag]
        if t <= self.done: return None
        self.done = t
        return f"s_waitcnt vmcnt({min(63, self.n - t)})"
class Emit:
    def __init__(self, a): self.a = a; self.vm = VM(); self.marks = set()
    def __call__(self, L):
        if isinstance(L, str): L = [L]
        for x in [y.strip() for z in L for y in z.split("\n")]:
            if not x: continue
            if x.startswith("@vm "):
                w = self.vm.wait(x[4:])
                if w: self.a(w)
                continue
            if x.startswith("@mark "): self.marks.add(x[6:]); continue
            if x.startswith("@need "):
                assert x[6:] in self.marks, x
                continue
            if x == "@drain":
                self.a("s_waitcnt vmcnt(0)"); self.vm.done = self.vm.n; continue
            tag = None
            if " #" in x: x, tag = x.split(" #")
            if x.startswith("buffer_") or x.startswith("global_"): self.vm.op(tag)
            self.a(x)

def srd(e, d, base, size):
    e(f"s_mov_b32 s{d}, s{base}\ns_and_b32 s{d+1}, s{base+1}, 0xffff\ns_mov_b32 s{d+2}, {size}\ns_mov_b32 s{d+3}, 0x20000")

def rot(dst, src, k):
    p2 = lambda r: f"v[{r}:{r+1}]"
    return [f"v_pk_mul_f32 {p2(dst)}, {p2(src)}, {p2(k)} op_sel_hi:[1,0]",
            f"v_pk_fma_f32 {p2(dst)}, {p2(src)}, {p2(k)}, {p2(dst)} op_sel:[1,1,0] op_sel_hi:[0,1,1] neg_lo:[1,0,0]"]

def phi_gen():
    ZA = lambda i: FR + 4*i; ZB = lambda i: FR + 4*i + 2; K = FR + 20
    H = ["s_lshl_b32 s31, s30, 6", "s_add_u32 s32, s31, s28", "s_add_u32 s32, s32, 1",
         f"v_and_b32 v2, 15, v{vL}", "v_lshl_add_u32 v2, v2, 2, s32", "v_cvt_f32_u32 v2, v2", f"v_mul_f32 v2, {f2h(1/640)}, v2",
         f"v_lshrrev_b32 v3, 4, v{vL}", "v_lshl_add_u32 v3, v3, 3, s31", "v_cvt_f32_u32 v3, v3", "v_mul_f32 v3, v3, v2",
         f"v_cos_f32 v{K}, v2", f"v_sin_f32_e64 v{K+1}, -v2"]
    for i in range(5):
        t = 4 + i % 2
        H += [f"v_fmamk_f32 v{t}, v2, {f2h(32*i)}, v3", f"v_cos_f32 v{ZA(i)}, v{t}", f"v_sin_f32_e64 v{ZA(i)+1}, -v{t}"]
    L = []
    for jp in range(4):
        R1 = [rot(ZB(i), ZA(i), K) for i in range(5)]
        L += [r[0] for r in R1] + [r[1] for r in R1]
        for i in range(5): L += [f"v_cvt_pk_bf16_f32 v{P(i)+jp}, v{ZA(i)}, v{ZB(i)}", f"v_cvt_pk_bf16_f32 v{Q(i)+jp}, v{ZA(i)+1}, v{ZB(i)+1}"]
        if jp < 3:
            R2 = [rot(ZA(i), ZB(i), K) for i in range(5)]
            L += [r[0] for r in R2] + [r[1] for r in R2]
    return H, L

def p2_consts_rot(T=196):
    from k2 import FAs, FAn, FBc, FBs, FBn
    L = [f"v_and_b32 v2, 15, v{vL}", "s_lshl_b32 s39, s28, 4", "v_add_u32 v2, s39, v2", "v_cvt_f32_u32 v2, v2",
         f"v_lshrrev_b32 v3, 4, v{vL}", "v_cvt_f32_u32 v3, v3",
         f"v_mul_f32 v4, {f2h(1/64)}, v2", "v_mul_f32 v5, 4.0, v3", "v_mul_f32 v5, v5, v4"]
    Z = lambda ch, j: T + 4 + 8*ch + 2*j
    def block(starts, consts, dc, ds, dn):
        X = []
        for ch, (sr, br, off) in enumerate(starts):
            X += [f"v_fmamk_f32 v{6+ch%2}, v{sr}, {f2h(off)}, v{br}", f"v_cos_f32 v{Z(ch,0)}, v{6+ch%2}", f"v_sin_f32 v{Z(ch,0)+1}, v{6+ch%2}"]
        for j in range(1, 4):
            R = [rot(Z(ch,j), Z(ch,j-1), consts[ch]) for ch in range(4)]
            X += [r[0] for r in R] + [r[1] for r in R]
        for ch in range(4):
            for q in range(2):
                X += [f"v_cvt_pk_bf16_f32 v{dc+2*ch+q}, v{Z(ch,2*q)}, v{Z(ch,2*q+1)}", f"v_cvt_pk_bf16_f32 v{ds+2*ch+q}, v{Z(ch,2*q)+1}, v{Z(ch,2*q+1)+1}"]
        return X + [f"v_xor_b32 v{dn+k}, 0x80008000, v{ds+k}" for k in range(8)]
    L += [f"v_cos_f32 v{T}, v4", f"v_sin_f32 v{T+1}, v4"]
    L += block([(4, 5, 16*ch) for ch in range(4)], [T]*4, FAc, FAs, FAn)
    L += [f"v_mul_f32 v4, {f2h(1/2048)}, v2", f"v_mul_f32 v3, {f2h(8.0)}, v3", "v_mul_f32 v5, v3, v4"]
    for k in range(8): L += [f"v_fmamk_f32 v{6+k%2}, v4, {f2h(k)}, v5", f"v_cos_f32 v{TC+k}, v{6+k%2}", f"v_sin_f32 v{TS+k}, v{6+k%2}"]
    L += [f"v_bfe_u32 v2, v{vL}, 2, 2", f"v_and_b32 v4, 3, v{vL}", "v_lshl_add_u32 v2, v2, 3, v4", "v_cvt_f32_u32 v2, v2",
          f"v_mul_f32 v4, {f2h(1/32)}, v2", f"v_add_f32 v8, {f2h(4/32)}, v4", "v_mul_f32 v5, v3, v4", "v_mul_f32 v9, v3, v8",
          f"v_cos_f32 v{T}, v4", f"v_sin_f32 v{T+1}, v4", f"v_cos_f32 v{T+2}, v8", f"v_sin_f32 v{T+3}, v8"]
    L += block([(4, 5, 0), (4, 5, 4), (8, 9, 0), (8, 9, 4)], [T, T, T+2, T+2], FBc, FBs, FBn)
    return L

def phi_fix(e, tag):
    e(f"s_lshl_b32 s32, s30, 2\ns_add_u32 s32, s32, s28\ns_cmp_eq_u32 s32, 19\ns_cbranch_scc0 {tag}_nofix")
    e(f"v_and_b32 v2, 15, v{vL}\nv_cmp_eq_u32 vcc, 15, v2\nv_mov_b32 v3, 0xbf353f35\nv_mov_b32 v4, 0")
    for i in range(5):
        for jp in range(4):
            e(f"v_cndmask_b32 v{P(i)+jp}, v{P(i)+jp}, v3, vcc\nv_cndmask_b32 v{Q(i)+jp}, v{Q(i)+jp}, v4, vcc")
    e(f"{tag}_nofix:")
    e("""s_add_u32 s32, s28, 1
s_and_b32 s32, s32, 2
s_cmp_lg_u32 s32, 0
s_cselect_b32 s33, 0x80008000, 0
s_cmp_lt_u32 s28, 2
s_cselect_b32 s34, 0x80008000, 0
s_bitcmp1_b32 s28, 0
s_cselect_b32 s46, 1.0, -1.0
s_cselect_b32 s47, 1.0, -1.0""")
    e(f"s_cbranch_scc1 {tag}_keep")
    for i in range(5):
        for jp in range(4): e(f"v_xor_b32 v{P(5+i)+jp}, s33, v{Q(i)+jp}\nv_xor_b32 v{Q(5+i)+jp}, s34, v{P(i)+jp}")
    e(f"s_branch {tag}_shifted\n{tag}_keep:")
    for i in range(5):
        for jp in range(4): e(f"v_xor_b32 v{P(5+i)+jp}, s33, v{P(i)+jp}\nv_xor_b32 v{Q(5+i)+jp}, s34, v{Q(i)+jp}")
    e(f"{tag}_shifted:")

def div12(e, row, pc, k):
    e(f"v_add_u32 v{pc}, {64*k}, v{vL}\nv_mul_u32_u24 v{row}, 5462, v{pc}\nv_lshrrev_b32 v{row}, 16, v{row}\nv_mul_u32_u24 v9, 12, v{row}\nv_sub_u32 v{pc}, v{pc}, v9")

def w2f_parts(ld, R, early=False):
    setup = ["s_mov_b32 s4, s56\ns_and_b32 s5, s57, 0xffff\ns_cmp_lt_u32 s51, 64\ns_cselect_b32 s6, 1966080, 0\ns_mov_b32 s7, 0x20000"]
    for k in range(3):
        setup += [f"v_add_u32 v3, {64*k}, v{vL}", "v_mul_u32_u24 v2, 5462, v3", "v_lshrrev_b32 v2, 16, v2", "v_mul_u32_u24 v4, 12, v2", "v_sub_u32 v3, v3, v4",
                  "v_mul_u32_u24 v2, 1280, v2", f"v_lshl_add_u32 v{244+k}, v3, 4, v2"]
    setup += ["s_lshr_b32 s36, s51, 3\ns_and_b32 s37, s51, 7\ns_mul_i32 s38, s36, 192\ns_mul_i32 s39, s28, 48\ns_add_u32 s38, s38, s39\ns_mul_i32 s38, s38, 1280",
              f"s_mul_i32 s48, s37, 160\ns_and_b32 s49, s48, 63\ns_sub_u32 s48, s48, s49\ns_add_u32 s38, s38, s48\ns_mul_i32 s39, s28, 9216\ns_add_u32 s39, s39, {SIDE2}"]
    dma = []
    for blk in range(3):
        for k in range(3):
            dma.append([f"s_add_u32 m0, s39, {(3*blk+k)*1024}"] + ([f"s_add_u32 s38, s38, {16*1280}"] if blk and k == 0 else [])
                       + [f"buffer_load_dwordx4 v{244+k}, s[4:7], s38 offen {ld} lds" + (" #w2s" if blk == 2 and k == 2 else "")])
    addr = [f"s_sub_u32 s13, s2, 160\ns_lshr_b32 s36, s13, 3\ns_and_b32 s37, s13, 7\ns_mul_i32 s13, s37, 160\ns_and_b32 s13, s13, 63\ns_mul_i32 s38, s28, 9216\ns_add_u32 s13, s13, s38\ns_add_u32 s13, s13, {SIDE2}",
            f"v_lshrrev_b32 v188, 2, v{vL}", "v_mul_u32_u24 v189, 192, v188", f"v_and_b32 v190, 3, v{vL}", "v_add_u32 v189, s13, v189",
            "v_lshl_add_u32 v180, v190, 4, v189", "v_lshl_add_u32 v181, v190, 3, v189", "v_and_b32 v188, 7, v188", "v_mul_u32_u24 v189, 192, v188", "v_add_u32 v189, s13, v189",
            f"v_lshrrev_b32 v191, 5, v{vL}", "v_lshl_add_u32 v182, v190, 4, v189", "v_lshl_add_u32 v182, v191, 3, v182", "v_lshl_add_u32 v183, v190, 3, v189",
            f"s_mul_i32 s36, s36, 6\ns_mul_i32 s37, s37, 48\ns_add_u32 s36, s36, s37\ns_add_u32 s37, s36, s28\ns_mul_i32 s37, s37, 5120\ns_add_u32 s37, s37, {W2F}",
            f"s_lshr_b32 s13, s28, 1\ns_add_u32 s36, s36, s13\ns_add_u32 s36, s36, 4\ns_mul_i32 s36, s36, 5120\ns_add_u32 s36, s36, {W2F}\ns_and_b32 s13, s28, 1\ns_lshl_b32 s13, s13, 9\ns_add_u32 s36, s36, s13",
            f"v_and_b32 v187, 31, v{vL}", "v_lshlrev_b32 v187, 4, v187", "v_lshl_add_u32 v185, v191, 10, v187", "v_add_u32 v186, 4096, v10", "v_add_u32 v187, 4096, v187"]
    frag = []
    for j in range(8):
        r = R + 4*(j % 2 if early else j)
        if j < 4: rd = [f"v180 offset:{h*16*192 + 64*(j//2) + 8*(j%2)}" for h in range(2)]; stv = f"v10, s[20:23], s37 offen offset:{j*1024}"
        elif j == 4: rd = [f"v181 offset:{h*16*192 + 128}" for h in range(2)]; stv = "v186, s[20:23], s37 offen"
        elif j < 7: rd = [f"v182 offset:{32*192 + h*8*192 + 64*(j-5)}" for h in range(2)]; stv = f"v185, s[20:23], s36 offen offset:{(j-5)*2048}"
        else: rd = [f"v183 offset:{32*192 + h*8*192 + 128}" for h in range(2)]; stv = "v187, s[20:23], s36 offen"
        frag.append(([f"ds_read_b64_tr_b16 v[{r+2*h}:{r+2*h+1}], {rd[h]}" for h in range(2)], f"buffer_store_dwordx4 {rng(r)}, {stv} sc1"))
    if early:
        ren = {"v180": "v247", "v181": "v248", "v182": "v249", "v183": "v250", "v185": "v251", "v186": "v252", "v187": "v253",
               "v188": "v2", "v189": "v3", "v190": "v4", "v191": "v5", "v10": "v17"}
        sub = lambda x: re.sub(r"v1?\d\d\b|v10\b", lambda m_: ren.get(m_.group(0), m_.group(0)), x)
        addr = ["s_cmp_lt_u32 s2, 224\ns_cselect_b32 s8, 0, 0x40000000", f"v_lshl_add_u32 v17, v{vL}, 4, s8"] + [sub(x).replace("s38", "s12") for x in addr]
        addr = [x.replace("v_lshlrev_b32 v253, 4, v253", "v_lshl_add_u32 v253, v253, 4, s8") for x in addr]
        frag = [([sub(x) for x in rd], sub(st_)) for rd, st_ in frag]
    return setup, dma, addr, frag

def kloop(e, reads, mfmas, extra, stp, half, xlds=lambda n: [], nsteps=20, tail_reads=None):
    e("@vm c0\ns_barrier"); stp(5)
    nb = 2 if half else 3
    for k in range(nb - 1): e(reads(STEPS[k], k))
    seen = set(); sc = Sched(4); pend = []
    for n, st in enumerate(STEPS[:nsteps]):
        first = (st // 10) not in seen; seen.add(st // 10)
        M = mfmas(st, n % nb, first)
        nx = n + nb - 1
        Rd = reads(STEPS[nx], nx % nb) if nx < 20 else []
        if nx >= nsteps and tail_reads: Rd = tail_reads
        xl = extra(n)
        newchunk = nx < 20 and nx % 4 == 0
        if not half:
            Rd = Rd + [x for x in xl if x.startswith("ds_read")]; pend += [x for x in xl if not x.startswith("ds_read")]
            e(f"s_waitcnt lgkmcnt({4 if n < 19 else 0})")
            if newchunk:
                e(sc(M[:2], [], pend, flush=False)); M = M[2:]
                e(f"@vm c{nx//4}\ns_barrier"); stp(40 + nx//4)
            e(sc(M, Rd, pend, flush=(n == 19)))
            continue
        pend += xl
        if not newchunk and nx < 20:
            e(f"s_waitcnt lgkmcnt({len(Rd) - half})")
            h = len(M) // 2
            e(xlds(n))
            e(sc(M[:h], Rd[:h], pend, flush=False)); e(f"s_waitcnt lgkmcnt({h})"); e(sc(M[h:], Rd[h:], pend, flush=False))
        elif newchunk:
            h = len(M) // 2
            e(f"s_waitcnt lgkmcnt({half})")
            e(sc(M[:2], [], pend, flush=False))
            e(f"@vm c{nx//4}\ns_barrier"); stp(40 + nx//4)
            e(sc(M[2:h], Rd[:h-2], pend, flush=False)); e(f"s_waitcnt lgkmcnt({h-2})"); e(sc(M[h:], Rd[h-2:], pend, flush=(n == nsteps - 1)))
        else:
            h = len(M) // 2
            e(f"s_waitcnt lgkmcnt({half})"); e(sc(M[:h], [], pend, flush=False)); e("s_waitcnt lgkmcnt(0)"); e(sc(M[h:], [], pend))

def gclear(e):
    e(f"""s_lshl_b32 s32, s29, 3
s_add_u32 s32, s32, s30
s_mul_i32 s32, s32, 24576
s_mul_i32 s33, s28, 6144
s_add_u32 s32, s32, s33
s_add_u32 s32, s32, {G}
s_add_u32 s33, s32, 4096
v_mov_b32 v4, 0
v_mov_b32 v5, 0
v_mov_b32 v6, 0
v_mov_b32 v7, 0
v_lshlrev_b32 v10, 4, v{vL}""")
    for i in range(6): e(f"buffer_store_dwordx4 v[4:7], v10, s[20:23], s{32 + i//4} offen offset:{(i%4)*1024} sc1")

NONCE_SLOW = []
def nonce_items(tag, R):
    NONCE_SLOW.append((tag, R))
    return [f"{tag}_n0:\nv_readfirstlane_b32 s10, v{R}", f"v_readfirstlane_b32 s11, v{R+1}",
            f"s_add_u32 s32, s10, 1000\ns_addc_u32 s33, s11, 0\ns_sub_u32 s32, s32, s94\ns_subb_u32 s33, s33, s95\ns_cmp_ge_i32 s33, 0\ns_cbranch_scc0 {tag}_n2\n{tag}_n1:"]
def nonce_get(e, tag, R): e(nonce_items(tag, R))
def nonce_slow(a, spin):
    for tag, R in NONCE_SLOW:
        a(f"""{tag}_n2:
s_cmp_lt_u32 s50, {spin - 4096}
s_cselect_b32 s32, s10, 0
s_cmp_lg_u32 s32, 0
s_cbranch_scc1 {tag}_n1
s_sub_u32 s50, s50, 1
s_cbranch_scc1 kf_fail
v_mov_b32 v{R}, 0
global_load_dwordx2 v[{R}:{R+1}], v{R}, s[62:63] sc1
s_waitcnt vmcnt(0)
s_branch {tag}_n0""")
    NONCE_SLOW.clear()

def nonce_load(R): return [f"v_mov_b32 v{R}, 0", f"global_load_dwordx2 v[{R}:{R+1}], v{R}, s[62:63] sc1 #nonce"]

def flag_put(e, tag, base, R=2, sh=7):
    e(f"""s_cmp_lg_u32 s28, 0
s_cbranch_scc1 {tag}_f
s_lshl_b32 s32, s2, {sh}
s_add_u32 s32, s32, {base}
v_mov_b32 v{R}, s10
v_mov_b32 v{R+1}, s11
v_mov_b32 v{R+2}, 0""")
    e.a(f"buffer_store_dwordx2 v[{R}:{R+1}], v{R+2}, s[20:23], s32 offen sc1\n{tag}_f:")

def flag_poll(e, tag, vaddr, R, back=4):
    e(f"""s_branch {tag}_q
{tag}_p:
s_sleep {back}
{tag}_q:
buffer_load_dwordx2 v[{R}:{R+1}], v{vaddr}, s[20:23], 0 offen sc1
s_sub_u32 s50, s50, 1
s_cbranch_scc1 kf_fail
@drain
v_cmp_ne_u64 vcc, s[10:11], v[{R}:{R+1}]
s_cbranch_vccnz {tag}_p""")

def cmul2(c, src, wr, wi, conj):
    A, B = [], []
    for t in range(2):
        for rp in range(2):
            T = TMP + 4*((2*t+rp) % 2)
            re, im, x, y = src(c, 0, t) + 2*rp, src(c, 1, t) + 2*rp, wr(t) + 2*rp, wi(t) + 2*rp
            cv = [f"v_cvt_pk_bf16_f32 v{pk(c,0)+2*t+rp}, v{T}, v{T+1}", f"v_cvt_pk_bf16_f32 v{pk(c,1)+2*t+rp}, v{T+2}, v{T+3}"]
            if t == 0:
                for k in range(2): A += [f"v_mul_f32 v{T+k}, v{re+k}, v{x+k}", f"v_mul_f32 v{T+2+k}, v{im+k}, v{x+k}"]
                for k in range(2):
                    if conj: A += [f"v_fmac_f32 v{T+k}, v{im+k}, v{y+k}", f"v_fma_f32 v{T+2+k}, -v{re+k}, v{y+k}, v{T+2+k}"]
                    else:    A += [f"v_fma_f32 v{T+k}, -v{im+k}, v{y+k}, v{T+k}", f"v_fmac_f32 v{T+2+k}, v{re+k}, v{y+k}"]
                A += cv
            else:
                p2 = lambda r: f"v[{r}:{r+1}]"
                neg = " neg_lo:[1,0,0] neg_hi:[1,0,0]"
                B += [f"v_pk_mul_f32 {p2(T)}, {p2(re)}, {p2(x)}", f"v_pk_mul_f32 {p2(T+2)}, {p2(im)}, {p2(x)}",
                      f"v_pk_fma_f32 {p2(T)}, {p2(im)}, {p2(y)}, {p2(T)}" + ("" if conj else neg),
                      f"v_pk_fma_f32 {p2(T+2)}, {p2(re)}, {p2(y)}, {p2(T+2)}" + (neg if conj else "")] + cv
    return A, B

def build(diag=False, spin=1<<16, ld="", opt={}):
    O = dict(x_gap=45, w1_p2=34, w1_gap=58, w1_pre=22, npre=4, wpre=0, nst=1, f1_at=0.0, eq_gap=10, ctab=False, np_gap=60, np_first=100, mapB=True, wt_n4=False, align=True, wtail=False, wf_pre=False, wf_lead=60, back_w=3, back_u=6, f2_lead=4, f0_at=1.0, f0_merge=True, c_late=False, c_gap=62, beta=False, e_win=12, vtouch=224, rot1=False, rot2=False, half=True, fa_put=0.75, fa_poll=1.0, fa_chk=3, fb_ks=6, wline=False, blank=False, gf1=4.5, gf2=None, bgfirst=True, idmap=False, idrot=240, xtouch=False, relay=True, whead=False, x2split=True, opre_kp=99, opre_fl='sc1', biasa=False, nst2=1, gflag_at=0.5, lean=True, lean_w=True, wt_post=False, share1=False, share2=False, w2_lag=0, np_early=True, wf_at=0.2, tlb=0, wt_late=True, w_late=0, g1_bg2=3, gelu_cut=0.95, f0_n=17, x_n=14, nostat=False, unit_at=0, hint=True, prew=False, gpre_kp=99, uf=[1, 2, 4, 5, 6, 8, 9, 10, 12], uearly=False, u_pos=6, g1_start=1, g1_vgap=3, touch=False, touch2=False, g1_bg=4, gelu_gap=90, pf=True, w2_start=8, gflag_ki=1, ext_gap=75, w_gap=50, w_n=16); O.update(opt)
    a = Asm(); e = Emit(a); S = Stamps(bool(diag))
    smap = {"A": {i: i for i in range(1, 12)},
            "B": {9: 1, 10: 2, 11: 3, 20: 4, 21: 5, 22: 6, 23: 7, 24: 8, 25: 9, 26: 10, 27: 11},
            "G": {22: 1, 23: 2, 80: 3, 81: 4, 86: 5, 82: 6, 83: 7, 84: 8, 24: 9, 25: 10, 87: 11},
            "F": {8: 1, 70: 2, 71: 3, 72: 4, 73: 5, 74: 6, 9: 7, 10: 8, 11: 9},
            "E": {11: 1, 50: 2, 51: 3, 52: 4, 53: 5, 54: 6, 55: 7, 56: 8, 57: 9, 58: 10, 60: 11},
            "D": {1: 1, 40: 2, 2: 3, 5: 4, 41: 5, 42: 6, 43: 7, 44: 8, 4: 9, 45: 10, 6: 11},
            "C": {8: 1, 33: 2, 34: 3, 35: 4, 36: 5, 30: 6, 31: 7, 32: 8, 9: 9, 37: 10, 38: 11}}.get(diag, {})
    st = lambda i: S(a, smap[i]) if i in smap else None
    IDM = "s_cmp_lt_u32 s2, 16\ns_cselect_b32 s3, 96, 0\ns_add_u32 s2, s2, s3\ns_cmp_lt_u32 s2, 112\ns_cselect_b32 s3, s3, 16\n" if False else ""
    if O["idmap"]: IDM = "s_cmp_lt_u32 s2, 96\ns_cselect_b32 s3, 0, 16\ns_cmp_lt_u32 s2, 16\ns_cselect_b32 s3, 96, s3\ns_add_u32 s2, s2, s3\ns_add_u32 s2, s2, 144\ns_and_b32 s2, s2, 255"; O["idrot"] = 0
    S.nowait = diag == 'Z'
    S.start(a)
    e(f"""s_cmp_ge_u32 s2, 256
s_cbranch_scc1 kf_exit
{IDM}
{"s_add_u32 s2, s2, %d" % O["idrot"] if O["idrot"] else ""}
{"s_and_b32 s2, s2, 255" if O["idrot"] else ""}
s_load_dwordx4 s[4:7], s[0:1], 0
s_load_dwordx2 s[8:9], s[0:1], 16
s_load_dwordx8 s[52:59], s[0:1], 32
s_load_dwordx4 s[60:63], s[0:1], 64
s_load_dwordx2 s[14:15], s[0:1], 80
s_memrealtime s[94:95]
v_lshrrev_b32 v2, 6, v0
v_and_b32 v{vL}, 63, v0
v_readfirstlane_b32 s28, v2
s_and_b32 s29, s2, 7
s_lshl_b32 s29, s29, 2
s_bfe_u32 s32, s2, 0x20003
s_add_u32 s29, s29, s32
s_lshr_b32 s30, s2, 5
s_mov_b32 s50, {spin}""")
    if O["pf"]:
        e(f"""s_getpc_b64 s[32:33]
kf_pc:
s_lshr_b32 s34, s2, 3
s_lshl_b32 s34, s34, 11
v_and_b32 v2, 127, v0
v_lshl_add_u32 v2, v2, 4, s34
s_mov_b32 s35, kf_last-kf_pc-16
v_min_u32 v2, s35, v2
v_and_b32 v2, -16, v2
v_mov_b32 v3, s33
v_add_co_u32 v2, vcc, s32, v2
v_addc_co_u32 v3, vcc, 0, v3, vcc""")
        a("global_load_dwordx4 v[240:243], v[2:3], off")
    e("s_cmp_ge_u32 s2, 160\ns_cbranch_scc1 kf_notx")
    pos_split = len(a.items)
    PH, AC, GR, BF, SG = 20, 120, 168, 172, 204
    ph = lambda ki, dt: PH + 20*ki + 4*dt
    DN = [0, 252, 253, 254, 255]
    PHS = [f"v_bfe_u32 v2, v{vL}, 2, 2", f"v_and_b32 v3, 3, v{vL}", "v_lshl_add_u32 v2, v2, 3, v3", "s_mul_i32 s32, s30, 80",
          "v_add_u32 v2, s32, v2", f"v_and_b32 v3, 15, v{vL}", "v_add_u32 v3, s32, v3", "s_movk_i32 s9, 320"]
    for dt in range(5):
        off = 32*(dt//2) + 4*(dt%2) if dt < 4 else 64
        PHS += [f"v_add_u32 v4, {off}, v{2 if dt < 4 else 3}", "v_subrev_u32 v5, 640, v4", "v_cmp_le_u32 vcc, s9, v4", "s_nop 0",
              "v_cndmask_b32 v4, v4, v5, vcc", "v_cvt_f32_i32 v4, v4", f"v_mul_f32 v{DN[dt]}, {f2h(1/640)}, v4"]
    PHS += [f"v_lshrrev_b32 v2, 4, v{vL}", "s_cmp_eq_u32 s28, 3", "s_cselect_b32 s9, 3, 4", "v_cmp_eq_u32 s[48:49], s9, v2", "s_mul_i32 s31, s28, 5"]
    phk = lambda PT: [x for dt in range(5) for x in (f"v_mul_f32 v{4+dt%2}, 4.0, v{DN[dt]}", f"v_cos_f32 v{PT+2*dt}, v{4+dt%2}", f"v_sin_f32_e64 v{PT+2*dt+1}, -v{4+dt%2}")]
    PHK = phk(196)
    def phx(ki, dst=None, PT=196):
        ph_ = dst or ph
        Z = lambda dt, j: PT + 10 + 8*dt + 2*j
        X = [f"s_add_u32 s9, s31, {ki}", "s_lshr_b32 s51, s9, 2", "s_lshl_b32 s51, s51, 6", "s_and_b32 s9, s9, 3", "s_add_u32 s9, s9, s51", "s_add_u32 s9, s9, 1",
             f"v_and_b32 v3, 48, v{vL}", "v_add_u32 v3, s9, v3", "v_cvt_f32_u32 v3, v3"]
        for dt in range(5): X += [f"v_mul_f32 v{4+dt%2}, v3, v{DN[dt]}", f"v_cos_f32 v{Z(dt,0)}, v{4+dt%2}", f"v_sin_f32_e64 v{Z(dt,0)+1}, -v{4+dt%2}"]
        X += [f"s_mov_b32 s8, {f2h(2/640)}"] + [f"v_pk_mul_f32 v[{Z(dt,0)}:{Z(dt,0)+1}], v[{Z(dt,0)}:{Z(dt,0)+1}], s[8:9] op_sel_hi:[1,0]" for dt in range(5)]
        for j in range(1, 4):
            R = [rot(Z(dt,j), Z(dt,j-1), PT+2*dt) for dt in range(5)]
            X += [r[0] for r in R] + [r[1] for r in R]
        for dt in range(5):
            if ki == 4: X += [f"v_mul_f32 v4, {f2h(math.sqrt(0.5))}, v{Z(dt,3)}", f"v_cndmask_b32 v{Z(dt,3)}, v{Z(dt,3)}, v4, s[48:49]"]
            for q in range(2):
                X += [f"v_cvt_pk_bf16_f32 v{ph_(ki,dt)+q}, v{Z(dt,2*q)}, v{Z(dt,2*q+1)}", f"v_cvt_pk_bf16_f32 v{ph_(ki,dt)+2+q}, v{Z(dt,2*q)+1}, v{Z(dt,2*q+1)+1}"]
            if dst: X += [f"ds_write_b128 v19, {rng(ph_(ki,dt))} offset:{(5*ki+dt)*1024}"]
        return X
    gemm_role = ["s_bfe_u32 s29, s2, 0x20001", "s_lshl_b32 s29, s29, 3", "s_lshr_b32 s32, s2, 5", "s_add_u32 s29, s29, s32",
               "s_and_b32 s30, s2, 1", "s_lshl_b32 s30, s30, 2", "s_bfe_u32 s32, s2, 0x20003", "s_add_u32 s30, s30, s32"]
    if not O['mapB']: gemm_role = ["s_and_b32 s29, s2, 7", "s_lshl_b32 s29, s29, 2", "s_bfe_u32 s32, s2, 0x20003", "s_add_u32 s29, s29, s32", "s_lshr_b32 s30, s2, 5"]
    retries = []; extra_tail = []
    if O["beta"]:
        w1r = lambda kp, i: 12*(kp if kp < 13 else kp - 13) + 4*i
        w1ok = lambda kp: 0 if kp < 13 else kp - 13 + 2
        free = [(r, 0) for r in (156, 240, 244, 248, 252)] + [(12*k + 4*i, k + 2) for k in range(7, 13) for i in range(3)] + [(12*(k-13) + 4*i, k + 2) for k in range(13, 20) for i in range(3)]
        w2r = lambda n: 160 + 4*n if n < 20 else free[n-20][0]
        w2ok = lambda n: 0 if n < 20 else free[n-20][1]
    else:
        w1r = lambda kp, i: 12*kp + 4*i; w1ok = lambda kp: 0
        w2r = lambda n: 4*n; w2ok = lambda n: (4*n + 3)//12 + 2
    WS, SS = (9, 7) if O['wline'] else (7, 3)
    def retry_block(tag, loads, check):
        retries.append((tag, loads, check)); return [f"s_cbranch_vccnz kf_rt_{tag}\nkf_ok_{tag}:"]
    def warm_pages(R):
        if not O["tlb"]: return
        st_, n = O["tlb"], -(-WSEND // O["tlb"])
        for k in range(-(-n // 64)):
            e(f"v_add_u32 v{R}, {64*k}, v{vL}\nv_min_u32 v{R}, {n-1}, v{R}\nv_mul_u32_u24 v{R}, {st_}, v{R}")
            a(f"buffer_load_dword v{R}, v{R}, s[20:23], 0 offen")
        e(f"v_min_u32 v{R+1}, {2621440//st_}, v{vL}\nv_mul_u32_u24 v{R+1}, {st_}, v{R+1}\nv_min_u32 v{R+1}, 2621436, v{R+1}\nv_mov_b32 v{R+2}, 0\nv_mov_b32 v{R+3}, 0")
        a(f"global_load_dword v{R+1}, v{R+1}, s[60:61]\nglobal_load_dword v{R+2}, v{R+2}, s[54:55]\nglobal_load_dword v{R+3}, v{R+3}, s[58:59]")
    GH, GL = phi_gen()
    e(f"""s_lshr_b32 s32, s29, 2
s_lshl_b32 s32, s32, 8
s_and_b32 s33, s29, 3
s_lshl_b32 s33, s33, 3
s_add_u32 s32, s32, s33
s_lshl_b32 s33, s28, 5
s_add_u32 s32, s32, s33
v_lshrrev_b32 v2, 3, v{vL}
v_add_u32 v5, s32, v2
v_mul_u32_u24 v5, 1280, v5
v_bfe_u32 v3, v{vL}, 4, 1
s_lshl_b32 s33, s28, 1
v_or_b32 v3, s33, v3
v_and_b32 v4, 7, v{vL}
v_xor_b32 v3, v3, v4
v_lshl_add_u32 v17, v3, 4, v5
v_add_u32 v19, 163840, v17
s_lshl_b32 s41, s28, 10
s_lshl_b32 s43, s30, 7
s_mov_b32 s42, s43
s_add_u32 s44, s43, 640""")
    if O["xtouch"]:
        e(f"""s_lshl_b32 s33, s30, 2
s_add_u32 s33, s33, s28
s_lshl_b32 s33, s33, 5
v_and_b32 v6, 31, v{vL}
v_add_u32 v6, s33, v6
v_mul_u32_u24 v7, 6554, v6
v_lshrrev_b32 v7, 16, v7
v_mul_u32_u24 v8, 10, v7
v_sub_u32 v6, v6, v8
v_lshrrev_b32 v8, 3, v7
v_and_b32 v7, 7, v7
v_lshl_add_u32 v7, v8, 5, v7
s_lshl_b32 s33, s28, 5
s_sub_u32 s33, s32, s33
v_add_u32 v7, s33, v7
v_mul_u32_u24 v7, 1280, v7
v_lshl_add_u32 v6, v6, 7, v7""")
    if not O["lean"]: e(GH)
    e("s_waitcnt lgkmcnt(0)")
    st(1)
    srd(e, 16, 4, 2621440)
    if O["xtouch"]: a("buffer_load_dword v6, v6, s[16:19], 0 offen")
    XD = []
    for c in range(5):
        for k, u in enumerate((c, c+5)):
            sr = (42, 44)[k]
            adv = [f"s_add_u32 s{sr}, s{sr}, 128"] + ([f"s_cmp_eq_u32 s{sr}, 1280", f"s_cselect_b32 s{sr}, 0, s{sr}"] if k else [])
            XD.append([f"s_add_u32 m0, s41, {8*u*1024}"] + (adv if c else []) + [f"buffer_load_dwordx4 v17, s[16:19], s{sr} offen {ld} lds"])
            XD.append([f"s_add_u32 m0, s41, {(8*u+4)*1024}", f"buffer_load_dwordx4 v19, s[16:19], s{sr} offen {ld} lds" + (f" #c{c}" if k else "")])
    for d in XD[:4]: e(d)
    st(40)
    if O["lean"]: e(GH)
    srd(e, 20, 14, WSEND + (0x2000000 if O.get('dummy') else 0)); srd(e, 24, 6, 1314816); srd(e, 4, 8, 1314816)
    warm_pages(244)
    e("""s_or_b32 s32, s2, s28
s_cmp_lg_u32 s32, 0
s_cbranch_scc1 kf_nononce
s_or_b32 s12, s94, 1
v_mov_b32 v2, s12
v_mov_b32 v3, s95
v_mov_b32 v4, 0""")
    a("global_store_dwordx2 v4, v[2:3], s[62:63] sc1\nkf_nononce:")
    XA0 = f"""s_and_b32 s36, s2, 3
s_lshl_b32 s36, s36, 4
s_bfe_u32 s37, s2, 0x30002
s_lshl_b32 s37, s37, 2
s_add_u32 s37, s37, s28
s_lshl_b32 s37, s37, 6
s_add_u32 s36, s36, s37
s_mul_i32 s36, s36, 642
s_add_u32 s36, s36, s43
s_add_u32 s36, s36, 2
s_lshl_b32 s39, s28, 11
s_add_u32 s39, s39, {SIDE}
v_lshrrev_b32 v2, 3, v{vL}
v_mul_u32_u24 v2, 642, v2
v_lshrrev_b32 v3, 4, v{vL}
v_and_b32 v4, 7, v{vL}
v_xor_b32 v3, v3, v4
v_lshl_add_u32 v15, v3, 4, v2
v_xor_b32 v3, 4, v3
v_lshl_add_u32 v16, v3, 4, v2
v_add_u32 v16, {8*642}, v16""".split("\n")
    if not O['wt_late']: e(XA0)
    WD = [[f"s_add_u32 m0, s39, {arr*8192 + nh*1024}", f"buffer_load_dwordx4 v{15+nh}, s[{24 if arr == 0 else 4}:{27 if arr == 0 else 7}], s36 offen {ld} lds"] for arr in range(2) for nh in range(2)]
    BQ = XD[4:O['x_n']] if O['wt_late'] else XD[4:6] + WD + XD[6:O['x_n']]
    e(sprinkle(GL, BQ, O['x_gap'], first=0))
    st(2)
    phi_fix(e, "kx")
    for d in BQ: e(d)
    BQ = XD[O['x_n']:]
    if O['wt_late']: BQ = XD[O['x_n']:14] + [XA0] + WD + [['@mark wd']] + XD[14:]
    if O['wt_n4']: BQ = XD[O['x_n']:16] + [XA0] + WD + [['@mark wd']] + XD[16:]
    if O['wt_post']: WD[-1][-1] += " #wd"; BQ = XD[O['x_n']:] + [XA0] + WD + [['@mark wd']]
    e(f"""v_and_b32 v2, 15, v{vL}
v_lshrrev_b32 v3, 2, v2
v_and_b32 v4, 3, v2
v_lshlrev_b32 v5, 10, v3
v_lshl_add_u32 v5, v4, 7, v5
v_lshrrev_b32 v4, 1, v4
v_lshl_or_b32 v3, v3, 1, v4
v_lshrrev_b32 v4, 4, v{vL}
v_xor_b32 v3, v3, v4
v_lshl_add_u32 v10, v3, 4, v5
v_xor_b32 v11, 64, v10
v_add_u32 v12, 40960, v10
v_add_u32 v13, 40960, v11""")
    XA1 = f"""v_and_b32 v2, 15, v0
v_lshrrev_b32 v3, 4, v0
v_lshrrev_b32 v4, 1, v3
v_lshrrev_b32 v5, 1, v2
v_xor_b32 v4, v4, v5
v_lshlrev_b32 v4, 4, v4
v_and_b32 v5, 1, v3
v_lshl_or_b32 v4, v5, 3, v4
v_lshl_add_u32 v4, v2, 7, v4
v_add_u32 v15, {SIDE}, v4
@mark xa1
v_lshlrev_b32 v3, 13, v3
v_lshl_add_u32 v16, v2, 4, v3
s_lshl_b32 s36, s30, 19
s_and_b32 s37, s2, 3
s_lshl_b32 s37, s37, 11
s_add_u32 s36, s36, s37
s_bfe_u32 s37, s2, 0x10002
s_lshl_b32 s37, s37, 10
s_add_u32 s36, s36, s37
s_bfe_u32 s37, s2, 0x20003
s_lshl_b32 s37, s37, 8
s_add_u32 s36, s36, s37
s_add_u32 s36, s36, {WT}
s_mov_b32 s48, 0x05040100
s_mov_b32 s49, 0x07060302""".split("\n")
    XA2 = f"""s_mul_i32 s12, s29, 81920
s_lshl_b32 s37, s30, 2
s_add_u32 s37, s37, s28
s_lshl_b32 s37, s37, 12
s_add_u32 s12, s12, s37
s_lshl_b32 s37, s28, 12
s_add_u32 s37, s37, {SIDE + 16384}
v_and_b32 v2, 7, v{vL}
v_lshrrev_b32 v3, 4, v{vL}
v_xor_b32 v3, v3, v2
v_and_b32 v4, 15, v{vL}
v_lshlrev_b32 v4, 7, v4
v_lshl_add_u32 v4, v3, 4, v4
v_add_u32 v248, s37, v4
v_xor_b32 v249, 64, v248
v_lshrrev_b32 v3, 3, v{vL}
v_xor_b32 v2, v2, v3
v_lshlrev_b32 v3, 7, v3
v_lshl_add_u32 v3, v2, 4, v3
v_add_u32 v18, s37, v3
v_lshlrev_b32 v14, 4, v{vL}""".split("\n")
    st(3)
    def xreads(s_, buf):
        u = s_ // 2
        return [f"ds_read_b128 {rng(FR+16*buf+4*t)}, v{10 + (s_ % 2) + (2 if u >= 5 else 0)} offset:{(u%5)*8192 + (t//2)*4096 + (t%2)*512}" for t in range(4)]
    xacc = lambda s_, t, p: ACC + 32*s_ + 8*t + 4*p
    def xm(s_, buf, first):
        return [f"{MF} {rng(xacc(s_//10,t,p))}, {rng(FR+16*buf+4*t)}, {rng(P(s_%10) if p == 0 else Q(s_%10))}, {'0' if first else rng(xacc(s_//10,t,p))}" for t in range(4) for p in range(2)]
    WDt, WO = WG_, WG_ + 16
    def wave_flag(base, R):
        return [f"s_lshl_b32 s32, s2, {WS-SS}\ns_add_u32 s32, s32, s28\ns_lshl_b32 s32, s32, {SS}\ns_add_u32 s32, s32, {base}", f"v_mov_b32 v{R}, s10", f"v_mov_b32 v{R+1}, s11", f"v_mov_b32 v{R+2}, 0",
                f"buffer_store_dwordx2 v[{R}:{R+1}], v{R+2}, s[20:23], s32 offen sc1"]
    nA, nR, nP = ((8, 9), 11, 14) if O["wt_late"] else ((0, 2), 3, 6)
    if O["wt_post"]: nA, nR, nP = (13, 14), 99, 99
    if O["wt_n4"]: nA, nR, nP = (9, 10), 15, 18
    def xextra(n):
        L = []
        for _ in range(2 if O["wt_late"] and n < 6 else 1):
            if BQ: L += BQ.pop(0)
        if n == nA[0]: L += (["@need wd"] if O["wt_late"] else []) + XA1[:11]
        if n == nA[1]: L += XA1[11:]
        if n == (12 if O["wt_late"] else 11): L += XA2
        if n == nR: e("@need xa1")
        if n in (nR, nR+1): L += [f"ds_read_b64 v[{WDt+8*(n-nR)+2*r}:{WDt+8*(n-nR)+2*r+1}], v15 offset:{(4*(n-nR)+r)*2048}" for r in range(4)]
        for q in ([2*(n-nP), 2*(n-nP)+1] if O["wt_n4"] and n >= nP else [n - nP] if nP <= n < nP + 4 else []):
            L += [f"v_perm_b32 v{WO+4*q+2*arr+rp}, v{WDt+8*arr+4*rp+2+q//2}, v{WDt+8*arr+4*rp+q//2}, s{48+q%2}" for arr in range(2) for rp in range(2)]
            L += [f"buffer_store_dwordx4 {rng(WO+4*q)}, v16, s[20:23], s36 offen sc1 #wts", f"s_add_u32 s36, s36, {16*8192}"]
        if n == (4 if O["wt_post"] else 10): L += nonce_load(250)
        if n == O["f0_n"]:
            N_ = nonce_items("kx", 250)
            L += ["@vm nonce", "\n".join(N_)] + ([] if O["wt_late"] else wave_flag(FL0, 252))
        return L
    kloop(e, xreads, xm, xextra, st, 0)
    st(4)
    for p in range(2):
        for h in range(2):
            o = FR + 8*p + 4*h
            for t in (2*h, 2*h+1):
                for rp in range(2):
                    d = xacc(0,t,p) + 2*rp; s_ = xacc(1,t,p) + 2*rp
                    e(f"v_pk_fma_f32 v[{d}:{d+1}], v[{s_}:{s_+1}], s[46:47], v[{d}:{d+1}]\nv_cvt_pk_bf16_f32 v{o+2*(t%2)+rp}, v{d}, v{d+1}")
            if p == 1 and h == 0:
                e("s_waitcnt lgkmcnt(0)")
                for i in range(2): e(f"buffer_store_dwordx4 {rng(FR+16+4*i)}, v14, s[20:23], s12 offen offset:{i*1024} sc1")
            e(f"v_and_b32 v{o}, -2, v{o}\nds_write_b128 v{248+h}, {rng(o)} offset:{p*2048}")
        e(f"s_waitcnt lgkmcnt(0)\nds_read_b128 {rng(FR+16+8*p)}, v18 offset:{p*2048}\nds_read_b128 {rng(FR+20+8*p)}, v18 offset:{p*2048+1024}")
    for i in (2, 3): e(f"s_waitcnt lgkmcnt({3-i})\nbuffer_store_dwordx4 {rng(FR+16+4*i)}, v14, s[20:23], s12 offen offset:{i*1024} sc1")
    st(45)
    F = wave_flag(FL1, 2)
    if O["wt_post"]:
        e("@vm wd\ns_barrier")
        e([f"ds_read_b64 v[{WDt+2*k}:{WDt+2*k+1}], v15 offset:{k*2048}" for k in range(8)])
        e(F[:-1]); e("s_waitcnt lgkmcnt(0)\ns_barrier")
        e([f"v_perm_b32 v{WO+4*q+2*arr+rp}, v{WDt+8*arr+4*rp+2+q//2}, v{WDt+8*arr+4*rp+q//2}, s{48+q%2}" for q in range(4) for arr in range(2) for rp in range(2)])
        e("@drain"); e(F[-1:])
        for q in range(4): e(f"buffer_store_dwordx4 {rng(WO+4*q)}, v16, s[20:23], s36 offen sc1 #wts\ns_add_u32 s36, s36, {16*8192}")
    else:
        e(F[:-1]); e("@drain"); e(F[-1:])
    st(6)
    e(f"""s_and_b32 s32, s2, 0xe0
s_add_u32 s32, s32, s28
s_lshl_b32 s32, s32, {WS}
s_bfe_u32 s33, s2, 0x20001
s_lshl_b32 s33, s33, {SS}
s_add_u32 s32, s32, s33
s_add_u32 s32, s32, {FL1 if O["wt_late"] and not O["wt_post"] else FL0}
v_and_b32 v146, 7, v{vL}
v_lshl_add_u32 v146, v146, {WS+2}, s32
s_lshl_b32 s32, s28, {WS+1}
s_add_u32 s32, s32, {FL1 + (240 << WS)}
v_and_b32 v144, 1, v{vL}
v_lshl_add_u32 v144, v144, {WS}, s32
v_bfe_u32 v145, v{vL}, 1, 1
v_lshl_add_u32 v144, v145, {WS+3}, v144
""")
    if O["wt_late"]: e("v_mov_b32 v143, v146\nv_mov_b32 v146, v144")
    else: e(f"v_cmp_gt_u32 vcc, 8, v{vL}\ns_nop 0\nv_cndmask_b32 v146, v144, v146, vcc")
    if O["ctab"]: e(f"""s_lshl_b32 s32, s28, 3
s_add_u32 s32, s32, {FL0 + 228*128}
v_min_u32 v144, 14, v{vL}
v_lshl_add_u32 v144, v144, 7, s32
v_cmp_gt_u32 vcc, 12, v{vL}
s_nop 0
v_cndmask_b32 v146, v144, v146, vcc""")
    e(gemm_role)
    if O["beta"]: e(f"s_lshl_b32 s32, s30, 1\ns_lshr_b32 s38, s28, 1\ns_add_u32 s32, s32, s38\ns_lshl_b32 s32, s32, {WS}\ns_add_u32 s32, s32, {FL1 + (240 << WS)}\nv_mov_b32 v144, s32\nv_cmp_gt_u32 vcc, 32, v{vL}\ns_nop 0\nv_cndmask_b32 v146, v144, v146, vcc")
    C_ = p2_consts_rot() if (not O['ctab'] and not O['c_late']) else []
    k = int(len(C_) * O["f0_at"])
    e(C_[:k]); e("" if O["f0_merge"] else "buffer_load_dwordx2 v[144:145], v146, s[20:23], 0 offen sc1 #f0"); e(C_[k:])
    if O["wt_post"]: e("@vm wts"); e(wave_flag(FL0, 2))
    e(f"""v_bfe_u32 v2, v{vL}, 1, 1
v_bfe_u32 v3, v{vL}, 3, 1
v_lshl_or_b32 v2, v3, 1, v2
v_lshrrev_b32 v3, 4, v{vL}
v_xor_b32 v2, v2, v3
v_lshlrev_b32 v2, 4, v2
v_bfe_u32 v3, v{vL}, 2, 1
v_lshl_or_b32 v2, v3, 3, v2
v_and_b32 v3, 15, v{vL}
v_lshl_add_u32 v2, v3, 6, v2
s_lshl_b32 s32, s28, 10
s_add_u32 s32, s32, {RG}
v_add_u32 v16, s32, v2
v_xor_b32 v17, 8, v16
v_bfe_u32 v2, v{vL}, 3, 1
v_bfe_u32 v3, v{vL}, 5, 1
v_lshl_or_b32 v2, v3, 1, v2
v_and_b32 v3, 3, v{vL}
v_xor_b32 v2, v2, v3
v_lshlrev_b32 v2, 4, v2
v_bfe_u32 v3, v{vL}, 4, 1
v_lshl_or_b32 v2, v3, 3, v2
v_lshrrev_b32 v3, 2, v{vL}
v_lshl_add_u32 v2, v3, 6, v2
v_add_u32 v14, {RG}, v2
v_xor_b32 v15, 8, v14
v_bfe_u32 v2, v{vL}, 3, 1
s_lshl_b32 s32, s28, 1
v_add_u32 v2, s32, v2
v_lshrrev_b32 v3, 4, v{vL}
v_lshl_add_u32 v2, v2, 2, v3
v_and_b32 v4, 7, v{vL}
v_lshlrev_b32 v4, 4, v4
v_lshl_add_u32 v147, v2, 7, v4
s_mov_b32 s32, 81920
v_mad_u32_u24 v13, v2, s32, v4
s_lshr_b32 s33, s2, 3
s_lshl_b32 s33, s33, 12
s_and_b32 s34, s2, 7
s_lshl_b32 s34, s34, 8
s_add_u32 s33, s33, s34
s_mov_b32 s34, {RB}
s_add_u32 s35, s34, 4096
s_lshl_b32 s36, s2, 14
s_lshl_b32 s37, s28, 11
s_add_u32 s36, s36, s37
s_add_u32 s36, s36, {WT}
s_add_u32 s37, s36, 8192
s_and_b32 s32, s2, 0xe0
s_lshl_b32 s38, s28, 1
s_add_u32 s32, s32, s38
s_lshl_b32 s32, s32, {WS}
s_bfe_u32 s38, s2, 0x20003
s_lshl_b32 s38, s38, {SS}
s_add_u32 s32, s32, s38
s_add_u32 s32, s32, {FL1}
v_and_b32 v6, 3, v{vL}
v_lshl_add_u32 v6, v6, {WS+3}, s32
v_bfe_u32 v7, v{vL}, 2, 1
v_lshl_add_u32 v149, v7, {WS}, v6""")
    if O["wt_late"]: e(f"v_cmp_gt_u32 vcc, 8, v{vL}\ns_nop 0\nv_cndmask_b32 v149, v143, v149, vcc")
    if O["f0_merge"]: e(f"v_cmp_gt_u32 vcc, 16, v{vL}\ns_nop 0\nv_cndmask_b32 v149, v146, v149, vcc")
    wflag = [f"s_lshr_b32 s32, s28, 1\ns_lshl_b32 s32, s32, 3\ns_add_u32 s32, s32, s30\ns_lshl_b32 s32, s32, {WS}\ns_add_u32 s32, s32, {FL1 + (160 << WS)}",
             f"v_min_u32 v18, 19, v{vL}", "v_and_b32 v7, 3, v18", "v_lshrrev_b32 v18, 2, v18", f"v_lshl_add_u32 v18, v18, {WS+4}, s32", f"v_lshl_add_u32 v18, v7, {SS}, v18"]
    tileflag = lambda R: [f"s_and_b32 s32, s29, 3\ns_lshl_b32 s32, s32, 3\ns_lshr_b32 s38, s29, 2\ns_add_u32 s32, s32, s38\ns_lshl_b32 s32, s32, {WS}\ns_add_u32 s32, s32, {FL1}\ns_lshl_b32 s38, s38, {WS}\ns_add_u32 s38, s38, {FL1 + (240 << WS)}",
                          f"v_lshrrev_b32 v{R}, 2, v{vL}", f"v_lshl_add_u32 v{R}, v{R}, {WS+5}, s32", f"v_and_b32 v{R+1}, 3, v{vL}", f"v_lshl_add_u32 v{R}, v{R+1}, {SS}, v{R}",
                          f"v_and_b32 v{R+1}, 1, v{vL}", f"v_lshl_add_u32 v{R+1}, v{R+1}, {WS+3}, s38", f"v_cmp_gt_u32 vcc, 20, v{vL}", "s_nop 0", f"v_cndmask_b32 v{R}, v{R+1}, v{R}, vcc"]
    biasld = ["s_mul_i32 s32, s30, 384\ns_mul_i32 s38, s28, 96\ns_add_u32 s32, s32, s38", f"v_lshrrev_b32 v2, 4, v{vL}", "v_lshl_add_u32 v3, v2, 3, s32"]
    biasld += [f"global_load_dwordx2 a[{240+2*i}:{241+2*i}], v3, s[54:55] offset:{32*i}" for i in range(3)]
    biasld += ["s_mul_i32 s32, s30, 160", "v_lshl_add_u32 v3, v2, 4, s32", "v_lshl_add_u32 v4, v2, 3, s32",
               "global_load_dwordx4 a[246:249], v3, s[58:59]", "global_load_dwordx4 a[250:253], v3, s[58:59] offset:64", "global_load_dwordx2 a[254:255], v4, s[58:59] offset:128"]
    def outpre(R, fl):
        return [f"s_mov_b32 s16, s60\ns_and_b32 s17, s61, 0xffff\ns_mov_b32 s18, 2621440\ns_mov_b32 s19, 0x20000",
                "s_lshr_b32 s32, s29, 2\ns_lshl_b32 s32, s32, 8\ns_and_b32 s3, s29, 3\ns_lshl_b32 s3, s3, 3\ns_add_u32 s32, s32, s3\ns_lshl_b32 s3, s28, 6\ns_add_u32 s32, s32, s3",
                f"v_lshrrev_b32 v{R}, 5, v{vL}", f"v_bfe_u32 v{R+1}, v{vL}, 2, 3", f"v_lshl_add_u32 v{R}, v{R}, 5, v{R+1}", f"v_add_u32 v{R}, s32, v{R}", f"v_mul_u32_u24 v{R}, 1280, v{R}",
                f"v_and_b32 v{R+1}, 3, v{vL}", f"v_lshl_add_u32 v{R+2}, v{R+1}, 4, v{R}", f"v_lshl_add_u32 v{R+1}, v{R+1}, 3, v{R}", "s_mul_i32 s3, s30, 160",
                f"buffer_store_dwordx4 {rng(R)}, v{R+2}, s[16:19], s3 offen {fl}", f"buffer_store_dwordx4 {rng(R)}, v{R+2}, s[16:19], s3 offen offset:64 {fl}",
                f"buffer_store_dwordx2 v[{R}:{R+1}], v{R+1}, s[16:19], s3 offen offset:128 {fl}"]
    def blank(R, which):
        if not O["blank"]: return []
        L = [f"v_mov_b32 v{R}, 0", f"v_mov_b32 v{R+1}, 0"]
        if "1" in which: L += [f"s_lshl_b32 s32, s2, {WS-SS}\ns_add_u32 s32, s32, s28\ns_lshl_b32 s32, s32, {SS}\ns_add_u32 s32, s32, {FL1}", f"buffer_store_dwordx2 v[{R}:{R+1}], v{R}, s[20:23], s32 offen sc1"]
        if "3" in which: L += [f"s_lshl_b32 s32, s29, 3\ns_add_u32 s32, s32, s30\ns_lshl_b32 s32, s32, {WS-SS}\ns_add_u32 s32, s32, s28\ns_lshl_b32 s32, s32, {SS}\ns_add_u32 s32, s32, {FL3}", f"buffer_store_dwordx2 v[{R}:{R+1}], v{R}, s[20:23], s32 offen sc1"]
        return L
    w2base = f"s_mul_i32 s12, s30, 48\ns_mul_i32 s32, s28, 12\ns_add_u32 s12, s12, s32\ns_mul_i32 s12, s12, 5120\ns_add_u32 s12, s12, {W2F}"
    W2E = [([f"s_add_u32 s13, s12, {n*1024}"] if n % 4 == 0 else []) + [f"buffer_load_dwordx4 {arng(160+4*n)}, v10, s[20:23], s13 offen offset:{(n%4)*1024} sc1"] for n in range(20)]
    eflag = f"s_lshl_b32 s32, s30, 1\ns_lshr_b32 s38, s28, 1\ns_add_u32 s32, s32, s38\ns_lshl_b32 s32, s32, {WS}\ns_add_u32 s32, s32, {FL1 + (240 << WS)}"
    def share(base, R):
        return [f"s_lshr_b32 s32, s2, 5\ns_lshl_b32 s32, s32, 2\ns_add_u32 s32, s32, s28\ns_mul_i32 s32, s32, 7680\ns_mul_i32 s38, s30, 245760\ns_add_u32 s38, s38, s32\ns_add_u32 s38, s38, {base}",
                f"v_min_u32 v{R}, 59, v{vL}", f"v_lshlrev_b32 v{R}, 7, v{R}", f"buffer_load_dword v{R}, v{R}, s[20:23], s38 offen sc1"]
    w1set = [f"v_lshlrev_b32 v10, 4, v{vL}", "v_add_u32 v11, 20480, v10", "v_add_u32 v12, 40960, v10", "s_mul_i32 s44, s30, 12", "s_mul_i32 s32, s28, 3",
             "s_add_u32 s44, s44, s32", "s_mul_i32 s44, s44, 20480", f"s_add_u32 s44, s44, {W1F}",
             ]
    if O["rot1"] or O["rot2"]: w1set += ["s_lshr_b32 s96, s2, 5"]
    if O["rot1"]:
        w1set += ["s_cmp_ge_u32 s96, 5\ns_cselect_b32 s97, 5, 0\ns_sub_u32 s97, s96, s97\ns_lshl_b32 s97, s97, 12"]
        for c in range(1, 5): w1set += [f"s_add_u32 s{97+c}, s{96+c}, 4096\ns_cmp_eq_u32 s{97+c}, 20480\ns_cselect_b32 s{97+c}, 0, s{97+c}"]
    for c in range(0):
        w1set += [f"s_add_u32 s{4+c}, s51, {c}", f"s_mul_i32 s32, s{4+c}, 52", "s_lshr_b32 s32, s32, 8", "s_mul_i32 s32, s32, 5", f"s_sub_u32 s{4+c}, s{4+c}, s32", f"s_lshl_b32 s{4+c}, s{4+c}, 12"]
    e(wflag); e(w1set)
    if O["beta"]: e(w2base)
    if O["opre_kp"] == -1: e(outpre(140, O["opre_fl"]))
    if O["biasa"]: e(biasld)
    RAW, RR, SC = ZF, ZF + 40, ZF + 24
    e(PHS); e(f"s_mul_i32 s32, s28, 10240\ns_add_u32 s32, s32, {RG + 32768}\nv_add_u32 v19, s32, v10\ns_lshl_b32 s38, s28, 14\ns_add_u32 s38, s38, {CT}")
    chk = ["v_cmp_ne_u64 vcc, s[10:11], v[144:145]"]
    if not O["f0_merge"]:
        e("@vm f0"); e(chk); e(retry_block("f0", ["buffer_load_dwordx2 v[144:145], v146, s[20:23], 0 offen sc1"], chk))
    EQ = [[f"buffer_load_dwordx4 {rng(RR+4*h)}, v147, s[20:23], s{34+h} offen sc1"] for h in range(2)]
    for k in range(16 if O["ctab"] else 0): EQ.append(([f"s_add_u32 s38, s38, 4096"] if k and k % 4 == 0 else []) + [f"buffer_load_dwordx4 {rng(FAc+4*k)}, v10, s[20:23], s38 offen offset:{(k%4)*1024} sc1"])
    WQ = [[f"buffer_load_dwordx4 {rng(wt(c,1,t))}, v10, s[20:23], s{36+c} offen offset:{t*1024} sc1 #wt{c}"] for c in range(2) for t in range(2)]
    if not O["wt_late"]: EQ += WQ
    EL = []; RQ = []
    if O["f0_merge"]: RQ = EQ[:2]; del EQ[:2]
    if O["beta"]: EQ += W2E[:O["e_win"]]; EL = W2E[O["e_win"]:]
    if O["c_late"]: e(sprinkle(p2_consts_rot(), EQ, O["c_gap"], first=0))
    X = (PHK if O["nst"] + O["nst2"] else []) + [x for ki in range(O["nst"]) for x in phx(ki, lambda k, dt: 152 + 4*dt)]
    cut = int(len(X) * O["f1_at"])
    e(sprinkle(X[:cut], EQ, O["eq_gap"], first=0))
    for n in EQ: e(n)
    e("buffer_load_dwordx2 v[150:151], v149, s[20:23], 0 offen sc1 #f1")
    e(X[cut:])
    st(7)
    chk = ["v_cmp_ne_u64 vcc, s[10:11], v[150:151]"]
    e("@vm f1"); e(chk); e(retry_block("f1", ["buffer_load_dwordx2 v[150:151], v149, s[20:23], 0 offen sc1"], chk))
    st(8)
    for c in range(2):
        for p in range(2):
            e(f"buffer_load_dwordx4 {rng(RAW+8*c+4*p)}, v13, s[20:23], s33 offen offset:{c*128 + p*2048} sc1 #x{c}{p}")
            if c == 0 and p == 0:
                for n in RQ: e(n[0] + " #x00")
    if not O["wf_at"]: e("buffer_load_dwordx2 v[8:9], v18, s[20:23], 0 offen sc1 #wf")
    e(tileflag(2)); e("buffer_load_dwordx2 v[6:7], v2, s[20:23], 0 offen sc1 #tf")
    if O["wt_late"]:
        for n in WQ: e(n)
    e(sprinkle([x for ki in range(O["nst"], O["nst"] + O["nst2"]) for x in phx(ki, lambda k, dt: 164 + 4*dt)], EL, 40))
    assert not EL
    st(33)
    for c in range(2):
        for p in range(2):
            e(f"@vm x{c}{p}")
            if c == 0 and p == 0: st(34)
            raw = RAW + 8*c + 4*p
            for q in range(4):
                d = xi(c, p, 0) + 2*q
                e(f"v_lshlrev_b32 v{d}, 16, v{raw+q}\nv_and_b32 v{d+1}, 0xffff0000, v{raw+q}")
                e(f"v_pk_mul_f32 v[{TMP+2*q}:{TMP+2*q+1}], v[{d}:{d+1}], v[{RR+2*q}:{RR+2*q+1}]")
            o = SC + 8*c + 4*p
            for q in range(4): e(f"v_cvt_pk_bf16_f32 v{o+q}, v{TMP+2*q}, v{TMP+2*q+1}")
            e(f"ds_write_b64 v16, v[{o}:{o+1}] offset:{c*8192 + p*4096}\nds_write_b64 v17, v[{o+2}:{o+3}] offset:{c*8192 + p*4096}")
    if O["wf_pre"]: e("buffer_load_dwordx2 v[8:9], v18, s[20:23], 0 offen sc1 #wf")
    st(35)
    st(36)
    e("s_waitcnt lgkmcnt(0)\ns_barrier")
    st(30)
    W1L = []
    for kp in range(20):
        for i in range(3):
            pre = [f"s_add_u32 s45, s44, {'s%d' % (97 + kp//4) if O['rot1'] else kp*1024}"] if (kp % 4 == 0 and i == 0) else []
            W1L.append(pre + [f"buffer_load_dwordx4 {arng(w1r(kp,i))}, v{10+i}, s[20:23], s45 offen offset:{(kp%4)*1024} sc1 #w1_{kp}"])
    W1Q = list(W1L)
    tw = lambda c, conj: cmul2(c, a1, lambda t: TC+4*t, lambda t: TS+4*t, conj)
    wm = lambda c: cmul2(c, a1, lambda t: wt(c, 0, t), lambda t: wt(c, 1, t), False)
    def unp(c):
        L = []
        for t in range(2):
            x, y = wt(c, 0, t), wt(c, 1, t)
            for (d, s_) in ((x, y), (x+2, y+1), (y, y+2), (y+2, y+3)): L += [f"v_lshlrev_b32 v{d}, 16, v{s_}", f"v_and_b32 v{d+1}, 0xffff0000, v{s_}"]
        return L
    def intro(base, inv):
        R0, R1 = trreads(0, base), trreads(1, base); A0 = stage64(0, inv)
        second = weave(A0[8:], R1[4:12])
        if not inv:
            U = unp(0); second = ["@vm wt0"] + [z for k in range(8) for z in (A0[8+k], R1[4+k], U[2*k], U[2*k+1])]
        return (R0[:12] + ["s_waitcnt lgkmcnt(4)"] + weave(A0[:8], R0[12:] + R1[:4]) + ["s_waitcnt lgkmcnt(4)"]
                + second + ["s_waitcnt lgkmcnt(4)"] + R1[12:])
    ov = lambda M, AB: weave(M, AB[0], 0, 1, 2) + AB[1]
    A1_ = stage64(1, False)
    def fchk(tag, R, ad):
        chk = [f"v_cmp_ne_u64 vcc, s[10:11], v[{R}:{R+1}]"]
        return [f"@vm {tag}"] + chk + retry_block(tag, [f"buffer_load_dwordx2 v[{R}:{R+1}], v{ad}, s[20:23], 0 offen sc1"], chk)
    I0 = intro(0, False)
    e(I0[:12])
    seq = I0[12:] + fchk("tf", 6, 2) + ["@vm wt1"] + weave(A1_[:8], unp(1), 0, 1, 2) + ["s_waitcnt lgkmcnt(0)"] + ov(A1_[8:], tw(0, True))
    seq += ov(stage32(0, False), tw(1, True)) + ov(stage32(1, False), wm(0)) + ov(stage32(0, True), wm(1)) + ov(stage32(1, True), tw(0, False))
    wr = lambda c: [f"ds_write_b64 v{16+h}, v[{pk(c,p)+2*h}:{pk(c,p)+2*h+1}] offset:{16384 + c*8192 + p*4096}" for p in range(2) for h in range(2)]
    U1 = tw(1, False)
    seq += wr(0) + ([] if O["x2split"] else U1[0] + U1[1] + wr(1))
    cut = int(len(seq) * O["wf_at"])
    if cut and not O['wf_pre']: seq[max(0, cut - O['wf_lead']):max(0, cut - O['wf_lead'])] = ["buffer_load_dwordx2 v[8:9], v18, s[20:23], 0 offen sc1 #wf"]
    e(seq[:cut]); e(fchk("wf", 8, 18))
    if O["share1"]: e(share(W1F, 8))
    e(sprinkle(seq[cut:], W1Q, O["w1_gap"], limit=O["w1_p2"]))
    st(31)
    e("s_waitcnt lgkmcnt(0)\ns_barrier")
    st(32)
    if not O["x2split"]: e(intro(16384, True))
    e("s_cmp_eq_u32 s2, 159\ns_cselect_b32 s32, 0, -1")
    def fin(c):
        L = []
        for p in range(2):
            o = a1(c, p, 0)
            for q in range(4): L.append(f"v_cvt_pk_bf16_f32 v{o+q}, v{xi(c,p,0)+2*q}, v{xi(c,p,0)+2*q+1}")
            if c == 1 and p == 1: L += [f"v_and_or_b32 v{o}, v{o}, s32, 1"] + [f"v_and_b32 v{o+q}, s32, v{o+q}" for q in (1, 2, 3)]
            else: L.append(f"v_or_b32 v{o}, 1, v{o}")
            L.append(f"buffer_store_dwordx4 {rng(o)}, v13, s[20:23], s33 offen offset:{c*128 + p*2048} sc1")
        return L
    A1_ = stage64(1, True)
    if O["x2split"]:
        R0, R1 = trreads(0, 16384), trreads(1, 16384); A0 = stage64(0, True)
        UP = P2.cmul(1, a1, lambda t: TC+4*t, lambda t: TS+4*t, False)
        e(R0[:8]); e(weave(UP[:16], R0[8:], 0, 2, 1)); e("s_waitcnt lgkmcnt(8)")
        e(weave(A0[:8], UP[16:32], 0, 1, 2)); e("s_waitcnt lgkmcnt(0)")
        e(weave(A0[8:], UP[32:] + wr(1), 0, 1, 2)); e("s_waitcnt lgkmcnt(0)\ns_barrier")
        F0_ = fin(0)
        e(R1[:8]); e(weave(F0_[:8], R1[8:], 0, 1, 1)); e(F0_[8:]); e("s_waitcnt lgkmcnt(8)")
        e(A1_[:8] + ["s_waitcnt lgkmcnt(0)"] + A1_[8:] + fin(1))
    else:
        e(A1_[:8] + ["s_waitcnt lgkmcnt(0)"] + weave(A1_[8:], fin(0), 0, 1, 2) + fin(1))
    st(9)
    flag_put(e, "kxh", FLH)
    e([f"ds_read_b128 {rng(ph(ki,dt))}, v19 offset:{(5*ki+dt)*1024}" for ki in range(O["nst"] + O["nst2"]) for dt in range(5)])
    e(sprinkle(PHK + [x for ki in range(O["nst"] + O["nst2"], O["npre"]) for x in phx(ki)], W1Q, O["w1_gap"], limit=O["w1_pre"]))
    W1Q_after = list(W1Q)
    assert w1ok((59 - len(W1Q))//3) == 0
    print("phi left: late W1 loads", len(W1Q))
    e("s_branch kf_join")
    pos_np0 = len(a.items)
    vm_join = e.vm
    e.vm = VM()
    pos_w0 = len(a.items)
    e("kf_notx:\ns_cmp_ge_u32 s2, 240\ns_cbranch_scc1 kf_spare")
    e("""s_sub_u32 s32, s2, 160
s_and_b32 s29, s32, 7
s_lshl_b32 s29, s29, 1
s_bfe_u32 s33, s32, 0x10003
s_add_u32 s29, s29, s33
s_lshr_b32 s30, s32, 4""")
    for k in range(3):
        div12(e, 2, 3, k)
        e(f"v_bfe_u32 v4, v2, 3, 1\nv_lshlrev_b32 v4, 1, v4\nv_xor_b32 v3, v3, v4\nv_mul_u32_u24 v2, 3072, v2\nv_lshl_add_u32 v{14+k}, v3, 4, v2")
    e("""s_lshr_b32 s32, s28, 1
s_and_b32 s33, s28, 1
s_mul_i32 s33, s33, 10
s_add_u32 s32, s32, s33
s_mul_i32 s41, s32, 6144
s_lshl_b32 s33, s30, 1
s_add_u32 s42, s32, s33
s_mul_i32 s40, s29, 192""")
    D = []
    for c in range(5):
        for hf in range(2):
            for k in range(3):
                d = []
                if hf == 0 and k == 0: d += [f"s_add_u32 s43, s42, {2*c}", "s_cmp_ge_u32 s43, 20", "s_cselect_b32 s44, 20, 0", "s_sub_u32 s43, s43, s44", "s_mul_i32 s43, s43, 98304", "s_add_u32 s43, s43, s40"]
                if hf == 1 and k == 0: d += ["s_add_u32 s43, s43, 49152"]
                d = [f"s_add_u32 m0, s41, {c*12288 + (3*hf+k)*1024}"] + d + [f"buffer_load_dwordx4 v{14+k}, s[24:27], s43 offen {ld} lds" + (f" #c{c}" if hf == 1 and k == 2 else "")]
                D.append(d)
    U_setup, U_dma, U_addr, U_frag = w2f_parts(ld, 2 if O['uearly'] else ACC, O['uearly'])
    if not O["lean_w"]: e(GH)
    e("s_waitcnt lgkmcnt(0)")
    st(1)
    srd(e, 24, 52, 1966080)
    nf = 0 if O["w_late"] else 6
    for d in D[:nf]: e(d)
    if O["whead"]:
        head = a.items[pos_w0+1:]; del a.items[pos_w0:]
        a.items[pos_split-1] = ("i", "s_cbranch_scc0 kf_x")
        a.items[pos_split:pos_split] = head + [("i", "s_branch kf_wrest"), ("l", "kf_x")]
        a.label("kf_wrest")
    if O["lean_w"]: e(GH)
    srd(e, 20, 14, WSEND + (0x2000000 if O.get('dummy') else 0))
    warm_pages(248)
    BQ = D[nf:O["w_n"]]
    if O["uearly"]:
        e("s_sub_u32 s51, s2, 160"); e(U_setup); e(U_addr)
        BQ = D[nf:O["u_pos"]] + U_dma + D[O["u_pos"]:12]
    e(sprinkle(GL, BQ, O["w_gap"], first=O["w_late"]))
    W0 = BQ
    WA = [f"s_mul_i32 s12, s29, {6*20*1024}\ns_lshl_b32 s13, s30, 2\ns_add_u32 s13, s13, s28", f"s_lshl_b32 s13, s13, 10\ns_add_u32 s12, s12, s13\ns_add_u32 s12, s12, {W1F + O.get('w1shift', 0)}"]
    BQ = D[O["w_n"]:24] + [["s_sub_u32 s51, s2, 160"] + U_setup] + D[24:] + U_dma
    if O["uearly"]: BQ = D[12:] + [WA]
    st(2)
    if not O["w_late"]:
        for d in W0: e(d)
        W0 = []
    phi_fix(e, "kw")
    for d in W0: e(d)
    e(f"""v_lshrrev_b32 v2, 4, v{vL}
v_bfe_u32 v3, v{vL}, 2, 2
v_lshl_add_u32 v3, v2, 3, v3
v_mul_u32_u24 v3, 192, v3
v_and_b32 v4, 3, v{vL}
v_lshl_add_u32 v3, v4, 3, v3
v_and_b32 v2, 1, v2
v_lshlrev_b32 v2, 5, v2
v_add_u32 v10, v3, v2
v_sub_u32 v11, v3, v2
v_add_u32 v11, 32, v11
v_add_u32 v12, 61440, v10
v_add_u32 v13, 61440, v11""")
    st(3)
    def wreads(s_, buf):
        return [f"ds_read_b64_tr_b16 v[{FR+24*buf+4*ft+2*h}:{FR+24*buf+4*ft+2*h+1}], v{10 + (ft % 2) + (2 if s_ >= 10 else 0)} offset:{(s_%10)*6144 + h*768 + 64*(ft//2)}" for ft in range(6) for h in range(2)]
    wacc = lambda s_, ft, p: ACC + 48*s_ + 8*ft + 4*p
    def wmf(s_, buf, first):
        return [f"{MF} {rng(wacc(s_//10,ft,p))}, {rng(P(s_%10) if p == 0 else Q(s_%10))}, {rng(FR+24*buf+4*ft)}, {'0' if first else rng(wacc(s_//10,ft,p))}" for ft in range(6) for p in range(2)]
    def wextra(n):
        L = []
        for _ in range(3):
            if BQ: L += BQ.pop(0)
        if n == 12: assert not BQ; L += nonce_load(18)
        return L
    def wepi(ft, packed):
        o = (2 + 4*(ft % 2)) if not packed else FR + 4*ft; L = []
        for p in range(2):
            for rp in range(2):
                d = wacc(0,ft,p) + 2*rp; s_ = wacc(1,ft,p) + 2*rp
                if packed: L.append(f"v_pk_fma_f32 v[{d}:{d+1}], v[{s_}:{s_+1}], s[46:47], v[{d}:{d+1}]")
                else: L += [f"v_fma_f32 v{d+k}, v{s_+k}, s46, v{d+k}" for k in range(2)]
                L.append(f"v_cvt_pk_bf16_f32 v{o+2*p+rp}, v{d}, v{d+1}")
        return L + [f"buffer_store_dwordx4 {rng(o)}, v17, s[20:23], s12 offen sc1 #w1f", "s_add_u32 s12, s12, 20480"]
    BQ += [WA + [f"v_lshlrev_b32 v17, 4, v{vL}"]]
    if O["wtail"]:
        tb = lambda ft: (FR, FR + 32, FR + 16)[ft % 3]
        trd = lambda ft: [f"ds_read_b64_tr_b16 v[{tb(ft)+4*j+2*h}:{tb(ft)+4*j+2*h+1}], v{10 + (ft % 2) + (2 if s_ >= 10 else 0)} offset:{(s_%10)*6144 + h*768 + 64*(ft//2)}" for j, s_ in enumerate(STEPS[16:]) for h in range(2)]
        kloop(e, wreads, wmf, wextra, st, 6, nsteps=16, tail_reads=trd(0))
        sc = Sched(3); pend = []
        for ft in range(6):
            M = [f"{MF} {rng(wacc(s_//10,ft,p))}, {rng(P(s_%10) if p == 0 else Q(s_%10))}, {rng(tb(ft)+4*j)}, {rng(wacc(s_//10,ft,p))}" for j, s_ in enumerate(STEPS[16:]) for p in range(2)]
            e("s_waitcnt lgkmcnt(0)")
            if ft >= 1: pend += ["s_nop 0", "s_nop 0"] * (1 if ft == 1 else 0) + wepi(ft - 1, False)
            e(sc(M, trd(ft + 1) if ft < 5 else [], pend, flush=True))
        st(4)
        e(wepi(5, True))
    else:
        kloop(e, wreads, wmf, wextra, st, 6)
        st(4)
        for ft in range(6): e(wepi(ft, True))
    e(gemm_role); e(PHS)
    e("@vm nonce"); nonce_get(e, "kv", 18)
    F = wave_flag(FL1, 14)
    e(F[:-1]); e("@drain"); e(F[-1:]); st(37)
    e("s_barrier")
    e("s_branch kf_np2")
    e("kf_spare:")
    e(f"""s_and_b32 s32, s2, 7
s_lshl_b32 s33, s32, 8
s_bfe_u32 s34, s2, 0x10003
s_lshl_b32 s35, s34, 7
s_add_u32 s33, s33, s35
s_lshl_b32 s35, s28, 5
s_add_u32 s33, s33, s35
s_mul_i32 s33, s33, 1280
v_lshrrev_b32 v2, 4, v{vL}
v_mul_u32_u24 v3, 1280, v2
v_and_b32 v4, 15, v{vL}
v_lshl_add_u32 v10, v4, 4, v3
s_lshl_b32 s34, s34, 2
s_add_u32 s34, s34, s28
s_lshl_b32 s36, s32, 9
s_lshl_b32 s35, s34, 4
s_add_u32 s36, s36, s35
s_add_u32 s36, s36, {RB}
s_lshl_b32 s37, s32, 10
s_lshl_b32 s35, s34, 5
s_add_u32 s37, s37, s35
s_add_u32 s37, s37, {MU}
v_lshlrev_b32 v11, 2, v2
s_mov_b32 s38, 0x3f803f80
s_waitcnt lgkmcnt(0)""")
    st(1)
    srd(e, 16, 4, 2621440); srd(e, 20, 14, WSEND + (0x2000000 if O.get('dummy') else 0))
    SQ = []
    for i in range(8):
        for v in range(5): SQ.append((["s_add_u32 s33, s33, 5120"] if i and v == 0 else []) + [f"buffer_load_dwordx4 {rng(84+20*i+4*v)}, v10, s[16:19], s33 offen offset:{256*v} {ld} #s{i}"])
    warm_pages(248)
    for n in SQ[:12]: e(n)
    del SQ[:12]
    e(nonce_load(18))
    if O["beta"]:
        e(U_setup[0].replace("s_cmp_lt_u32 s51, 64\ns_cselect_b32 s6, 1966080, 0", "s_mov_b32 s6, 1966080")); e(U_setup[1:22])
        e(f"""s_sub_u32 s44, s2, 240
s_lshl_b32 s44, s44, 3
s_lshl_b32 s45, s28, 1
s_add_u32 s44, s44, s45
s_lshr_b32 s45, s44, 4
s_bfe_u32 s46, s44, 0x20002
s_and_b32 s47, s44, 3
s_mul_i32 s48, s46, 384
s_mul_i32 s49, s47, 48
s_add_u32 s48, s48, s49
s_mul_i32 s48, s48, 1280
s_mul_i32 s49, s45, 160
s_and_b32 s51, s49, 63
s_sub_u32 s49, s49, s51
s_add_u32 s48, s48, s49
s_mul_i32 s49, s28, 12288
s_mul_i32 s45, s45, 48
s_mul_i32 s46, s46, 12
s_add_u32 s45, s45, s46
s_add_u32 s45, s45, s47
s_mul_i32 s45, s45, 5120
s_add_u32 s45, s45, {W2F}
s_add_u32 s51, s51, s49
v_lshrrev_b32 v2, 2, v{vL}
v_mul_u32_u24 v2, 192, v2
v_add_u32 v2, s51, v2
v_and_b32 v3, 3, v{vL}
v_lshl_add_u32 v14, v3, 4, v2
v_lshl_add_u32 v15, v3, 3, v2
v_lshlrev_b32 v16, 4, v{vL}
v_add_u32 v17, 4096, v16""")
        for g_, row in enumerate((0, 16, 48, 64)):
            for k in range(3): SQ.insert(3*g_ + k, [f"s_add_u32 m0, s49, {(3*g_+k)*1024}"] + ([f"s_add_u32 s46, s48, {row*1280}"] if k == 0 else []) + [f"buffer_load_dwordx4 v{244+k}, s[4:7], s46 offen {ld} lds #w2e"])
        for n in SQ[:12]: e(n)
        del SQ[:12]
    e("s_mov_b32 s42, 0x00010001\ns_mov_b32 s43, 0x00010001")
    for i in range(8):
        e(f"@vm s{i}")
        X = []
        for k in range(20):
            c0 = "0" if k < 2 else None; r = 84 + 20*i + k
            X += [f"v_dot2_f32_bf16 v{4+k%2}, v{r}, v{r}, {c0 or 'v%d' % (4+k%2)}", f"v_dot2_f32_bf16 v{6+k%2}, v{r}, s38, {c0 or 'v%d' % (6+k%2)}"]
        e(sprinkle(X, SQ, 30, first=0, limit=5))
        e("v_add_f32 v4, v4, v5\nv_add_f32 v5, v6, v7")
        for sh in (8, 4, 2, 1):
            e(f"v_add_f32_dpp v4, v4, v4 row_ror:{sh} row_mask:0xf bank_mask:0xf\nv_add_f32_dpp v5, v5, v5 row_ror:{sh} row_mask:0xf bank_mask:0xf")
        if O["beta"] and i in (2, 3):
            t_ = i - 2
            e("@vm w2e")
            for dt in range(5):
                for h in range(2): e(f"ds_read_b64_tr_b16 v[{20+4*dt+2*h}:{21+4*dt+2*h}], " + (f"v14 offset:{t_*6144 + h*3072 + 64*(dt//2) + 8*(dt%2)}" if dt < 4 else f"v15 offset:{t_*6144 + h*3072 + 128}"))
            for dt in range(5): e(f"s_waitcnt lgkmcnt({8 - 2*dt})\nbuffer_store_dwordx4 {rng(20+4*dt)}, " + (f"v16, s[20:23], s45 offen offset:{dt*1024} sc1" if dt < 4 else "v17, s[20:23], s45 offen sc1"))
            e("s_add_u32 s45, s45, 5120")
        if i == 0: e("v_mov_b32 v8, v4\nv_mov_b32 v9, v5")
        else: e("s_lshl_b64 s[42:43], s[42:43], 1\nv_cndmask_b32 v8, v8, v4, s[42:43]\nv_cndmask_b32 v9, v9, v5, s[42:43]")
    assert not SQ
    e(f"""v_mul_f32 v9, {f2h(1/640)}, v9
v_mul_f32 v4, {f2h(1/640)}, v8
v_fma_f32 v4, -v9, v9, v4
v_max_f32 v4, 0, v4
v_add_f32 v4, {f2h(EPS)}, v4
v_rsq_f32 v4, v4
v_bfe_u32 v5, v{vL}, 1, 2
v_and_b32 v6, 1, v{vL}
v_mul_f32 v8, {f2h(2.0**-11)}, v4
v_lshl_add_u32 v12, v5, 7, v11
v_lshl_add_u32 v12, v6, 12, v12
v_lshl_add_u32 v13, v5, 8, v11
v_lshl_add_u32 v13, v6, 4, v13
s_mov_b32 s42, 0x00ff00ff
s_mov_b32 s43, 0x00ff00ff
s_mov_b64 exec, s[42:43]
buffer_store_dword v8, v12, s[20:23], s36 offen sc1
buffer_store_dword v9, v13, s[20:23], s37 offen sc1
s_mov_b64 exec, -1""")
    nonce_get(e, "kc", 18)
    e(gemm_role); e(PHS); e(PHK)
    for ki in range(O["wpre"]): e(phx(ki))
    e("@drain\ns_barrier"); flag_put(e, "ks1", FL1, sh=WS)
    e("kf_np2:")
    st(6)
    def unit_late():
        if O["uearly"]: return
        e("s_cmp_ge_u32 s2, 224\ns_cbranch_scc1 kn_nounit")
        e(U_addr)
        if O["beta"]: e("s_bitcmp1_b32 s2, 3\ns_cselect_b32 s13, 0, 0x40000000\nv_add_u32 v184, s13, v10\nv_add_u32 v186, s13, v186")
        e([x for j in range(7) for x in U_frag[j][0]])
        for j in range(8):
            e(f"s_waitcnt lgkmcnt({min(12, 14 - 2*j)})"); e(U_frag[j][1].replace("v10, s[20:23]", "v184, s[20:23]") if O["beta"] else U_frag[j][1])
            if j == 0: e(U_frag[7][0])
        e("kn_nounit:")
    e(wflag); e(w1set)
    if O["opre_kp"] == -1: e(outpre(140, O["opre_fl"]))
    if O["biasa"]: e(biasld)
    if O["unit_at"] < 0: unit_late()
    if O["np_early"]:
        EQ = []
        if O["beta"]:
            e(w2base); e(eflag); e("v_mov_b32 v190, s32"); flag_poll(e, "kn_e", 190, 192, back=2); EQ = list(W2E)
        e(sprinkle(PHK + [x for ki in range(O["wpre"], O["npre"]) for x in phx(ki)], EQ, 75))
        for n in EQ: e(n)
    flag_poll(e, "kn_w", 18, 200, back=O["back_w"])
    st(8)
    third = """s_lshr_b32 s32, s2, 5
s_max_u32 s32, s32, 5
s_sub_u32 s32, s32, 5
s_lshl_b32 s32, s32, 2
s_add_u32 s32, s32, s28
s_mul_i32 s32, s32, 20480
s_mul_i32 s33, s30, 245760
s_add_u32 s32, s32, s33
s_add_u32 s33, s32, {0}
s_add_u32 s34, s33, 8192
s_add_u32 s35, s33, 12288"""
    touch = [f"buffer_load_dword v{200+k}, v203, s[20:23], s{33+k} offen sc1" for k in range(3)]
    e(f"v_lshlrev_b32 v203, 7, v{vL}")
    if O["touch"]: e(third.format(W1F)); e(touch)
    elif O["share1"]: e(share(W1F, 200))
    if O["vtouch"]:
        e(f"s_cmp_lt_u32 s2, {O['vtouch']}\ns_cbranch_scc1 kn_novt")
        for i in range(3): a(f"s_add_u32 s33, s44, {i*20480 + 12288}\nbuffer_load_dword v{200+i}, v203, s[20:23], s33 offen sc1")
        e("kn_novt:")
    X = [] if O["np_early"] else PHK + [x for ki in range(O["wpre"], O["npre"]) for x in phx(ki)]
    NQ = list(W1L[:60 - len(W1Q_after)])
    cut = int(len(X) * min(1, max(0, O["unit_at"])))
    e(sprinkle(X[:cut], NQ, O["np_gap"], first=O["np_first"]))
    st(70)
    if 0 <= O["unit_at"] <= 1: unit_late()
    st(71)
    e(sprinkle(X[cut:], NQ, O["np_gap"]))
    st(72)
    for n in NQ: e(n)
    if O["unit_at"] > 1: unit_late()
    st(73)
    e(tileflag(206))
    e(f"s_sub_u32 s32, s2, 96\ns_lshl_b32 s32, s32, 7\ns_add_u32 s32, s32, {FLH}\nv_mov_b32 v207, s32\nv_cmp_gt_u32 vcc, 32, v{vL}\ns_nop 0\nv_cndmask_b32 v206, v207, v206, vcc")
    e("buffer_load_dwordx2 v[204:205], v206, s[20:23], 0 offen sc1\n@drain")
    if not O["uearly"]: e("s_barrier"); flag_put(e, "kn2", FL2, 208)
    e("v_cmp_ne_u64 vcc, s[10:11], v[204:205]\ns_cbranch_vccz kn_u_ok")
    flag_poll(e, "kn_u", 206, 204, back=O["back_u"])
    e("kn_u_ok:")
    st(74)
    st(9)
    e.vm = vm_join
    moved = []
    if O["relay"]:
        moved = a.items[pos_np0:] + [("i", "s_branch kf_join")]; del a.items[pos_np0-1:]
    e("kf_join:")
    if W1Q: e(f"s_add_u32 s45, s44, {'s%d' % (97 + (60 - len(W1Q))//12) if O['rot1'] else (60 - len(W1Q))//12*4096}")
    PHQ = (phk(120) if O["npre"] < 5 else []) + [x for ki in range(O["npre"], 5) for x in phx(ki, PT=120)]
    e(f"""s_mul_i32 s33, s29, 81920
s_lshl_b32 s39, s28, 12
s_add_u32 s33, s33, s39
v_bfe_u32 v2, v{vL}, 1, 2
v_bfe_u32 v12, v{vL}, 4, 2
v_xor_b32 v2, v2, v12
v_lshlrev_b32 v2, 5, v2
v_and_b32 v13, 1, v{vL}
v_lshl_or_b32 v2, v13, 4, v2
v_lshrrev_b32 v13, 3, v{vL}
v_lshl_add_u32 v13, v13, 7, v2
v_add_u32 v18, s39, v10""".replace("v12", "v204"))
    if O["rot1"]:
        pass
    for c in range(1, 5): e(f"s_add_u32 s{34+c}, s33, {c*16384}") if not O["rot1"] else e(f"s_lshl_b32 s32, s{97+c}, 2\ns_add_u32 s{34+c}, s33, s32")
    if O["rot1"]: e("s_lshl_b32 s32, s97, 2\ns_add_u32 s33, s33, s32\nv_add_u32 v18, s32, v18\ns_mul_i32 s9, s29, 81920")
    TG = SG
    m0of = lambda c: f"s_sub_u32 m0, s{33 if c == 0 else 34+c}, s9" if O["rot1"] else f"s_add_u32 m0, s39, {c*16384}"
    hload = lambda c: [f"{m0of(c)}\nbuffer_load_dwordx4 v13, s[20:23], s{33 if c == 0 else 34+c} offen offset:{q*1024} sc1 lds" + (f" #h{c}" if q == 3 else "") for q in range(4)]
    htag = lambda c: [f"ds_read_b32 v{TG+q}, v18 offset:{q*1024}" if O["rot1"] else f"ds_read_b32 v{TG+q}, v{18 if c < 4 else 19} offset:{(c%4)*16384 + q*1024}" for q in range(4)]
    hcheck = lambda c: [f"v_bitop3_b32 v2, v{TG}, v{TG+1}, v{TG+2} bitop3:0x80", f"v_bitop3_b32 v2, v2, v{TG+3}, 1 bitop3:0x80", "v_cmp_eq_u32 vcc, 0, v2"]
    hretry = lambda c: retry_block(f"h{c}", hload(c), htag(c) + ["s_waitcnt lgkmcnt(0)"] + hcheck(c))
    st(10)
    e(hload(0)); e(hload(1)); e(hload(2))
    e(f"""v_add_u32 v19, 0x10000, v18
v_lshrrev_b32 v2, 2, v{vL}
v_bfe_u32 v204, v2, 1, 2
v_and_b32 v205, 3, v{vL}
v_lshlrev_b32 v205, 3, v205
v_lshl_add_u32 v205, v2, 7, v205""")
    if O["rot1"]: assert O["half"]; e("s_lshl_b32 s32, s97, 2\nv_add_u32 v19, s32, v205")
    if O["half"]:
        assert O["npre"] <= 4
        vb = 19 if O["rot1"] else 205
        for u in range(4): e(f"v_xor_b32 v2, {u}, v204\nv_lshl_add_u32 v{14+u}, v2, 5, v{vb}")
        e(f"v_xor_b32 v2, s28, v204\nv_lshl_add_u32 v112, v2, 5, v{vb}\ns_mov_b32 s40, s28")
        for u in range(1, 4): e(f"s_cmp_ge_u32 {u-1}, s28\ns_addc_u32 s{40+u}, {u-1}, 0")
        e("s_mul_i32 s32, s28, 20480\nv_add_u32 v205, s32, v205")
        for u in range(4): e(f"v_xor_b32 v2, s{40+u}, v204\nv_lshl_add_u32 v{113+u}, v2, 5, v205")
    else:
        for u in range(4): e(f"s_add_u32 s{40+u}, s28, {u}\ns_and_b32 s{40+u}, s{40+u}, 3\nv_xor_b32 v2, s{40+u}, v204\nv_lshl_add_u32 v{14+u}, v2, 5, v205")
    e(f"s_mul_i32 s12, s30, 48\ns_mul_i32 s32, s28, 12\ns_add_u32 s12, s12, s32\ns_mul_i32 s12, s12, 5120\ns_add_u32 s12, s12, {W2F}")
    e("@vm h0"); e(htag(0)); e("s_waitcnt lgkmcnt(0)"); e(hcheck(0)); e(hretry(0))
    st(11)
    e("s_barrier")
    bf = lambda b, u: (BF + 16*b if b < 2 else SG + 4) + 4*u
    breads = lambda kp, b: [f"ds_read_b64_tr_b16 v[{bf(b,u)+2*h}:{bf(b,u)+2*h+1}], v{14+u} offset:{(kp % (4 if O['rot1'] else 16))*4096 + h*2048}" for u in range(4) for h in range(2)]
    NR = 8
    gop = lambda b: bf(b, 0)
    if O["half"]:
        NR = 10; gop = lambda b: 100 + 4*b; breads0 = breads
        breads = lambda kp, b: [f"ds_read_b64_tr_b16 v[{gop(b)+2*h}:{gop(b)+2*h+1}], v112 offset:{(kp % (4 if O['rot1'] else 16))*4096 + h*2048}" for h in range(2)] + breads0(kp, b)
    ac = lambda i, u: AC + 16*i + 4*u
    W2Q = []
    for n in range(60):
        m = n % 4
        pre = [f"s_add_u32 s13, s12, {n*1024}"] if m == 0 else []
        if O["rot2"]:
            m = n % 15
            pre = [f"s_add_u32 s13, s96, {n//15}\ns_and_b32 s13, s13, 3\ns_mul_i32 s13, s13, 15360\ns_add_u32 s13, s13, s12"] if m == 0 else (["s_add_u32 s13, s13, 4096"] if m % 4 == 0 else [])
        W2Q.append(pre + [f"buffer_load_dwordx4 {arng(w2r(n))}, v10, s[20:23], s13 offen offset:{(m%4)*1024} sc1"])
    if O["beta"]: del W2Q[:20]
    if O.get('now2'): W2Q.clear(); W2Q += []
    B1, B1R, RT, FT = SG + 20, SG + 32, SG, SG + 20
    e(breads(0, 0)); e(breads(1, 1)[:5]); e("s_waitcnt lgkmcnt(5)"); e(breads(1, 1)[5:])
    sc1 = Sched(O["g1_vgap"], O["bgfirst"])
    c1 = -2*math.log2(math.e)*math.sqrt(2/math.pi); c2 = c1*0.044715
    gram = lambda k: f"{MF} {rng(GR)}, {rng(gop(k%3))}, {rng(gop(k%3))}, {'0' if k == 0 else rng(GR)}"
    for kp in range(20):
        b = kp % 3; c = kp // 4; ph_ = kp % 4
        M = []
        if kp <= 16: M.append(gram(kp))
        for u in range(4):
            for i in range(3): M.append(f"{MF} {rng(ac(i,u))}, {arng(w1r(kp,i))}, {rng(bf(b,u))}, {'0' if kp == 0 else rng(ac(i,u))}")
        young = NR + 4 if (ph_ == 1 and c < 4) else {18: NR - 2, 19: 0}.get(kp, NR)
        e(f"@vm w1_{kp}\ns_waitcnt lgkmcnt({young})")
        if kp == 8: st(20)
        st(50 + kp)
        if kp == 16: st(21)
        lds, other = [], []
        if kp == 17:
            M = [gram(17)] + M[:8] + ["s_waitcnt lgkmcnt(8)", gram(18)] + M[8:]
        if kp == 18: M = [gram(19)] + M
        if kp < 18:
            if ph_ == 2 and c < 4:
                mv = [f"v_add_u32 v{r}, 0x10000, v{r}" for r in [14, 15, 16, 17] + ([112] if O["half"] else [])] if kp == 14 else []
                if O["rot1"]: mv = [f"s_sub_u32 s51, s{98+c}, s{97+c}\ns_lshl_b32 s51, s51, 2"] + [f"v_add_u32 v{r}, s51, v{r}" for r in (14, 15, 16, 17, 112)]
                e(sc1(M[:2], [], mv)); M = M[2:]; e("s_barrier")
            lds += breads(kp+2, (kp+2) % 3)
        if kp == 0: other += hload(3)
        if kp == 2: other += hload(4)
        if ph_ == 0 and c < 4:
            adv = f"s_sub_u32 s51, s{98+c}, s{97+c}\ns_lshl_b32 s51, s51, 2\nv_add_u32 v18, s51, v18\n" if O["rot1"] else ""
            lds += [adv + f"@vm h{c+1}\n" + htag(c+1)[0]] + htag(c+1)[1:]
        if ph_ == 1 and c < 4:
            e(sc1(M[:5], lds[:5], [])); M = M[5:]; lds = lds[5:]
            other[:0] = ["s_waitcnt lgkmcnt(5)\n" + hcheck(c+1)[0]] + hcheck(c+1)[1:] + hretry(c+1)
        if kp == O["w2_start"] - O["f2_lead"]:
            other += [f"s_lshl_b32 s32, s30, 7\ns_add_u32 s32, s32, {(FL1 if O['uearly'] else FL2) + 160*128}", f"v_and_b32 v{FT}, 7, v{vL}", f"v_lshl_add_u32 v{FT}, v{FT}, 10, s32",
                      f"buffer_load_dwordx2 v[{FT+2}:{FT+3}], v{FT}, s[20:23], 0 offen sc1 #f2"]
        if kp == O["w2_start"]:
            chk = [f"v_cmp_ne_u64 vcc, s[10:11], v[{FT+2}:{FT+3}]"]
            other += ["@vm f2"] + chk + retry_block("f2", [f"buffer_load_dwordx2 v[{FT+2}:{FT+3}], v{FT}, s[20:23], 0 offen sc1"], chk)
            if O["share2"]: other += [x.replace("s38", "s46") for x in share(W2F, FT)]
        if kp == O["gpre_kp"]:
            other += [f"s_lshl_b32 s32, s29, 3\ns_add_u32 s32, s32, s30\ns_mul_i32 s32, s32, 24576\ns_mul_i32 s34, s28, 6144\ns_add_u32 s32, s32, s34\ns_add_u32 s46, s32, {G}\ns_add_u32 s47, s46, 4096"]
        if O["gpre_kp"] <= kp < O["gpre_kp"] + 6:
            i = kp - O["gpre_kp"]
            other += [f"buffer_store_dwordx4 {rng(TG)}, v10, s[20:23], s{46 + i//4} offen offset:{(i%4)*1024} sc1"]
        if kp == 5: other += blank(FT + 4, "3")
        if kp == O["opre_kp"]: other += outpre(FT + 4, O["opre_fl"])
        if kp == 11 and O["biasa"]: other += [f"v_accvgpr_read_b32 v{B1R+k}, a{240+k}" for k in range(16)]
        if kp == 11 and not O["biasa"]:
            other += ["s_mul_i32 s32, s30, 384\ns_mul_i32 s34, s28, 96\ns_add_u32 s32, s32, s34", f"v_lshrrev_b32 v2, 4, v{vL}", f"v_lshl_add_u32 v{B1R+4}, v2, 3, s32"]
            other += [f"global_load_dwordx2 v[{B1R+2*i}:{B1R+1+2*i}], v{B1R+4}, s[54:55] offset:{32*i} #b1x" for i in range(3)]
        if kp == 12 and not O["biasa"]:
            other += ["s_mul_i32 s32, s30, 160", f"v_lshrrev_b32 v2, 4, v{vL}", "v_lshl_add_u32 v246, v2, 4, s32", "v_lshl_add_u32 v250, v2, 3, s32",
                      "global_load_dwordx4 v[242:245], v246, s[58:59]", "global_load_dwordx4 v[246:249], v246, s[58:59] offset:64", "global_load_dwordx2 v[250:251], v250, s[58:59] offset:128"]
        if kp == 13:
            other += [f"s_lshl_b32 s32, s29, 8\ns_lshl_b32 s34, s28, 6\ns_add_u32 s32, s32, s34\ns_add_u32 s32, s32, {MU}",
                      f"v_and_b32 v13, 15, v{vL}", "v_lshlrev_b32 v13, 2, v13"]
        if kp == 15: other += ["buffer_load_dword v13, v13, s[20:23], s32 offen sc1 #b1"]
        if kp == 16:
            other += [f"v_and_b32 v2, 3, v{vL}", "v_cmp_eq_u32 vcc, 1, v2", "v_cmp_eq_u32 s[34:35], 2, v2", "v_cmp_eq_u32 s[36:37], 3, v2",
                      f"v_bfe_u32 v18, v{vL}, 2, 2", f"v_lshrrev_b32 v19, 4, v{vL}", "v_cmp_eq_u32 s[38:39], v18, v19", f"v_and_b32 v18, 15, v{vL}", "v_lshlrev_b32 v18, 2, v18",
                      f"s_lshl_b32 s32, s28, 6\ns_add_u32 s32, s32, {RX}", "v_add_u32 v19, s32, v18", f"v_add_u32 v18, {RX}, v18"]
        if kp == 14:
            other += [f"s_lshl_b32 s8, s29, 3", "s_add_u32 s8, s8, s30", "s_mul_i32 s8, s8, 24576", f"s_add_u32 s8, s8, {G + O.get('gshift', 0)}",
                      "s_lshr_b32 s3, s28, 1", "s_add_u32 s3, s3, 4", "s_lshl_b32 s3, s3, 10", "s_add_u32 s3, s3, s8", "s_and_b32 s4, s28, 1", "s_lshl_b32 s4, s4, 9", "s_add_u32 s3, s3, s4",
                      "s_lshl_b32 s4, s28, 10", "s_add_u32 s8, s8, s4"] + [(f"s_movk_i32 s{4+u}, {6144*u}" if O["half"] else f"s_mul_i32 s{4+u}, s{40+u}, 6144") for u in range(4)]
        if kp == 15:
            assert not W1Q
            other += [f"v_and_b32 v2, 31, v{vL}", "v_lshlrev_b32 v2, 4, v2", f"v_cmp_gt_u32 vcc, 32, v{vL}",
                      f"v_mov_b32 v{RT}, s4", f"v_mov_b32 v{RT+1}, s5", f"v_cndmask_b32 v{RT}, v{RT+1}, v{RT}, vcc", f"v_add_u32 v11, v2, v{RT}",
                      f"v_mov_b32 v{RT}, s6", f"v_mov_b32 v{RT+1}, s7", f"v_cndmask_b32 v{RT}, v{RT+1}, v{RT}, vcc", f"v_add_u32 v12, v2, v{RT}"] + [f"s_add_u32 s{4+u}, s{4+u}, s8" for u in range(4)]
        if kp == 17:
            other += ["@vm b1x"]
            for i in range(3):
                for q in range(2): other += [f"v_and_b32 v{B1+4*i+2*q+1}, 0xffff0000, v{B1R+2*i+q}", f"v_lshlrev_b32 v{B1+4*i+2*q}, 16, v{B1R+2*i+q}"]
        if kp == 18: other += [f"s_mov_b32 s46, {f2h(c2)}", f"s_mov_b32 s47, {f2h(c2)}", "s_nop 0", "s_nop 0", "s_nop 0", "s_nop 0"]
        if kp == 18:
            x5, x6, x7 = RT, RT+1, RT+2
            other += [f"v_cndmask_b32 v{x5}, v{GR}, v{GR+1}, vcc", f"v_cndmask_b32 v{x5}, v{x5}, v{GR+2}, s[34:35]", f"v_cndmask_b32 v{x5}, v{x5}, v{GR+3}, s[36:37]",
                      f"v_mul_f32 v{x5}, {f2h(2/640**2)}, v{x5}", f"v_add_f32 v{x6}, {f2h(EPS)}, v{x5}", f"v_rcp_f32 v{x7}, v{x6}", f"v_rsq_f32 v{x6}, v{x6}", f"v_fmaak_f32 v{x5}, v{x5}, v{x7}, {f2h(EPS)}",
                      f"v_rsq_f32 v{x5}, v{x5}", f"v_mul_f32 v{x6}, {f2h(2/640)}, v{x6}", f"v_mul_f32 v{x5}, v{x5}, v{x6}", f"s_mov_b64 exec, s[38:39]\nds_write_b32 v19, v{x5}\ns_mov_b64 exec, -1"]
        if kp == 19:
            assert not W1Q
            e(M[:2]); M = M[2:]; e("s_barrier")
            for u in range(4): other += ([f"ds_read_b32 v{GR+u}, v18 offset:{64*u}"] if O["half"] else [f"s_lshl_b32 s32, s{40+u}, 6\nv_add_u32 v19, s32, v18", f"ds_read_b32 v{GR+u}, v19"])
            other += [f"v_mov_b32 v18, {f2h(c1)}", f"v_mov_b32 v19, {f2h(c1)}"]
        nb = O["g1_bg"] if kp >= O["g1_start"] else 0
        n1 = sum(1 for j in range(60 - len(W1Q), 60) if w1ok(j//3) <= kp)
        n2 = sum(1 for j in range(60 - len(W2Q), 60) if w2ok(j) <= kp) if kp > O["w2_start"] + O["w2_lag"] else 0
        if n1: bgq = W1Q; nb = min(nb, n1)
        else: bgq = W2Q; nb = min(nb, O["g1_bg2"], n2) if not (W1Q and not O["beta"]) else 0
        e(sc1(M, lds, other, bgq, nb, low=None))
    assert not W1Q
    st(22)
    e("s_waitcnt lgkmcnt(0)")
    OUT = BF
    def gelu4(i, u, o, T):
        L = []; x = ac(i, u); p2 = lambda r: f"v[{r}:{r+1}]"
        for q in range(2): L.append(f"v_pk_fma_f32 {p2(x+2*q)}, {p2(x+2*q)}, {p2(GR+(u&2))}, {p2(B1+4*i+2*q)} op_sel:[0,{u&1},0] op_sel_hi:[1,{u&1},1]")
        for q in range(2): L.append(f"v_pk_mul_f32 {p2(T+2*q)}, {p2(x+2*q)}, {p2(x+2*q)}")
        for q in range(2): L.append(f"v_pk_fma_f32 {p2(T+2*q)}, {p2(T+2*q)}, s[46:47], v[18:19]")
        for q in range(2): L.append(f"v_pk_mul_f32 {p2(T+2*q)}, {p2(T+2*q)}, {p2(x+2*q)}")
        for r in range(4): L.append(f"v_exp_f32 v{T+r}, v{T+r}")
        for q in range(2): L.append(f"v_pk_add_f32 {p2(T+2*q)}, {p2(T+2*q)}, 1.0 op_sel_hi:[1,0]")
        for r in range(4): L.append(f"v_rcp_f32 v{T+r}, v{T+r}")
        for q in range(2): L.append(f"v_pk_mul_f32 {p2(T+2*q)}, {p2(T+2*q)}, {p2(x+2*q)}")
        for q in range(2): L.append(f"v_cvt_pk_bf16_f32 v{o+q}, v{T+2*q}, v{T+2*q+1}")
        return L
    L = []
    for u in range(4):
        o = OUT + 4*u
        L += gelu4(0, u, o, SG) + gelu4(1, u, o+2, SG+4) + [f"buffer_store_dwordx4 {rng(o)}, v10, s[20:23], s{4+u} offen sc1"]
        if u % 2 == 1:
            o = OUT + 16 + 4*(u//2)
            L += gelu4(2, u-1, o, SG) + gelu4(2, u, o+2, SG+4)
            L += [f"v_permlane32_swap_b32 v{o}, v{o+2}", f"v_permlane32_swap_b32 v{o+1}, v{o+3}", f"buffer_store_dwordx4 {rng(o)}, v{11+u//2}, s[20:23], s3 offen sc1 #{'gst' if u == 3 else 'gsa'}"]
    fladdr = lambda r, base: f"s_lshl_b32 s{r}, s29, 3\ns_add_u32 s{r}, s{r}, s30\ns_lshl_b32 s{r}, s{r}, {WS-SS}\ns_add_u32 s{r}, s{r}, s28\ns_lshl_b32 s{r}, s{r}, {SS}\ns_add_u32 s{r}, s{r}, {base}"
    if O["half"]:
        k = int(len(L) * O["fa_put"])
        L[k:k] = [fladdr(35, FL0), "v_mov_b32 v200, s10", "v_mov_b32 v201, s11", "@vm gsa", "buffer_store_dwordx2 v[200:201], off, s[20:23], s35 sc1"]
    cut = int(len(L) * O["gelu_cut"])
    e(sprinkle(L[:cut], W2Q, O["gelu_gap"])); e(L[cut:])
    st(23)
    A2, BF2, MB, GB, PS = 120, 204, 236, 20, 204
    a2 = lambda u, dt: A2 + 20*u + 4*dt
    bf2 = lambda b, u: BF2 + 16*b + 4*u
    gb = lambda b, ks: GB + 48*b + 4*ks
    if O["half"]:
        for u in range(4): e(f"v_mov_b32 v{14+u}, v{113+u}")
    else:
        e("s_mul_i32 s32, s28, 20480\ns_sub_u32 s32, s32, 0x10000")
        for u in range(4): e(f"v_add_u32 v{14+u}, s32, v{14+u}")
    br2 = lambda ki, b: [f"ds_read_b64_tr_b16 v[{bf2(b,u)+2*h}:{bf2(b,u)+2*h+1}], v{14+u} offset:{ki*4096 + h*2048}" for u in range(4) for h in range(2)]
    print("phi left for the third window:", len(PHQ), " W2 loads left:", len(W2Q))
    gflag = ["@vm gst", f"s_lshl_b32 s35, s29, 3\ns_add_u32 s35, s35, s30\ns_lshl_b32 s35, s35, {WS-SS}\ns_add_u32 s35, s35, s28\ns_lshl_b32 s35, s35, {SS}\ns_add_u32 s35, s35, {FL3}",
             "v_mov_b32 v18, s10", "v_mov_b32 v19, s11", "buffer_store_dwordx2 v[18:19], off, s[20:23], s35 sc1"]
    if O["gflag_ki"] < 0:
        cut = int(len(PHQ) * O["gflag_at"])
        e(gflag[1:-1]); e(sprinkle(PHQ[:cut], W2Q, O["ext_gap"])); e(gflag[:1] + gflag[-1:]); del PHQ[:cut]
    e(sprinkle(PHQ, W2Q, O["ext_gap"]))
    e(br2(0, 0))
    UB = []
    UB += [f"s_lshl_b32 s32, s29, 3\ns_lshl_b32 s33, s28, 1\ns_add_u32 s32, s32, s33\ns_mul_i32 s32, s32, 24576\ns_add_u32 s32, s32, {G}",
           "\n".join(f"s_mul_i32 s{36+u}, s{40+u}, 6144\ns_add_u32 s{36+u}, s{36+u}, s32" for u in range(4)),
           f"s_lshl_b32 s32, s29, 3\ns_lshl_b32 s33, s28, 1\ns_add_u32 s33, s33, s32\ns_lshl_b32 s33, s33, {WS}\ns_add_u32 s33, s33, {FL3}",
           f"v_bfe_u32 v2, v{vL}, 2, 1", f"v_and_b32 v3, 3, v{vL}", f"v_lshlrev_b32 v3, {SS}, v3", f"v_lshl_add_u32 v3, v2, {WS}, v3", "v_add_u32 v11, s33, v3"]
    UB += [f"v_add_u32 v12, {(FL0 - FL3) & 0xffffffff}, v11\n@mark ub2"]
    for gq in range(4):
        if O["rot2"]: UB += [f"s_add_u32 s33, s96, {gq}\ns_and_b32 s33, s33, 3\ns_lshr_b32 s34, s33, 1\ns_mul_i32 s34, s34, 24576\ns_and_b32 s33, s33, 1\ns_mul_i32 s33, s33, 3072\ns_add_u32 s33, s33, s34\nv_add_u32 v{6+gq}, s33, v10" + ("\n@mark ub" if gq == 3 else "")]
        else: UB += [f"v_add_u32 v{6+gq}, {(gq//2)*24576 + (gq%2)*3072}, v10" + ("\n@mark ub" if gq == 3 else "")]
    UB += ["@vm b1"]
    for q in [0, 1, 2, 3, 4, 5, 9, 8, 7, 6]:
        lo, hi = f"v_lshlrev_b32 v{MB+2*q}, 16, v{242+q}", f"v_and_b32 v{MB+2*q+1}, 0xffff0000, v{242+q}"
        UB += ([lo, hi] if q <= 5 else [hi, lo]) + [f"v_add_f32 v{MB+2*q}, v13, v{MB+2*q}", f"v_add_f32 v{MB+2*q+1}, v13, v{MB+2*q+1}"]
    def gl1(u, b, ks): return f"buffer_load_dwordx4 {rng(gb(b,ks))}, v{6 + ks//3}, s[20:23], s{36+u} offen offset:{(ks%3)*1024} sc1" + (f" #g{u}_{ks}")
    gload = lambda u, b: [gl1(u, b, ks) for ks in range(12)]
    for ki in range(5):
        M = [f"{MF} {rng(a2(u,dt))}, {rng(ph(ki,dt))}, {rng(bf2(ki%2,u))}, {'0' if ki == 0 else rng(a2(u,dt))}" for u in range(4) for dt in range(5)]
        e("s_waitcnt lgkmcnt(0)")
        st(80 + ki)
        if ki == O["gflag_ki"]: e(gflag[:1]); fl = gflag[1:]; st(86)
        else: fl = []
        UB[:0] = fl
        if ki == (O["fa_chk"] if O["half"] else 4):
            for n in W2Q: e(n)
            W2Q.clear()
            if O["half"]:
                ca = ["v_cmp_ne_u64 vcc, s[10:11], v[200:201]"]
                e("@vm fa"); e(ca); e(retry_block("fa", ["buffer_load_dwordx2 v[200:201], v12, s[20:23], 0 offen sc1"], ca))
                W2Q += [[x] for x in gload(1, 0)]
        if O["half"] and ki == int(O["fa_poll"]):
            k = int(round((O["fa_poll"] - ki) * 20)); M[k:k] = ["@need ub2\nbuffer_load_dwordx2 v[200:201], v12, s[20:23], 0 offen sc1 #fa"]
        gfl = lambda R, t: f"buffer_load_dwordx2 v[{R}:{R+1}], v11, s[20:23], 0 offen sc1 #{t}"
        for (pos, R, t) in ((O["gf1"], 18, "gf"), (O["gf2"], 2, "gf2")):
            if pos is not None and int(pos) == ki:
                k = int(round((pos - ki) * 20))
                e(sc1(M[:k], [], [])) if False else None
                M[k:k] = ["@need ub\n" + gfl(R, t)]
        e(sc1(M, br2(ki+1, 1-ki%2) if ki < 4 else [], UB, W2Q, 7 if O['half'] else 5, flush=(ki == 4)))
    for n in W2Q: e(n)
    for u in range(1, 4):
        if O["half"]: e(f"s_sub_u32 s34, s28, s{40+u}\ns_add_u32 s34, s34, 3\ns_and_b32 s34, s34, 3\ns_mul_i32 s34, s34, 5120\ns_mul_i32 s33, s{40+u}, 15360\ns_add_u32 s33, s33, s34\ns_add_u32 s33, s33, {RG}\nv_add_u32 v{13+u}, s33, v10")
        else: e(f"s_mul_i32 s33, s{40+u}, 15360\ns_add_u32 s33, s33, {RG + (u-1)*5120}\nv_add_u32 v{13+u}, s33, v10")
    e(f"s_mul_i32 s33, s28, 15360\ns_add_u32 s33, s33, {RG}\nv_add_u32 v17, s33, v10")
    st(24)
    chk = ["v_cmp_ne_u64 vcc, s[10:11], v[18:19]"]
    if not O["half"]: e("@vm gf"); e(chk)
    if O["half"]: pass
    elif O["gf2"] is None: e(retry_block("gf", ["buffer_load_dwordx2 v[18:19], v11, s[20:23], 0 offen sc1"], chk))
    else:
        e("s_cbranch_vccnz kf_gf2\nkf_ok_gf:")
        retries.append(("gf", ["buffer_load_dwordx2 v[18:19], v11, s[20:23], 0 offen sc1"], chk))
        extra_tail.append("kf_gf2:\ns_waitcnt vmcnt(0)\nv_cmp_ne_u64 vcc, s[10:11], v[2:3]\ns_cbranch_vccz kf_ok_gf\ns_branch kf_rt_gf")
    if not O["half"]: e(gload(1, 0))
    st(25)
    order = [1, 2, 3, 0]; sc2 = Sched(1)
    if O.get("dummy"): e("s_add_u32 s60, s14, 0x3000000\ns_addc_u32 s61, s15, 0")
    srd(e, 16, 60, 2621440)
    for n, u in enumerate(order):
        b = n % 2
        first = []
        if n >= 1:
            pu = order[n-1]
            for dt in range(5): first += [f"ds_write_b128 v{13+pu}, {rng(a2(pu,dt))} offset:{dt*1024}"] + [""] * (3 if n < 3 else 5)
        if n == 3:
            first += ["s_waitcnt lgkmcnt(0)\ns_barrier"]
            rd = lambda sidx, base: [f"ds_read_b128 {rng(base+4*dt)}, v17 offset:{sidx*5120 + dt*1024}" for dt in range(5)]
            first += rd(0, PS) + rd(1, GB) + ["s_waitcnt lgkmcnt(5)"]
            A_ = [f"v_add_f32 v{MB+q}, v{MB+q}, v{PS+q}" for q in range(20)]
            first += [z for k in range(5) for z in (rd(2, GB+20)[k], A_[k])] + A_[5:] + ["s_waitcnt lgkmcnt(5)"] + [f"v_add_f32 v{MB+q}, v{MB+q}, v{GB+q}" for q in range(20)]
        if n == 2:
            first += [f"s_lshr_b32 s32, s29, 2\ns_lshl_b32 s32, s32, 8\ns_and_b32 s33, s29, 3\ns_lshl_b32 s33, s33, 3\ns_add_u32 s32, s32, s33\ns_lshl_b32 s33, s28, 6\ns_add_u32 s32, s32, s33",
                      f"v_lshrrev_b32 v3, 5, v{vL}", f"v_bfe_u32 v4, v{vL}, 2, 3", "v_lshl_add_u32 v3, v3, 5, v4", "v_add_u32 v3, s32, v3", "v_mul_u32_u24 v3, 1280, v3",
                      f"v_and_b32 v5, 3, v{vL}", f"v_and_b32 v12, 60, v{vL}", "v_lshl_add_u32 v12, v5, 6, v12",
                      "v_lshl_add_u32 v4, v5, 4, v3", "v_lshl_add_u32 v5, v5, 3, v3", "s_mul_i32 s32, s30, 160"]
        first = [x for x in first if x]
        wr_ = [x for x in first if x.startswith("ds_write_b128")]; first = [x for x in first if not x.startswith("ds_write_b128")]
        for ks in range(12):
            M = [f"{MF} {rng(a2(u,dt))}, {arng(w2r(5*ks+dt))}, {rng(gb(b,ks))}, {rng(a2(u,dt))}" for dt in range(5)]
            e(f"@vm g{u}_{ks}")
            if n == 0 and ks == 0: st(87)
            pre = ([gl1(order[n+1], 1-b, ks)] if n + 1 < 4 else [])
            if O["half"] and n == 0:
                kb = O["fb_ks"]; per = -(-12 // (12 - kb))
                if ks == kb: e("@vm gf"); e(chk); e(retry_block("gf", ["buffer_load_dwordx2 v[18:19], v11, s[20:23], 0 offen sc1"], chk))
                pre = [gl1(order[1], 1, j) for j in range(per*(ks-kb), min(12, per*(ks-kb+1)))] if ks >= kb else []
                e(Sched(2)(M, [], pre)); continue
            if wr_: e(M[:2] if ks == 0 else []); e(sc2(M[2:] if ks == 0 else M, [], pre + [wr_.pop(0)]))
            else: e(sc2(M[:1], [], pre)); e(sc2(M[1:], [], first, flush=(ks == 11)))
        if n == 1: st(26)
        if n == 3: st(27)
    e("s_waitcnt lgkmcnt(0)")
    for q in range(10): e(f"v_pk_add_f32 v[{MB+2*q}:{MB+2*q+1}], v[{MB+2*q}:{MB+2*q+1}], v[{GB+20+2*q}:{GB+21+2*q}]")
    for q in range(10):
        e(f"v_pk_add_f32 v[{A2+2*q}:{A2+2*q+1}], v[{A2+2*q}:{A2+2*q+1}], v[{MB+2*q}:{MB+2*q+1}]\nv_cvt_pk_bf16_f32 v{PS+q}, v{A2+2*q}, v{A2+2*q+1}\nds_bpermute_b32 v{PS+10+q}, v12, v{PS+q}")
        if q == 6: e(f"s_waitcnt lgkmcnt(3)\nbuffer_store_dwordx4 {rng(PS+10)}, v4, s[16:19], s32 offen")
    e(f"s_waitcnt lgkmcnt(2)\nbuffer_store_dwordx4 {rng(PS+14)}, v4, s[16:19], s32 offen offset:64")
    e(f"s_waitcnt lgkmcnt(0)\nbuffer_store_dwordx2 v[{PS+18}:{PS+19}], v5, s[16:19], s32 offen offset:128")
    e("kf_done:")
    S.flush(a, 14, 28)
    e("kf_exit:\ns_endpgm")
    a.items += moved
    nonce_slow(a, spin)
    for x in extra_tail: a(x)
    for tag, loads, check in retries:
        a(f"kf_rt_{tag}:")
        for x in loads: a(x.split(" #")[0])
        a("s_sub_u32 s50, s50, 1\ns_cbranch_scc1 kf_fail\ns_waitcnt vmcnt(0)")
        for x in check: a(x)
        a(f"s_cbranch_vccnz kf_rt_{tag}\ns_branch kf_ok_{tag}")
    for d in O.get("drop", ()):
        a.items = [(k, "s_nop 0") if k == "i" and x.startswith("buffer_store") and d in x else (k, x) for k, x in a.items]
    if O.get("plainst"):
        a.items = [(k, x.replace(" sc1", O["plainst"][1])) if k == "i" and x.startswith("buffer_store") and any(d in x for d in O["plainst"][0]) else (k, x) for k, x in a.items]
    if O.get("outflag"):
        a.items = [(k, x + " " + O["outflag"]) if k == "i" and x.startswith("buffer_store") and "s[16:19], s32" in x else (k, x) for k, x in a.items]
    if O.get("dummy"):
        pass
    if O.get("nosleep"): a.items = [(k, x) for k, x in a.items if not (k == "i" and x.startswith("s_sleep"))]
    a.align = O['align']
    sites = []
    for i, (k, x) in enumerate(a.items):
        if k == "i" and x == "s_cbranch_scc1 kf_fail":
            sites.append(len(sites)); a.items[i] = (k, f"s_cbranch_scc1 kf_fail{sites[-1]}")
    for n in sites: a(f"kf_fail{n}:\ns_movk_i32 s3, {n}\ns_branch kf_fail")
    a("""kf_fail:
s_lshl_b32 s32, s2, 8
s_or_b32 s32, s32, s3
s_or_b32 s32, s32, 0x10000
v_mov_b32 v2, s32
s_and_b32 s32, s3, 31
s_lshl_b32 s32, s32, 2
s_add_u32 s32, s32, 16
v_mov_b32 v3, s32
global_store_dword v3, v2, s[62:63]
kf_last:
s_endpgm""")
    return a
```

```python
import sys, io, contextlib, json
from build import *
import kf, k3diag
sets = eval(open(sys.argv[1]).read()); out = []
for nm, opt in sets.items():
    ld = opt.pop("ld", "")
    with contextlib.redirect_stdout(io.StringIO()) as b:
        make([("kf_kernel", kf.build(opt=dict(opt), ld=ld, diag="Z"), 512, 256, 102, 256, kf.LDS), ("k3_kernel", k3diag.build_k3("tot", mult=10), 16, 16, 32, 1, 64)], f"exp/{nm}.s")
    assert "check: None" in b.getvalue()
    out.append(f"exp/{nm}.s")
print(json.dumps(out))
```
